```python
import torch

def _softmax(x, axis=-1):
    return torch.softmax(x, dim=axis)
def _gelu(x):
    return torch.nn.functional.gelu(x, approximate="tanh")
def _silu(x):
    return torch.nn.functional.silu(x)
def _sigmoid(x):
    return torch.sigmoid(x)
def _layernorm(x, axis=-1, eps=1e-5):
    m = x.mean(dim=axis, keepdim=True)
    v = x.var(dim=axis, keepdim=True, unbiased=False)
    return (x - m) / torch.sqrt(v + eps)
def _scatter_add(tgt, idx, src, axis=0):
    return tgt.clone().index_add_(axis, idx, src)
def _segment_sum(src, seg, n):
    out = torch.zeros((n,) + src.shape[1:], dtype=src.dtype)
    return out.index_add_(0, seg, src)
def _pad(x, pw):
    flat = tuple(v for pair in reversed(pw) for v in pair)
    return torch.nn.functional.pad(x, flat)

kernel_name = 'sequential_preLN__linear_attn_block__mixer_channel_mlp__prompt'

def setup_inputs():

    _w = (lambda a: (lambda t: t.to(torch.bfloat16) if t.is_floating_point() else t)(torch.as_tensor(a)))
    def _A_setup():
        B, S, D = 1, 2048, 512
        return {
            "x": _w((lambda *s: torch.randn(*s, dtype=torch.bfloat16) * 0.05)(B, S, D)),
            "wqkv": _w((lambda *s: torch.randn(*s, dtype=torch.bfloat16) * 0.1)(D, 3 * D)),
            "wo": _w((lambda *s: torch.randn(*s, dtype=torch.bfloat16) * 0.05)(D, D)),
        }
    _A_in = _A_setup()

    def _B_setup():
        B, S, D, F = 1, 2048, 512, 1376
        return {
            "x": _w((lambda *s: torch.randn(*s, dtype=torch.bfloat16) * 0.05)(B, S, D)),
            "w1": _w((lambda *s: torch.randn(*s, dtype=torch.bfloat16) * 3.2)(D, F) * (D ** -0.5)),
            "b1": _w((lambda *s: torch.randn(*s, dtype=torch.bfloat16) * 0.8)(F)),
            "w2": _w((lambda *s: torch.randn(*s, dtype=torch.bfloat16) * 0.05)(F, D) * (F ** -0.5)),
            "b2": _w((lambda *s: torch.randn(*s, dtype=torch.bfloat16) * 0.05)(D)),
        }
    _B_in = _B_setup()

    return {
        "A_x": _A_in["x"],
        "A_wqkv": _A_in["wqkv"],
        "A_wo": _A_in["wo"],
        "B_x": _B_in["x"],
        "B_w1": _B_in["w1"],
        "B_b1": _B_in["b1"],
        "B_w2": _B_in["w2"],
        "B_b2": _B_in["b2"],
    }

def reference(A_x, A_wqkv, A_wo, B_x, B_w1, B_b1, B_w2, B_b2):
    def _A_ref(x, wqkv, wo):
        B, S, D = x.shape
        H = 32; Dh = D // H
        qkv = (lambda x, *d: x.permute(*d))((x @ wqkv).reshape(B, S, 3, H, Dh), 2, 0, 3, 1, 4)
        q, k, v = qkv[0], qkv[1], qkv[2]
        phi = lambda t: torch.where(t > 0, t + 1, torch.exp(t)) + 1e-6
        pq, pk = phi(q), phi(k)
        kv = torch.einsum("bhsd,bhse->bhde", pk, v)
        z = torch.einsum("bhsd->bhd", pk)
        num = torch.einsum("bhqd,bhde->bhqe", pq, kv)
        den = torch.einsum("bhqd,bhd->bhq", pq, z)[..., None] + 1e-6
        o = num / den
        return (lambda x, *d: x.permute(*d))(o, 0, 2, 1, 3).reshape(B, S, D) @ wo

    def _B_ref(x, w1, b1, w2, b2):
        y = _layernorm(x, axis=-1)
        h = _gelu(torch.einsum("bsd,df->bsf", y, w1) + b1)
        return torch.einsum("bsf,fd->bsd", h, w2) + b2

    x = A_x
    h = x + _A_ref(_layernorm(x, axis=-1), A_wqkv, A_wo)
    h2 = h + _B_ref(_layernorm(h, axis=-1), B_w1, B_b1, B_w2, B_b2)
    return h2
```

```python
import re

RX = re.compile(r'(?<![\w.])([vas])(?:(\d+)|\[(\d+):(\d+)\])(?![\w])')
def regs_of(tok):
    tok = tok.strip()
    out = []
    m = RX.fullmatch(tok.lstrip('-').replace('|', '').replace('abs(', '').replace(')', ''))
    if m:
        k = m.group(1)
        if m.group(2) is not None: out = [(k, int(m.group(2)))]
        else: out = [(k, i) for i in range(int(m.group(3)), int(m.group(4)) + 1)]
    elif tok in ('vcc','vcc_lo','vcc_hi'): out = [('s', 'vcc')]
    elif tok in ('exec','exec_lo','exec_hi'): out = [('s', 'exec')]
    elif tok == 'm0': out = [('s', 'm0')]
    return out

TRANS = ('v_exp_f32', 'v_log_f32', 'v_rcp_f32', 'v_rsq_f32', 'v_sqrt_f32', 'v_sin_f32', 'v_cos_f32')

class Ins:
    def __init__(self, text, kind=None):
        self.text = text
        self.kind = kind
        self.rd = set(); self.wr = set()
        self.mn = ''
        self.srcC = set(); self.srcAB = set(); self.passes = 0
        self.dpp = False; self.lds_dma = False; self.tok = None
        if kind is None: self.parse()
    def parse(self):
        t = self.text.split(';')[0].strip()
        parts = t.split(None, 1)
        mn = self.mn = parts[0]
        rest = parts[1] if len(parts) > 1 else ''
        ops = [o.strip() for o in rest.split(',')] if rest else []
        mods = ''
        if ops:
            sp = ops[-1].split(None, 1)
            ops[-1] = sp[0]
            mods = sp[1] if len(sp) > 1 else ''
        self.ops = ops; self.mods = mods
        R = lambda i: set(regs_of(ops[i])) if i < len(ops) else set()
        allsrc = lambda a: set().union(*[R(i) for i in range(a, len(ops))]) if len(ops) > a else set()
        if mn.startswith('v_mfma'):
            self.kind = 'mfma'; self.wr = R(0); self.srcAB = R(1) | R(2); self.srcC = R(3)
            self.rd = self.srcAB | self.srcC
            self.passes = 8 if '32x32' in mn else 4
        elif mn.startswith('v_'):
            self.kind = 'valu'
            if 'quad_perm' in mods or 'row_' in mods: self.dpp = True
            if mn.startswith('v_cmp'):
                self.wr = R(0); self.rd = allsrc(1)
            elif mn.startswith('v_permlane') and 'swap' in mn:
                self.wr = R(0) | R(1); self.rd = R(0) | R(1)
            elif mn in ('v_add_co_u32', 'v_sub_co_u32', 'v_addc_co_u32', 'v_subb_co_u32'):
                self.wr = R(0) | R(1); self.rd = allsrc(2)
            elif mn == 'v_nop': pass
            else:
                self.wr = R(0); self.rd = allsrc(1)
                if mn.startswith('v_fmac') or mn.startswith('v_dot2c') or mn.startswith('v_writelane') or self.dpp or mn.startswith('v_mac'):
                    self.rd |= R(0)
                if mn.startswith('v_cndmask') and len(ops) == 3: self.rd |= {('s', 'vcc')}
        elif mn.startswith('buffer_') or mn.startswith('global_'):
            self.kind = 'vmem'
            islds = ' lds' in (' ' + mods) or 'load_lds' in mn
            if mn.startswith('buffer_inv') or mn.startswith('buffer_wbl2'):
                pass
            elif islds:
                self.lds_dma = True; self.rd = allsrc(0) | {('s', 'm0')}
            elif '_load' in mn:
                self.wr = R(0); self.rd = allsrc(1)
                if 'd16' in mn: self.rd |= R(0)
            elif '_store' in mn:
                self.rd = allsrc(0)
                self.stdata = R(0) if mn.startswith('buffer_') else R(1)
                if 'x3' in mn or 'x4' in mn: self.wide_store = True
            elif '_atomic' in mn:
                self.rd = allsrc(0)
                if 'sc0' in mods:
                    self.wr = R(0)
                    if mn.startswith('global_'): self.rd = allsrc(1)
            else: raise ValueError(t)
        elif mn.startswith('ds_'):
            self.kind = 'ds'
            if mn.startswith('ds_read') or 'permute' in mn or mn.startswith('ds_swizzle'):
                self.wr = R(0); self.rd = allsrc(1)
            else:
                self.rd = allsrc(0)
        elif mn.startswith('s_load') or mn.startswith('s_memtime') or mn.startswith('s_memrealtime') or mn.startswith('s_buffer_load'):
            self.kind = 'smem'; self.wr = R(0); self.rd = allsrc(1)
        elif mn == 's_waitcnt': self.kind = 'wait'
        elif mn == 's_nop': self.kind = 'nop'
        elif mn in ('s_barrier', 's_endpgm', 's_setprio', 's_sleep'): self.kind = 'misc'
        elif mn.startswith('s_cbranch') or mn == 's_branch': self.kind = 'branch'
        elif mn.startswith('s_'):
            self.kind = 'salu'
            if mn.startswith(('s_cmp', 's_bitcmp')): self.rd = allsrc(0)
            else:
                self.wr = R(0); self.rd = allsrc(1)
                if 'saveexec' in mn: self.wr |= {('s', 'exec')}
                if mn.startswith('s_addk') or mn.startswith('s_mulk'): self.rd |= R(0)
        else:
            raise ValueError("unknown instruction: " + t)
    def states(self):
        if self.kind == 'nop': return int(self.ops[0], 0) + 1
        if self.kind in ('label', 'comment', 'pseudo'): return 0
        return 1

isv = lambda s: {r for r in s if r[0] in 'va'}
iss = lambda s: {r for r in s if r[0] == 's'}

def need(p, c):
    n = 0
    if p.kind == 'valu':
        pv = isv(p.wr); ps = iss(p.wr)
        if c.kind == 'mfma' and pv & c.rd: n = max(n, 2)
        if c.kind == 'valu':
            if c.mn.startswith('v_permlane') and pv & c.rd: n = max(n, 2)
            if c.dpp and pv & c.rd: n = max(n, 2)
            if c.mn.startswith(('v_readlane', 'v_readfirstlane')) and pv & c.rd: n = max(n, 1)
            if p.mn.startswith(TRANS) and pv & c.rd: n = max(n, 1)
            if ps & c.rd: n = max(n, 4 if c.mn.startswith(('v_readlane', 'v_writelane')) else 2)
            if ('op_sel' in p.mods or 'sdwa' in p.mn or 'dst_sel' in p.mods) and not p.mn.startswith('v_pk_') and pv & (c.rd | c.wr): n = max(n, 1)
        if p.mn.startswith('v_dot'):
            if pv & (c.rd | c.wr):
                same_c = c.mn == p.mn and not (pv & set().union(*[set(regs_of(o)) for o in c.ops[1:3]]))
                if not same_c: n = max(n, 3)
        if c.kind == 'vmem' and ps & c.rd: n = max(n, 5)
        if c.kind in ('salu', 'branch', 'smem') and ps & c.rd: n = max(n, 2)
        if ('s', 'exec') in ps: n = max(n, 5)
    if p.kind == 'mfma':
        d = p.wr
        if c.kind == 'mfma':
            if d & c.srcAB: n = max(n, 12 if p.passes == 8 else 8)
            if d & c.srcC and not (c.srcC == d and c.passes == p.passes): n = max(n, 10 if p.passes == 8 else 6)
            if d & c.wr and not (c.srcC == d and c.passes == p.passes): n = max(n, 10 if p.passes == 8 else 6)
        elif c.kind in ('valu', 'vmem', 'ds'):
            if d & (c.rd | c.wr): n = max(n, 12 if p.passes == 8 else 8)
            if c.kind == 'valu' and p.srcC & c.wr: n = max(n, 7 if p.passes == 8 else 3)
    if p.kind == 'vmem' and getattr(p, 'wide_store', False):
        if p.stdata & c.wr: n = max(n, 2)
    if p.kind == 'salu' and ('s', 'm0') in p.wr and (c.lds_dma or c.mn.startswith('ds_')): n = max(n, 1)
    return n

class Asm:
    def __init__(self):
        self.L = []
    def __call__(self, text):
        for line in text.split('\n'):
            line = line.strip()
            if not line: continue
            if line.startswith(';'): self.L.append(Ins(line, 'comment'))
            elif line.endswith(':'): self.L.append(Ins(line, 'label'))
            elif line.startswith('.'): self.L.append(Ins(line, 'comment'))
            else: self.L.append(Ins(line))
        return self.L[-1]
    def hidden(self, text):
        n = len(self.L); self(text)
        for i in self.L[n:]: i.hid = True
    def wait(self, tok):
        i = Ins('', 'pseudo'); i.tok = tok; self.L.append(i)
    def flush_state(self, vm=None):
        i = Ins('', 'pseudo'); i.tok = 'join'; self.L.append(i)

    def finish(self):
        out = []
        vm = []; lg = []
        def emit_wait(nv, nl):
            s = []
            if nv is not None:
                assert nv <= 63
                s.append(f'vmcnt({nv})'); del vm[:max(0, len(vm) - nv)]
            if nl is not None:
                nl = min(nl, 15)
                s.append(f'lgkmcnt({nl})'); del lg[:max(0, len(lg) - nl)]
            out.append(Ins('s_waitcnt ' + ' '.join(s)))
        for ins in self.L:
            if getattr(ins, 'hid', False):
                out.append(ins); continue
            if ins.kind == 'pseudo':
                if ins.tok == 'join': continue
                t = ins.tok
                if t in vm: emit_wait(len(vm) - 1 - vm.index(t), None)
                elif t in lg:
                    n = len(lg) - 1 - lg.index(t)
                    if any(x.kind == 'smem' for x in lg): n = 0
                    emit_wait(None, n)
                continue
            if ins.kind == 'wait':
                m = re.search(r'vmcnt\((\d+)\)', ins.text)
                if m: del vm[:max(0, len(vm) - int(m.group(1)))]
                m = re.search(r'lgkmcnt\((\d+)\)', ins.text)
                if m:
                    n = int(m.group(1))
                    if n == 0 or not any(x.kind == 'smem' for x in lg): del lg[:max(0, len(lg) - n)]
                out.append(ins); continue
            touch = ins.rd | ins.wr
            nv = nl = None
            for k, x in enumerate(vm):
                if x.wr & touch: nv = len(vm) - 1 - k
            for k, x in enumerate(lg):
                if x.wr & touch:
                    nl = len(lg) - 1 - k
            if nl is not None and any(x.kind == 'smem' for x in lg): nl = 0
            if ins.kind == 'vmem' and len(vm) >= 63 and (nv is None or nv > 62): nv = 62
            if nv is not None or nl is not None: emit_wait(nv, nl)
            out.append(ins)
            if ins.kind == 'vmem': vm.append(ins)
            if ins.kind in ('ds', 'smem'): lg.append(ins)
        res = []
        for ins in out:
            if ins.kind in ('label', 'comment'):
                res.append(ins); continue
            dist = 0; pad = 0
            for p in reversed(res):
                if dist >= 20: break
                if p.kind in ('label', 'comment'): continue
                n = need(p, ins)
                if n > dist: pad = max(pad, n - dist)
                if not getattr(p, 'hid', False): dist += p.states()
            while pad > 0:
                k = min(pad, 16); nn = Ins(f's_nop {k-1}'); nn.hid = getattr(ins, 'hid', False); res.append(nn); pad -= k
            res.append(ins)
        self.out = res
        return '\n'.join(('' if i.kind == 'label' else '    ') + i.text for i in res) + '\n'

class Regs:
    def __init__(self, kind, lo, hi):
        self.kind = kind; self.lo = lo; self.hi = hi; self.cur = lo; self.peak = lo
    def alloc(self, n=1, align=None):
        a = align or (2 if n > 1 else 1)
        if n >= 4 and self.kind in 'sa': a = max(a, 4)
        self.cur = (self.cur + a - 1) // a * a
        r = R(self.kind, self.cur, n); self.cur += n
        assert self.cur <= self.hi, f"out of {self.kind} regs"
        self.peak = max(self.peak, self.cur)
        return r
    def mark(self): return self.cur
    def release(self, m): self.cur = m

class R:
    def __init__(self, k, b, n): self.k = k; self.b = b; self.n = n
    def __str__(self): return f'{self.k}{self.b}' if self.n == 1 else f'{self.k}[{self.b}:{self.b+self.n-1}]'
    def __getitem__(self, i):
        if isinstance(i, slice):
            a = i.start or 0; b = self.n if i.stop is None else i.stop
            assert 0 <= a < b <= self.n, (a, b, self.n)
            return R(self.k, self.b + a, b - a)
        assert 0 <= i < self.n
        return R(self.k, self.b + i, 1)
    def __format__(self, spec): return str(self)

def descriptor(name, vgpr, accum, sgpr=102):
    return f""".amdhsa_kernel {name}
  .amdhsa_next_free_vgpr {vgpr}
  .amdhsa_next_free_sgpr {sgpr}
  .amdhsa_accum_offset {accum}
  .amdhsa_group_segment_fixed_size 0
  .amdhsa_kernarg_size 88
  .amdhsa_user_sgpr_count 2
  .amdhsa_user_sgpr_kernarg_segment_ptr 1
  .amdhsa_system_sgpr_workgroup_id_x 1
.end_amdhsa_kernel
"""
```

```python
from asmlib import *
import struct, sys
def f32(x): return '0x%08x' % struct.unpack('<I', struct.pack('<f', x))[0]
NAME = 'sequential_preLN__linear_attn_block__mixer_channel_mlp__prompt'
WS_PQ = 0
WS_WO = WS_PQ + (2 << 20)
WS_W1 = WS_WO + (512 << 10)
WS_W2 = WS_W1 + 88 * 16384
WS_CS = WS_W2 + 8 * 88 * 2048
WS_KV = WS_CS + 32768
WS_H  = WS_KV + 65536
WS_ST = WS_H + (2 << 20)
WS_HH = WS_ST + 32 * 8192
WS_END = WS_HH + 32 * 2 * 86 * 1024
OOB = 0x7ff00000
LOG2E = 1.4426950408889634; LN2 = 0.6931471805599453
KA = dict(x=0, wqkv=8, wo=16, w1=32, b1=40, w2=48, b2=56, out=64, dbg=72, ws=80)
SZ = dict(x=2048*512*2, wqkv=512*1536*2, wo=512*512*2, w1=512*1376*2, b1=1376*2, w2=1376*512*2, b2=512*2,
          out=2048*512*2, dbg=256, ws=WS_END)

def prologue(a, S, names):
    a("s_cmp_ge_u32 s2, 256\ns_cbranch_scc1 L_end_%s" % a.tag)
    srd = {}
    for n in names:
        srd[n] = S.alloc(4)
        a(f"s_load_dwordx2 {srd[n][0:2]}, s[0:1], {KA[n]}")
    for n in names:
        a(f"s_mov_b32 {srd[n][2]}, {SZ[n]}\ns_mov_b32 {srd[n][3]}, 0x00020000")
    return srd

DPP_X1 = 'quad_perm:[1,0,3,2] row_mask:0xf bank_mask:0xf'
DPP_X2 = 'quad_perm:[2,3,0,1] row_mask:0xf bank_mask:0xf'
DPP_HM = 'row_half_mirror row_mask:0xf bank_mask:0xf'

def k1():
    a = Asm(); a.tag = 'k1'
    S = Regs('s', 4, 100); V = Regs('v', 1, 256); A = Regs('a', 0, 256)
    srd = prologue(a, S, ['x', 'wqkv', 'ws', 'dbg', 'wo', 'w1', 'w2'])
    sw, sj, srb, st0, st1, ssoff = [S.alloc() for _ in range(6)]
    lane, t0, t1, t2, t3 = [V.alloc() for _ in range(5)]
    a(f"""v_and_b32 {lane}, 63, v0
v_lshrrev_b32 {t0}, 6, v0
v_readfirstlane_b32 {sw}, {t0}
s_lshr_b32 {st0}, s2, 3
s_and_b32 {sj}, s2, 1
s_lshl_b32 {sj}, {sj}, 2
s_and_b32 {st1}, {st0}, 3
s_add_u32 {sj}, {sj}, {st1}
s_bfe_u32 {srb}, s2, 0x20001
s_lshl_b32 {srb}, {srb}, 3
s_lshr_b32 {st1}, {st0}, 2
s_add_u32 {srb}, {srb}, {st1}""")
    shead = S.alloc()
    a(f"s_lshl_b32 {shead}, {sj}, 2\ns_add_u32 {shead}, {shead}, {sw}")
    vx = V.alloc()
    a(f"""v_lshrrev_b32 {t0}, 3, {lane}
v_and_b32 {t1}, 7, {lane}
v_lshlrev_b32 {vx}, 10, {t0}
v_lshl_add_u32 {vx}, {t1}, 4, {vx}""")
    sxb = S.alloc()
    a(f"s_lshl_b32 {sxb}, {srb}, 16\ns_lshl_b32 {st0}, {sw}, 14\ns_add_u32 {sxb}, {sxb}, {st0}")
    vw = V.alloc()
    a(f"""v_bfe_u32 {t2}, {lane}, 4, 1
s_and_b32 {st0}, {sw}, 1
s_lshl_b32 {st0}, {st0}, 1
v_or_b32 {t2}, {st0}, {t2}
v_lshrrev_b32 {t3}, 1, {t1}
v_xor_b32 {t2}, {t2}, {t3}
v_lshlrev_b32 {t2}, 5, {t2}
v_and_b32 {t3}, 1, {lane}
v_lshl_add_u32 {t2}, {t3}, 4, {t2}
v_mul_u32_u24 {vw}, 3072, {t0}
v_add_u32 {vw}, {vw}, {t2}""")
    swb = S.alloc(); sldsw = S.alloc()
    a(f"""s_mul_i32 {swb}, {sw}, {8*3072}
s_lshl_b32 {st0}, {sj}, 7
s_add_u32 {swb}, {swb}, {st0}
s_lshl_b32 {sldsw}, {sw}, 10""")
    vl16 = V.alloc()
    a(f"v_lshlrev_b32 {vl16}, 4, {lane}")
    skvb = S.alloc()
    a(f"s_lshl_b32 {skvb}, {shead}, 11\ns_add_u32 {skvb}, {skvb}, {WS_KV}")
    xr = V.alloc(64, 4)
    a("s_waitcnt lgkmcnt(0)")
    szero = S.alloc()
    a(f"s_cmp_eq_u32 {srb}, 0\ns_cselect_b32 {szero}, {skvb}, {OOB}")
    vz = V.alloc(4, 4)
    for i in range(4): a(f"v_mov_b32 {vz[i]}, 0")
    a(f"buffer_store_dwordx4 {vz}, {vl16}, {srd['ws']}, {szero} offen sc1")
    a(f"buffer_store_dwordx4 {vz}, {vl16}, {srd['ws']}, {szero} offen offset:1024 sc1")
    xl = []
    for i in range(2):
        if i == 1: a(f"s_add_u32 {sxb}, {sxb}, 8192")
        for n in range(8):
            xl.append(a(f"buffer_load_dwordx4 {xr[(i*8+n)*4:(i*8+n)*4+4]}, {vx}, {srd['x']}, {sxb} offen offset:{n*128}"))
    WB = 65536
    def dma_w(ks, part, ldsoff):
        a(f"s_add_u32 m0, {sldsw}, {ldsoff}\ns_add_u32 {ssoff}, {swb}, {ks*32*3072 + part*1024}")
        return a(f"buffer_load_dwordx4 {vw}, {srd['wqkv']}, {ssoff} offen lds")
    def kv_lds(ks, p):
        c = ks // 2
        return WB + (c % 6) * 16384 + (ks & 1) * 8192 + p * 4096
    def q_lds(ks):
        return WB + (2 + ks // 4) * 16384 + (ks & 3) * 4096
    chunk_tok = {}
    def dma_chunk(c):
        for ks in (2*c, 2*c+1):
            for p in (0, 1): chunk_tok[c] = dma_w(ks, 1 + p, kv_lds(ks, p))
    for c in range(6): dma_chunk(c)
    a.wait(xl[0])
    vone = V.alloc(); vfl = V.alloc()
    a(f"""s_lshl_b32 {st0}, {shead}, 2
s_cmp_eq_u32 {srb}, 0
s_cselect_b32 {st1}, {st0}, {OOB}
v_mov_b32 {vone}, 1
v_mov_b32 {vfl}, 0
buffer_store_dword {vone}, {vfl}, {srd['dbg']}, {st1} offen sc1""")
    sflag = S.alloc(); a(f"s_mov_b32 {sflag}, {st0}")
    sones = S.alloc(); slo = S.alloc(); shi = S.alloc()
    a(f"s_mov_b32 {sones}, 0x3f803f80\ns_mov_b32 {slo}, 0x00003f80\ns_mov_b32 {shi}, 0x3f800000")
    sm = V.alloc(4); sq = V.alloc(4)
    for i in range(4): a(f"v_mov_b32 {sm[i]}, 0\nv_mov_b32 {sq[i]}, 0")
    for i in range(2):
        for r in range(32):
            a(f"v_dot2_f32_bf16 {sm[2*i + (r&1)]}, {xr[i*32+r]}, {sones}, {sm[2*i + (r&1)]}")
    def red8(v, other):
        a(f"v_add_f32 {v}, {v}, {other}")
        for d in (DPP_X1, DPP_X2, DPP_HM): a(f"v_add_f32 {v}, {v}, {v} {d}")
    for i in range(2): red8(sm[2*i], sm[2*i+1])
    for i in range(2): a(f"v_mul_f32 {sm[2*i]}, {f32(-1/512)}, {sm[2*i]}")
    vxw = V.alloc(2)
    a(f"""v_bfe_u32 {t2}, {lane}, 2, 1
v_and_b32 {t3}, 3, {lane}
v_mul_u32_u24 {t1}, 12, {t2}
v_add_u32 {t1}, {t1}, {t3}
v_lshlrev_b32 {t2}, 12, {t2}
v_lshl_add_u32 {t2}, {t3}, 8, {t2}
v_add_u32 {t2}, {sldsw}, {t2}
v_xor_b32 {t3}, {t0}, {t1}
v_lshl_add_u32 {vxw[0]}, {t3}, 4, {t2}
v_xor_b32 {t3}, 8, {t3}
v_lshl_add_u32 {vxw[1]}, {t3}, 4, {t2}""")
    tmp = V.alloc(16, 4)
    for i in range(2):
        for n in range(8):
            b = (i*8+n)*4; tb = (n & 1) * 8
            for r in range(4):
                a(f"v_dot2_f32_bf16 {tmp[tb+2*r]}, {xr[b+r]}, {slo}, {sm[2*i]}")
                a(f"v_dot2_f32_bf16 {tmp[tb+2*r+1]}, {xr[b+r]}, {shi}, {sm[2*i]}")
            for r in range(4):
                a(f"v_cvt_pk_bf16_f32 {xr[b+r]}, {tmp[tb+2*r]}, {tmp[tb+2*r+1]}")
            a(f"ds_write_b128 {vxw[i]}, {xr[b:b+4]} offset:{n*8192}")
    vxa = V.alloc(2); vwa = V.alloc(2)
    a(f"""v_lshrrev_b32 {t0}, 4, {lane}
v_and_b32 {t1}, 15, {lane}
v_xor_b32 {t2}, {t0}, {t1}
v_lshlrev_b32 {t2}, 4, {t2}
v_lshl_add_u32 {vxa[0]}, {t0}, 8, {t2}
v_xor_b32 {vxa[1]}, {12*16}, {vxa[0]}
v_bfe_u32 {t2}, {lane}, 3, 1
v_and_b32 {t3}, 1, {t0}
v_lshl_or_b32 {t2}, {t3}, 1, {t2}
v_xor_b32 {t2}, {sw}, {t2}
v_lshlrev_b32 {t2}, 5, {t2}
v_and_b32 {t3}, 3, {lane}
v_lshl_add_u32 {t2}, {t3}, 3, {t2}
v_lshrrev_b32 {t3}, 2, {t1}
v_lshl_add_u32 {t3}, {t0}, 3, {t3}
v_lshl_add_u32 {t2}, {t3}, 7, {t2}
v_add_u32 {vwa[0]}, {WB}, {t2}
v_add_u32 {vwa[1]}, {WB + 49152}, {t2}""")
    xf = A.alloc(256)
    def xfrag(ks, tt): return xf[(ks*4+tt)*4:(ks*4+tt)*4+4]
    wf = V.alloc(32, 4)
    def wfrag(ks, p): b = ((ks // 2) & 1) * 16 + (ks & 1) * 8 + p * 4; return wf[b:b+4]
    def tr(dst, off):
        off -= WB
        base = vwa[0] if off < 49152 else vwa[1]
        if off >= 49152: off -= 49152
        return [f"ds_read_b64_tr_b16 {dst[0:2]}, {base} offset:{off}", f"ds_read_b64_tr_b16 {dst[2:4]}, {base} offset:{off+512}"]
    def reads(c):
        o = []
        for ks in (2*c, 2*c+1):
            for p in (0, 1): o += tr(wfrag(ks, p), kv_lds(ks, p))
            for tt in range(4): o.append(f"ds_read_b128 {xfrag(ks, tt)}, {vxa[ks&1]} offset:{ks*4096 + tt*1024}")
        return o
    a.wait(chunk_tok[0])
    a("s_waitcnt lgkmcnt(0)\ns_barrier")
    for r in reads(0): a(r)
    for i in range(2):
        for r in range(32):
            a(f"v_dot2_f32_bf16 {sq[2*i + (r&1)]}, {xr[i*32+r]}, {xr[i*32+r]}, {sq[2*i + (r&1)]}")
    for i in range(2): red8(sq[2*i], sq[2*i+1])
    seps = S.alloc(); a(f"s_mov_b32 {seps}, {f32(1e-5)}")
    for i in range(2):
        a(f"v_mov_b32 {sq[2*i+1]}, {f32(1/512)}\nv_fma_f32 {sq[2*i]}, {sq[2*i]}, {sq[2*i+1]}, {seps}\nv_rsq_f32 {sq[2*i]}, {sq[2*i]}")
        a(f"v_mul_f32 {sq[2*i+1]}, {f32(LOG2E)}, {sq[2*i]}")
    RS = 16384
    vrs = V.alloc()
    a(f"v_lshrrev_b32 {vrs}, 3, {lane}\nv_lshlrev_b32 {vrs}, 2, {vrs}\ns_lshl_b32 {st0}, {sw}, 6\nv_add_u32 {vrs}, {st0}, {vrs}")
    acck = xr[0:16]; accv = xr[16:32]; accq = xr[32:48]
    su = 's2'
    sptype = S.alloc(); spsrc = S.alloc(); spitch = S.alloc(); sdst = S.alloc(); psrd = S.alloc(4)
    a(f"""s_mov_b32 {sptype}, 3
s_mov_b32 {psrd[0]}, {srd['w1'][0]}
s_mov_b32 {psrd[1]}, {srd['w1'][1]}
s_mov_b32 {psrd[2]}, 0
s_mov_b32 {psrd[3]}, 0x00020000
s_mov_b32 {spsrc}, 0
s_mov_b32 {spitch}, 1024
s_mov_b32 {sdst}, 0
s_cmp_ge_u32 {su}, 208
s_cbranch_scc1 L_k1_pd
s_cmp_ge_u32 {su}, 176
s_cbranch_scc1 L_k1_pwo
s_cmp_ge_u32 {su}, 88
s_cbranch_scc1 L_k1_pw2
s_mov_b32 {sptype}, 0
s_mov_b32 {psrd[2]}, {SZ['w1']}
s_mov_b32 {spitch}, 2752
s_and_b32 {st0}, {su}, 3
s_lshr_b32 {st1}, {su}, 2
s_mul_i32 {spsrc}, {st0}, {128*2752}
s_lshl_b32 {sdst}, {st1}, 7
s_add_u32 {spsrc}, {spsrc}, {sdst}
s_lshl_b32 {sdst}, {st1}, 2
s_add_u32 {sdst}, {sdst}, {sw}
s_lshl_b32 {sdst}, {sdst}, 14
s_lshl_b32 {st0}, {st0}, 12
s_add_u32 {sdst}, {sdst}, {st0}
s_add_u32 {sdst}, {sdst}, {WS_W1}
s_branch L_k1_pd
L_k1_pw2:
s_mov_b32 {sptype}, 1
s_mov_b32 {psrd[0]}, {srd['w2'][0]}
s_mov_b32 {psrd[1]}, {srd['w2'][1]}
s_mov_b32 {psrd[2]}, {SZ['w2']}
s_sub_u32 {st0}, {su}, 88
s_lshr_b32 {st1}, {st0}, 3
s_and_b32 {st0}, {st0}, 7
s_lshl_b32 {spsrc}, {st1}, 17
s_lshl_b32 {sdst}, {st0}, 7
s_add_u32 {spsrc}, {spsrc}, {sdst}
s_mul_i32 {sdst}, {st0}, {88*2048}
s_lshl_b32 {st1}, {st1}, 14
s_add_u32 {sdst}, {sdst}, {st1}
s_lshl_b32 {st1}, {sw}, 12
s_add_u32 {sdst}, {sdst}, {st1}
s_add_u32 {sdst}, {sdst}, {WS_W2}
s_branch L_k1_pd
L_k1_pwo:
s_mov_b32 {sptype}, 2
s_mov_b32 {psrd[0]}, {srd['wo'][0]}
s_mov_b32 {psrd[1]}, {srd['wo'][1]}
s_mov_b32 {psrd[2]}, {SZ['wo']}
s_sub_u32 {st0}, {su}, 176
s_lshr_b32 {st1}, {st0}, 3
s_and_b32 {st0}, {st0}, 7
s_lshl_b32 {spsrc}, {st1}, 17
s_lshl_b32 {sdst}, {st0}, 7
s_add_u32 {spsrc}, {spsrc}, {sdst}
s_lshl_b32 {sdst}, {st0}, 16
s_lshl_b32 {st1}, {st1}, 14
s_add_u32 {sdst}, {sdst}, {st1}
s_lshl_b32 {st1}, {sw}, 12
s_add_u32 {sdst}, {sdst}, {st1}
s_add_u32 {sdst}, {sdst}, {WS_WO}
L_k1_pd:""")
    vp = V.alloc(2)
    a(f"""s_mul_i32 {st0}, {sw}, {spitch}
s_lshl_b32 {st0}, {st0}, 5
s_add_u32 {spsrc}, {spsrc}, {st0}
v_lshrrev_b32 {t0}, 3, {lane}
v_mul_lo_u32 {t0}, {t0}, {spitch}
v_bfe_u32 {t1}, {lane}, 4, 1
v_lshlrev_b32 {t1}, 1, {t1}
v_bfe_u32 {t2}, {lane}, 1, 2
v_xor_b32 {t1}, {t1}, {t2}
v_lshlrev_b32 {t1}, 5, {t1}
v_and_b32 {t2}, 1, {lane}
v_lshl_add_u32 {t1}, {t2}, 4, {t1}
v_add_u32 {vp[0]}, {t0}, {t1}
v_xor_b32 {t1}, 32, {t1}
v_add_u32 {vp[1]}, {t0}, {t1}""")
    qtok = None; ptok = None
    vflag = V.alloc()
    for c in range(8):
        if c < 7: a.wait(chunk_tok[c+1])
        a("s_waitcnt lgkmcnt(0)\ns_barrier")
        side = []
        if c == 1:
            side.append(f"buffer_load_dword {vflag}, {vfl}, {srd['dbg']}, {sflag} offen sc1")
        if c == 2:
            for i in range(2):
                side.append(f"ds_write_b32 {vrs}, {sq[2*i]} offset:{RS + i*32}")
                side.append(f"ds_write_b32 {vrs}, {sq[2*i+1]} offset:{RS + 256 + i*32}")
        rd = reads(c+1) if c < 7 else []
        mf = []
        for ks in (2*c, 2*c+1):
            for tt in range(4):
                for p, acc in ((0, acck), (1, accv)):
                    d = acc[tt*4:tt*4+4]
                    mf.append(f"v_mfma_f32_16x16x32_bf16 {d}, {xfrag(ks, tt)}, {wfrag(ks, p)}, {d if ks else 0}")
        for i, m in enumerate(mf):
            a(m)
            if i < len(rd): a(rd[i])
            if i == 1:
                for s in side: a(s)
            if i in (2, 5, 8, 11):
                k = (i - 2) // 3
                if c < 2:
                    ks = 2*(c+6) + (k >> 1); chunk_tok[c+6] = dma_w(ks, 1 + (k & 1), kv_lds(ks, k & 1))
                elif c < 6:
                    ks = (c-2)*4 + k; qtok = dma_w(ks, 0, q_lds(ks))
                elif c == 6:
                    a(f"s_lshl_b32 {st0}, {sw}, 12\ns_add_u32 m0, {st0}, {k*1024}")
                    a(f"s_mul_i32 {st0}, {spitch}, {8*k}\ns_add_u32 {ssoff}, {spsrc}, {st0}")
                    ptok = a(f"buffer_load_dwordx4 {vp[k>>1]}, {psrd}, {ssoff} offen lds")
    rk = V.alloc(16, 4); rv = V.alloc(16, 4); rq = V.alloc(4)
    a(f"v_lshrrev_b32 {t0}, 4, {lane}\nv_lshlrev_b32 {t0}, 4, {t0}\nv_and_b32 {t1}, 15, {lane}\nv_lshlrev_b32 {t1}, 2, {t1}")
    for tt in range(4):
        a(f"ds_read_b128 {rk[tt*4:tt*4+4]}, {t0} offset:{RS + 256 + tt*64}")
        a(f"ds_read_b128 {rv[tt*4:tt*4+4]}, {t0} offset:{RS + tt*64}")
    for tt in range(4): a(f"ds_read_b32 {rq[tt]}, {t1} offset:{RS + 256 + tt*64}")
    sdel = S.alloc(); sln2 = S.alloc()
    a(f"s_mov_b32 {sdel}, {f32(1e-6/LN2)}\ns_mov_b32 {sln2}, {f32(LN2)}")
    def phi4(acc4, scale):
        for r in range(4): a(f"v_fma_f32 {acc4[r]}, {acc4[r]}, {scale(r)}, {sdel}")
        for r in range(4): a(f"v_exp_f32 {tmp[r]}, {acc4[r]} clamp")
        for r in range(4): a(f"v_max_f32 {acc4[r]}, {sdel}, {acc4[r]}")
        for r in range(4): a(f"v_fma_f32 {acc4[r]}, {acc4[r]}, {sln2}, {tmp[r]}")
    pkf = V.alloc(8, 4); vf = V.alloc(8, 4); onesf = V.alloc(4, 4)
    for r in range(4): a(f"v_mov_b32 {onesf[r]}, {sones}")
    for tt in range(4):
        phi4(acck[tt*4:tt*4+4], lambda r: rk[tt*4+r])
        for r in range(4): a(f"v_mul_f32 {accv[tt*4+r]}, {accv[tt*4+r]}, {rv[tt*4+r]}")
        for h in range(2):
            a(f"v_cvt_pk_bf16_f32 {pkf[tt*2+h]}, {acck[tt*4+2*h]}, {acck[tt*4+2*h+1]}")
            a(f"v_cvt_pk_bf16_f32 {vf[tt*2+h]}, {accv[tt*4+2*h]}, {accv[tt*4+2*h+1]}")
    dkv = tmp[8:12]; dz = tmp[12:16]
    for h in range(2):
        a(f"v_mfma_f32_16x16x32_bf16 {dkv}, {pkf[h*4:h*4+4]}, {vf[h*4:h*4+4]}, {dkv if h else 0}")
        a(f"v_mfma_f32_16x16x32_bf16 {dz}, {pkf[h*4:h*4+4]}, {onesf}, {dz if h else 0}")
    KS = 20480
    va = V.alloc(4)
    a(f"""s_lshl_b32 {st0}, {sw}, 11
s_add_u32 {st0}, {st0}, {KS}
v_add_u32 {va[0]}, {st0}, {vl16}
v_add_u32 {va[1]}, {st0}, {t0}
v_lshlrev_b32 {va[3]}, 2, {lane}
v_add_u32 {va[2]}, {st0}, {va[3]}
v_add_u32 {t1}, {st0}, {t1}""")
    a(f"ds_write_b128 {va[0]}, {dkv}\nds_write_b128 {va[1]}, {dz} offset:1024")
    for g in range(4): a(f"ds_read_b32 {tmp[g]}, {va[2]} offset:{g*256}")
    a(f"ds_read_b32 {tmp[4]}, {t1} offset:1024")
    a(f"""v_bfe_u32 {t2}, {lane}, 2, 1
v_lshlrev_b32 {t2}, 10, {t2}
v_bfe_u32 {t3}, {lane}, 3, 1
v_lshl_add_u32 {t2}, {t3}, 9, {t2}
v_bfe_u32 {t3}, {lane}, 4, 1
v_lshl_add_u32 {t2}, {t3}, 6, {t2}
v_and_b32 {t3}, 3, {lane}
v_lshl_add_u32 {t2}, {t3}, 2, {t2}
v_add_u32 {t2}, 256, {t2}
v_lshrrev_b32 {t3}, 5, {lane}
v_lshl_add_u32 {t2}, {t3}, 30, {t2}""")
    a(f"""v_readfirstlane_b32 {st0}, {vflag}
s_cmp_lg_u32 {st0}, 0
s_cbranch_scc1 L_k1_go""")
    a.hidden(f"""s_mov_b32 {st1}, 0
L_k1_spin:
s_add_u32 {st1}, {st1}, 1
s_cmp_ge_u32 {st1}, 0x100000
s_cbranch_scc1 L_k1_go
buffer_load_dword {vflag}, {vfl}, {srd['dbg']}, {sflag} offen sc1
s_waitcnt vmcnt(0)
v_readfirstlane_b32 {st0}, {vflag}
s_nop 3
s_cmp_eq_u32 {st0}, 0
s_cbranch_scc1 L_k1_spin
L_k1_go:""")
    a.wait(ptok)
    for gg in range(4):
        a(f"buffer_atomic_add_f32 {tmp[gg]}, {va[3]}, {srd['ws']}, {skvb} offen offset:{(gg&1)*1024 + (gg>>1)*512}")
    a(f"buffer_atomic_add_f32 {tmp[4]}, {t2}, {srd['ws']}, {skvb} offen")
    a("s_barrier")
    def qfrag(ks): b = (ks & 7) * 4; return wf[b:b+4]
    for ks in range(4):
        for r in tr(qfrag(ks), q_lds(ks)): a(r)
    for ks in range(16):
        nx = tr(qfrag(ks+4), q_lds(ks+4)) if ks + 4 < 16 else []
        for tt in range(4):
            d = accq[tt*4:tt*4+4]
            a(f"v_mfma_f32_16x16x32_bf16 {d}, {qfrag(ks)}, {xfrag(ks, tt)}, {d if ks else 0}")
            if tt < len(nx): a(nx[tt])
    pf = V.alloc(16, 4)
    a(f"s_cmp_eq_u32 {sptype}, 3\ns_cbranch_scc1 L_k1_pend")
    a(f"s_cmp_eq_u32 {sptype}, 0\ns_cbranch_scc1 L_k1_p1")
    a.hidden(f"""v_lshrrev_b32 {t0}, 5, {lane}
s_cmp_eq_u32 {sptype}, 1
s_cselect_b32 {st0}, 10, 9
s_cselect_b32 {st1}, 1, 2
s_lshl_b32 {st1}, {st1}, 9
v_lshlrev_b32 {t0}, {st0}, {t0}
v_bfe_u32 {t1}, {lane}, 2, 2
v_lshl_add_u32 {t0}, {t1}, 7, {t0}
v_bfe_u32 {t1}, {lane}, 3, 1
v_lshlrev_b32 {t1}, 1, {t1}
v_bfe_u32 {t2}, {lane}, 4, 1
v_or_b32 {t1}, {t1}, {t2}
v_lshl_add_u32 {t0}, {t1}, 5, {t0}
v_and_b32 {t1}, 3, {lane}
v_lshl_add_u32 {t0}, {t1}, 3, {t0}
s_lshl_b32 {st0}, {sw}, 12
v_add_u32 {t0}, {st0}, {t0}""")
    txt = []
    for f in range(2):
        for ct in range(2):
            d = pf[(f*2+ct)*4:(f*2+ct)*4+4]
            txt.append(f"v_xor_b32 {t1}, {ct*64 + f*32}, {t0}\nv_add_u32 {t2}, {st1}, {t1}")
            txt.append(f"ds_read_b64_tr_b16 {d[0:2]}, {t1} offset:{f*2048}\nds_read_b64_tr_b16 {d[2:4]}, {t2} offset:{f*2048}")
    txt.append("s_waitcnt lgkmcnt(0)")
    for n in range(4): txt.append(f"buffer_store_dwordx4 {pf[n*4:n*4+4]}, {vl16}, {srd['ws']}, {sdst} offen offset:{n*1024}")
    txt.append("s_branch L_k1_pend\nL_k1_p1:")
    txt.append(f"""v_bfe_u32 {t0}, {lane}, 4, 1
v_lshlrev_b32 {t1}, 11, {t0}
v_bfe_u32 {t2}, {lane}, 3, 1
v_lshl_or_b32 {t0}, {t2}, 1, {t0}
v_xor_b32 {t0}, {sw}, {t0}
v_lshl_add_u32 {t0}, {t0}, 5, {t1}
v_lshrrev_b32 {t1}, 5, {lane}
v_lshl_add_u32 {t0}, {t1}, 9, {t0}
v_bfe_u32 {t1}, {lane}, 2, 2
v_lshl_add_u32 {t0}, {t1}, 7, {t0}
v_and_b32 {t1}, 3, {lane}
v_lshl_add_u32 {t0}, {t1}, 3, {t0}""")
    for n in range(4):
        d = pf[n*4:n*4+4]
        txt.append(f"ds_read_b64_tr_b16 {d[0:2]}, {t0} offset:{n*4096}\nds_read_b64_tr_b16 {d[2:4]}, {t0} offset:{n*4096+1024}")
    txt.append("s_waitcnt lgkmcnt(0)")
    for n in range(4): txt.append(f"buffer_store_dwordx4 {pf[n*4:n*4+4]}, {vl16}, {srd['ws']}, {sdst} offen offset:{n*1024}")
    for n in range(4): txt.append(f"v_mfma_f32_16x16x32_bf16 {dz}, {pf[n*4:n*4+4]}, {onesf}, {dz if n else 0}")
    txt.append(f"""s_and_b32 {st0}, {su}, 3
s_mul_i32 {st0}, {st0}, {1408*4}
s_lshr_b32 {st1}, {su}, 2
s_lshl_b32 {st1}, {st1}, 2
s_add_u32 {st1}, {st1}, {sw}
s_lshl_b32 {st1}, {st1}, 6
s_add_u32 {st0}, {st0}, {st1}
s_add_u32 {st0}, {st0}, {WS_CS}
v_lshrrev_b32 {t0}, 4, {lane}
v_lshlrev_b32 {t0}, 4, {t0}
v_and_b32 {t1}, 15, {lane}
v_lshl_add_u32 {t0}, {t1}, 26, {t0}
buffer_store_dwordx4 {dz}, {t0}, {srd['ws']}, {st0} offen
L_k1_pend:""")
    a.hidden("\n".join(txt))
    for tt in range(4):
        phi4(accq[tt*4:tt*4+4], lambda r: rq[tt])
    for t32 in range(2):
        d = pkf[t32*4:t32*4+4]
        for s in range(2):
            for h in range(2):
                a(f"v_cvt_pk_bf16_f32 {d[2*s+h]}, {accq[(2*t32+s)*4+2*h]}, {accq[(2*t32+s)*4+2*h+1]}")
        for h in range(2): a(f"v_permlane16_swap_b32 {d[h]}, {d[2+h]}")
        a(f"s_lshl_b32 {st0}, {srb}, 16\ns_lshl_b32 {st1}, {shead}, 10\ns_add_u32 {st0}, {st0}, {st1}\ns_add_u32 {st0}, {st0}, {WS_PQ + t32*32768}")
        a(f"buffer_store_dwordx4 {d}, {vl16}, {srd['ws']}, {st0} offen")
    a("L_end_k1:\ns_endpgm")
    return a.finish(), V.peak, A.peak

def ids(a, S, V):
    sw, sj, srb, st0, st1 = [S.alloc() for _ in range(5)]
    lane, t0, t1, t2, t3, vl16 = [V.alloc() for _ in range(6)]
    a(f"""v_and_b32 {lane}, 63, v0
v_lshrrev_b32 {t0}, 6, v0
v_readfirstlane_b32 {sw}, {t0}
s_bfe_u32 {sj}, s2, 0x30003
s_and_b32 {srb}, s2, 7
s_lshl_b32 {srb}, {srb}, 2
s_lshr_b32 {st0}, s2, 6
s_add_u32 {srb}, {srb}, {st0}
v_lshlrev_b32 {vl16}, 4, {lane}""")
    return sw, sj, srb, st0, st1, lane, t0, t1, t2, t3, vl16

def reduce_scatter(a, acc, own, tmp48, sw, st0, vl16, vt, base):
    a(f"s_lshl_b32 {st0}, {sw}, 12\nv_add_u32 {vt}, {st0}, {vl16}")
    for t in range(4):
        for q in range(4):
            a(f"ds_write_b128 {vt}, {acc[t*16+q*4:t*16+q*4+4]} offset:{base + t*16384 + q*1024}")
    a(f"s_lshl_b32 {st0}, {sw}, 14\nv_add_u32 {vt}, {st0}, {vl16}")
    a("s_waitcnt lgkmcnt(0)\ns_barrier")
    for s in range(4):
        for q in range(4):
            d = own[q*4:q*4+4] if s == 0 else tmp48[(s-1)*16+q*4:(s-1)*16+q*4+4]
            a(f"ds_read_b128 {d}, {vt} offset:{base + s*4096 + q*1024}")
    for s in range(3):
        for r in range(0, 16, 2):
            a(f"v_pk_add_f32 {own[r:r+2]}, {own[r:r+2]}, {tmp48[s*16+r:s*16+r+2]}")

def hf_addr(a, vh, shb, sw, sj, srb, st0, st1, lane, t0, t1):
    a(f"""v_bfe_u32 {t0}, {lane}, 4, 1
v_lshlrev_b32 {vh}, 14, {t0}
v_lshrrev_b32 {t0}, 5, {lane}
v_lshl_add_u32 {vh}, {t0}, 9, {vh}
v_and_b32 {t0}, 15, {lane}
v_lshl_add_u32 {vh}, {t0}, 4, {vh}
s_lshl_b32 {shb}, {srb}, 16
s_and_b32 {st0}, {sw}, 1
s_lshl_b32 {st0}, {st0}, 15
s_add_u32 {shb}, {shb}, {st0}
s_lshl_b32 {st0}, {sj}, 1
s_lshr_b32 {st1}, {sw}, 1
s_add_u32 {st0}, {st0}, {st1}
s_lshl_b32 {st0}, {st0}, 10
s_add_u32 {shb}, {shb}, {st0}
s_add_u32 {shb}, {shb}, {WS_H}""")

def k2():
    a = Asm(); a.tag = 'k2'
    S = Regs('s', 4, 100); V = Regs('v', 1, 256); A = Regs('a', 0, 256)
    srd = prologue(a, S, ['ws', 'x'])
    sw, sj, srb, st0, st1, lane, t0, t1, t2, t3, vl16 = ids(a, S, V)
    skv, spq, swo, sx = [S.alloc() for _ in range(4)]
    a(f"""s_lshl_b32 {skv}, {sw}, 14
s_add_u32 {skv}, {skv}, {WS_KV}
s_lshl_b32 {spq}, {srb}, 16
s_lshl_b32 {st0}, {sw}, 13
s_add_u32 {spq}, {spq}, {st0}
s_add_u32 {spq}, {spq}, {WS_PQ}
s_lshl_b32 {swo}, {sj}, 16
s_lshl_b32 {st0}, {sw}, 14
s_add_u32 {swo}, {swo}, {st0}
s_add_u32 {swo}, {swo}, {WS_WO}""")
    kvr = V.alloc(64, 4); pq = A.alloc(64); wo = A.alloc(64)
    a("s_waitcnt lgkmcnt(0)")
    def ld(dst, sbase, off, extra=''):
        if off >= 4096:
            a(f"s_add_u32 {st1}, {sbase}, {off & ~4095}"); sbase = st1; off &= 4095
        return a(f"buffer_load_dwordx4 {dst}, {vl16}, {srd['ws']}, {sbase} offen offset:{off} {extra}")
    for hh in range(8):
        for q in range(2): ld(kvr[hh*8+q*4:hh*8+q*4+4], skv, hh*2048 + q*1024)
        for tt in range(2): ld(pq[(hh*2+tt)*4:(hh*2+tt)*4+4], spq, tt*32768 + hh*1024)
        for ct in range(2): ld(wo[(hh*2+ct)*4:(hh*2+ct)*4+4], swo, hh*2048 + ct*1024)
    xr = V.alloc(8, 4); vx = V.alloc()
    a(f"""v_and_b32 {t0}, 31, {lane}
v_lshlrev_b32 {vx}, 10, {t0}
v_lshrrev_b32 {t0}, 5, {lane}
v_lshl_add_u32 {vx}, {t0}, 3, {vx}
s_lshl_b32 {sx}, {srb}, 16
s_and_b32 {st0}, {sw}, 1
s_lshl_b32 {st0}, {st0}, 15
s_add_u32 {sx}, {sx}, {st0}
s_lshl_b32 {st0}, {sj}, 7
s_add_u32 {sx}, {sx}, {st0}
s_lshr_b32 {st0}, {sw}, 1
s_lshl_b32 {st0}, {st0}, 6
s_add_u32 {sx}, {sx}, {st0}""")
    for m in range(4): a(f"buffer_load_dwordx2 {xr[2*m:2*m+2]}, {vx}, {srd['x']}, {sx} offen offset:{m*16}")
    acc = V.alloc(64, 4); D = V.alloc(32, 4); of = V.alloc(8, 4); kz = V.alloc(8, 4)
    se6 = S.alloc(); a(f"s_mov_b32 {se6}, {f32(1e-6)}")
    units = [(hh, tt) for hh in range(8) for tt in range(2)]
    def cvt_kv(hh):
        b = (hh & 1) * 4
        for r in range(4): a(f"v_cvt_pk_bf16_f32 {kz[b+r]}, {kvr[hh*8+2*r]}, {kvr[hh*8+2*r+1]}")
    def omfma(n):
        hh, tt = units[n]
        if tt == 0: cvt_kv(hh)
        b = (hh & 1) * 4
        a(f"v_mfma_f32_32x32x16_bf16 {D[(n&1)*16:(n&1)*16+16]}, {kz[b:b+4]}, {pq[n*4:n*4+4]}, 0")
    def pmfma(n, ct):
        hh, tt = units[n]; d = acc[(2*ct+tt)*16:(2*ct+tt)*16+16]
        a(f"v_mfma_f32_32x32x16_bf16 {d}, {wo[(hh*2+ct)*4:(hh*2+ct)*4+4]}, {of[(n&1)*4:(n&1)*4+4]}, {d if hh else 0}")
    omfma(0)
    for n in range(16):
        d = D[(n&1)*16:(n&1)*16+16]; o = of[(n&1)*4:(n&1)*4+4]
        if n + 1 < 16: omfma(n+1)
        if n > 0: pmfma(n-1, 0)
        a(f"v_add_f32 {d[8]}, {se6}, {d[8]}\nv_rcp_f32 {d[8]}, {d[8]}")
        if n > 0: pmfma(n-1, 1)
        for r in range(8): a(f"v_mul_f32 {d[r]}, {d[r]}, {d[8]}")
        for r in range(4): a(f"v_cvt_pk_bf16_f32 {o[r]}, {d[2*r]}, {d[2*r+1]}")
    pmfma(15, 0); pmfma(15, 1)
    own = D[0:16]
    reduce_scatter(a, acc, own, kvr[0:48], sw, st0, vl16, t2, 0)
    hb = of
    for m in range(4):
        for h in range(2):
            a(f"v_lshlrev_b32 {t0}, 16, {xr[2*m+h]}\nv_and_b32 {t1}, 0xffff0000, {xr[2*m+h]}")
            a(f"v_add_f32 {own[4*m+2*h]}, {own[4*m+2*h]}, {t0}\nv_add_f32 {own[4*m+2*h+1]}, {own[4*m+2*h+1]}, {t1}")
            a(f"v_cvt_pk_bf16_f32 {hb[2*m+h]}, {own[4*m+2*h]}, {own[4*m+2*h+1]}")
    vh = V.alloc(); shb = S.alloc()
    hf_addr(a, vh, shb, sw, sj, srb, st0, st1, lane, t0, t1)
    for m in range(2): a(f"buffer_store_dwordx4 {hb[4*m:4*m+4]}, {vh}, {srd['ws']}, {shb} offen offset:{m*256}")
    st = V.alloc(4); sones = S.alloc()
    a(f"s_mov_b32 {sones}, 0x3f803f80\nv_mov_b32 {st[0]}, 0\nv_mov_b32 {st[1]}, 0")
    for r in range(8):
        a(f"v_dot2_f32_bf16 {st[0]}, {hb[r]}, {sones}, {st[0]}\nv_dot2_f32_bf16 {st[1]}, {hb[r]}, {hb[r]}, {st[1]}")
    a(f"v_mov_b32 {st[2]}, {st[0]}\nv_mov_b32 {st[3]}, {st[1]}")
    a(f"v_permlane32_swap_b32 {st[2]}, {st[0]}\nv_permlane32_swap_b32 {st[3]}, {st[1]}")
    a(f"v_add_f32 {st[0]}, {st[0]}, {st[2]}\nv_add_f32 {st[1]}, {st[1]}, {st[3]}")
    a(f"""v_and_b32 {t0}, 31, {lane}
v_lshlrev_b32 {t0}, 5, {t0}
v_lshrrev_b32 {t1}, 5, {lane}
v_lshl_add_u32 {t0}, {t1}, 30, {t0}
s_lshl_b32 {st0}, {sj}, 1
s_lshr_b32 {st1}, {sw}, 1
s_add_u32 {st0}, {st0}, {st1}
s_and_b32 {st1}, {st0}, 3
s_lshl_b32 {st1}, {st1}, 3
s_lshr_b32 {st0}, {st0}, 2
s_lshl_b32 {st0}, {st0}, 11
s_add_u32 {st0}, {st0}, {st1}
s_and_b32 {st1}, {sw}, 1
s_lshl_b32 {st1}, {st1}, 10
s_add_u32 {st0}, {st0}, {st1}
s_lshl_b32 {st1}, {srb}, 13
s_add_u32 {st0}, {st0}, {st1}
s_add_u32 {st0}, {st0}, {WS_ST}
buffer_store_dwordx2 {st[0:2]}, {t0}, {srd['ws']}, {st0} offen""")
    a("L_end_k2:\ns_endpgm")
    return a.finish(), V.peak, A.peak

GA = -2 * 0.7978845608028654 * 0.044715 * LOG2E
GB = -2 * 0.7978845608028654 * LOG2E

def k3():
    a = Asm(); a.tag = 'k3'
    S = Regs('s', 4, 100); V = Regs('v', 1, 256); A = Regs('a', 0, 256)
    srd = prologue(a, S, ['ws', 'b1'])
    sw, sj, srb, st0, st1, lane, t0, t1, t2, t3, vl16 = ids(a, S, V)
    sc = [S.alloc() for _ in range(3)]; sval = S.alloc()
    a(f"""s_mul_i32 {sc[0]}, {sj}, 11
s_cmp_eq_u32 {sj}, 7
s_cselect_b32 {sc[0]}, 76, {sc[0]}
s_add_u32 {sc[0]}, {sc[0]}, {sw}
s_add_u32 {sc[1]}, {sc[0]}, 4
s_add_u32 {sc[2]}, {sc[0]}, 8
s_cmp_ge_u32 {sj}, 6
s_cselect_b32 {st0}, 2, 3
s_cmp_lt_u32 {sw}, {st0}
s_cselect_b32 {sval}, 0, {OOB}""")
    shs = S.alloc(); sldsw = S.alloc(); ssoff = S.alloc()
    a(f"s_lshl_b32 {shs}, {srb}, 16\ns_lshl_b32 {sldsw}, {sw}, 12\ns_add_u32 {shs}, {shs}, {sldsw}\ns_add_u32 {shs}, {shs}, {WS_H}")
    a("s_waitcnt lgkmcnt(0)")
    htok = []
    for tt in range(4):
        for i in range(4):
            a(f"s_add_u32 m0, {sldsw}, {tt*16384 + i*1024}\ns_add_u32 {ssoff}, {shs}, {tt*16384 + i*1024}")
            tk = a(f"buffer_load_dwordx4 {vl16}, {srd['ws']}, {ssoff} offen lds")
        htok.append(tk)
        if tt == 0:
            w1 = A.alloc(192)
            sw1 = [S.alloc() for _ in range(3)]
            for i in range(3):
                a(f"s_lshl_b32 {sw1[i]}, {sc[i]}, 14\ns_add_u32 {sw1[i]}, {sw1[i]}, {WS_W1}")
            a(f"s_add_u32 {sw1[2]}, {sw1[2]}, {sval}")
            for ks in range(16):
                for i in range(3):
                    if ks % 4 == 0 and ks: a(f"s_add_u32 {sw1[i]}, {sw1[i]}, 4096")
                    a(f"buffer_load_dwordx4 {w1[(ks*3+i)*4:(ks*3+i)*4+4]}, {vl16}, {srd['ws']}, {sw1[i]} offen offset:{(ks%4)*1024}")
    stv = V.alloc(32, 4); cs = V.alloc(48, 4); b1 = V.alloc(6, 2); b1f = V.alloc(12, 4)
    a(f"""v_lshrrev_b32 {t0}, 4, {lane}
v_and_b32 {t1}, 15, {lane}
v_lshlrev_b32 {t2}, 11, {t0}
v_lshl_add_u32 {t2}, {t1}, 5, {t2}
s_lshl_b32 {st0}, {srb}, 13
s_add_u32 {st0}, {st0}, {WS_ST}
v_lshlrev_b32 {t3}, 4, {t0}
v_lshlrev_b32 {t1}, 3, {t0}""")
    for tt in range(4):
        for q in range(2): a(f"buffer_load_dwordx4 {stv[tt*8+q*4:tt*8+q*4+4]}, {t2}, {srd['ws']}, {st0} offen offset:{tt*512 + q*16}")
    for i in range(3):
        for kq in range(4):
            a(f"s_lshl_b32 {st0}, {sc[i]}, 6\ns_add_u32 {st0}, {st0}, {WS_CS + kq*1408*4}")
            a(f"buffer_load_dwordx4 {cs[(i*4+kq)*4:(i*4+kq)*4+4]}, {t3}, {srd['ws']}, {st0} offen")
        a(f"s_lshl_b32 {st0}, {sc[i]}, 5")
        a(f"buffer_load_dwordx2 {b1[2*i:2*i+2]}, {t1}, {srd['b1']}, {st0} offen")
    for i in range(3):
        for kq in range(1, 4):
            for r in range(0, 4, 2): a(f"v_pk_add_f32 {cs[i*16+r:i*16+r+2]}, {cs[i*16+r:i*16+r+2]}, {cs[i*16+kq*4+r:i*16+kq*4+r+2]}")
        for h in range(2):
            a(f"v_lshlrev_b32 {b1f[i*4+2*h]}, 16, {b1[2*i+h]}\nv_and_b32 {b1f[i*4+2*h+1]}, 0xffff0000, {b1[2*i+h]}")
    rr = V.alloc(4); nm = V.alloc(4); seps = S.alloc()
    a(f"s_mov_b32 {seps}, {f32(1e-5)}")
    for tt in range(4):
        s = stv[tt*8:tt*8+8]
        a(f"v_pk_add_f32 {s[0:2]}, {s[0:2]}, {s[2:4]}\nv_pk_add_f32 {s[4:6]}, {s[4:6]}, {s[6:8]}\nv_pk_add_f32 {s[0:2]}, {s[0:2]}, {s[4:6]}")
        for sw_ in ('v_permlane16_swap_b32', 'v_permlane32_swap_b32'):
            a(f"v_mov_b32 {s[2]}, {s[0]}\nv_mov_b32 {s[3]}, {s[1]}\n{sw_} {s[2]}, {s[0]}\n{sw_} {s[3]}, {s[1]}")
            a(f"v_pk_add_f32 {s[0:2]}, {s[0:2]}, {s[2:4]}")
        a(f"""v_mul_f32 {s[0]}, {f32(1/512)}, {s[0]}
v_mul_f32 {s[1]}, {f32(1/512)}, {s[1]}
v_fma_f32 {s[1]}, -{s[0]}, {s[0]}, {s[1]}
v_max_f32 {s[1]}, 0, {s[1]}
v_add_f32 {s[2]}, {seps}, {s[1]}
v_rsq_f32 {s[2]}, {s[2]}
v_mul_f32 {s[3]}, {s[2]}, {s[2]}
v_fma_f32 {s[3]}, {s[3]}, {s[1]}, {seps}
v_rsq_f32 {s[3]}, {s[3]}
v_mul_f32 {rr[tt]}, {s[2]}, {s[3]}
v_mul_f32 {nm[tt]}, -{rr[tt]}, {s[0]}""")
    acc = V.alloc(24, 4)
    hf = V.alloc(16, 4)
    pk = V.alloc(12, 4)
    tm = V.alloc(8, 4)
    sga = S.alloc(); sgb = S.alloc()
    a(f"s_mov_b32 {sga}, {f32(GA)}\nv_mov_b32 {t0}, {f32(GB)}")
    shh = [S.alloc() for _ in range(3)]
    for i in range(3):
        a(f"s_mul_i32 {st0}, {srb}, {2*86*1024}\ns_lshl_b32 {shh[i]}, {sc[i]}, 10\ns_add_u32 {shh[i]}, {shh[i]}, {st0}\ns_add_u32 {shh[i]}, {shh[i]}, {WS_HH}")
    a(f"s_add_u32 {shh[2]}, {shh[2]}, {sval}")
    def epi(tt):
        o = []
        for i in range(3):
            d = acc[(tt&1)*12+i*4:(tt&1)*12+i*4+4]
            for r in range(4): o.append(f"v_fma_f32 {tm[r]}, {nm[tt]}, {cs[i*16+r]}, {b1f[i*4+r]}")
            for r in range(4): o.append(f"v_fma_f32 {d[r]}, {rr[tt]}, {d[r]}, {tm[r]}")
            for r in range(4): o.append(f"v_mul_f32 {tm[r]}, {d[r]}, {d[r]}")
            for r in range(4): o.append(f"v_fma_f32 {tm[r]}, {tm[r]}, {sga}, {t0}")
            for r in range(4): o.append(f"v_mul_f32 {tm[r]}, {tm[r]}, {d[r]}")
            for r in range(4): o.append(f"v_exp_f32 {tm[r]}, {tm[r]}")
            for r in range(4): o.append(f"v_add_f32 {tm[r]}, 1.0, {tm[r]}")
            for r in range(4): o.append(f"v_rcp_f32 {tm[r]}, {tm[r]}")
            for r in range(4): o.append(f"v_mul_f32 {d[r]}, {d[r]}, {tm[r]}")
            for h in range(2): o.append(f"v_cvt_pk_bf16_f32 {pk[i*4+(tt&1)*2+h]}, {d[2*h]}, {d[2*h+1]}")
            if tt & 1:
                for h in range(2): o.append(f"v_permlane16_swap_b32 {pk[i*4+h]}, {pk[i*4+2+h]}")
                if tt == 3: o.append(f"s_add_u32 {shh[i]}, {shh[i]}, {86*1024}")
                o.append(f"buffer_store_dwordx4 {pk[i*4:i*4+4]}, {vl16}, {srd['ws']}, {shh[i]} offen")
        return o
    def rd(n): return f"ds_read_b128 {hf[(n&3)*4:(n&3)*4+4]}, {vl16} offset:{n*1024}"
    for tt in range(4):
        a.wait(htok[tt]); a("s_barrier")
        for k in range(3): a(rd(tt*16 + k))
        e = epi(tt-1) if tt else []
        per = -(-len(e) // 46) if e else 0
        ei = 0
        for ks in range(16):
            n = tt*16 + ks
            for i in range(3):
                d = acc[(tt&1)*12+i*4:(tt&1)*12+i*4+4]
                a(f"v_mfma_f32_16x16x32_bf16 {d}, {w1[(ks*3+i)*4:(ks*3+i)*4+4]}, {hf[(n&3)*4:(n&3)*4+4]}, {d if ks else 0}")
                if i == 0 and ks + 3 < 16: a(rd(n + 3))
                if ks*3 + i >= 2:
                    for x in e[ei:ei+per]: a(x)
                    ei += per
        for x in e[ei:]: a(x)
    for x in epi(3): a(x)
    a("L_end_k3:\ns_endpgm")
    return a.finish(), V.peak, A.peak

def k4():
    a = Asm(); a.tag = 'k4'
    S = Regs('s', 4, 100); V = Regs('v', 1, 256); A = Regs('a', 0, 256)
    srd = prologue(a, S, ['ws', 'b2', 'out'])
    sw, sj, srb, st0, st1, lane, t0, t1, t2, t3, vl16 = ids(a, S, V)
    sw2, shh, shh1, sval = [S.alloc() for _ in range(4)]
    a(f"""s_mul_i32 {sw2}, {sj}, {88*2048}
s_lshl_b32 {st0}, {sw}, 11
s_add_u32 {sw2}, {sw2}, {st0}
s_add_u32 {sw2}, {sw2}, {WS_W2}
s_mul_i32 {shh}, {srb}, {2*86*1024}
s_lshl_b32 {st0}, {sw}, 10
s_add_u32 {shh}, {shh}, {st0}
s_add_u32 {shh}, {shh}, {WS_HH}
s_add_u32 {shh1}, {shh}, {86*1024}
s_cmp_lt_u32 {sw}, 2
s_cselect_b32 {sval}, 0, {OOB}""")
    w2 = A.alloc(176); acc = A.alloc(64); hh = V.alloc(176, 4)
    vh = V.alloc(); shb = S.alloc(); hb = V.alloc(8, 4); b2 = V.alloc(8, 4)
    hf_addr(a, vh, shb, sw, sj, srb, st0, st1, lane, t0, t1)
    a("s_waitcnt lgkmcnt(0)")
    for n in range(22):
        if n == 21: a(f"s_add_u32 {shh}, {shh}, {sval}\ns_add_u32 {shh1}, {shh1}, {sval}")
        for ct in range(2): a(f"buffer_load_dwordx4 {w2[(n*2+ct)*4:(n*2+ct)*4+4]}, {vl16}, {srd['ws']}, {sw2} offen offset:{ct*1024}")
        a(f"buffer_load_dwordx4 {hh[n*8:n*8+4]}, {vl16}, {srd['ws']}, {shh} offen")
        a(f"buffer_load_dwordx4 {hh[n*8+4:n*8+8]}, {vl16}, {srd['ws']}, {shh1} offen")
        a(f"s_add_u32 {sw2}, {sw2}, 8192\ns_add_u32 {shh}, {shh}, 4096\ns_add_u32 {shh1}, {shh1}, 4096")
        if n == 14:
            for m in range(2): a(f"buffer_load_dwordx4 {hb[4*m:4*m+4]}, {vh}, {srd['ws']}, {shb} offen offset:{m*256}")
            a(f"""v_lshrrev_b32 {t0}, 5, {lane}
v_lshlrev_b32 {t0}, 3, {t0}
s_lshl_b32 {st0}, {sj}, 7
s_lshr_b32 {st1}, {sw}, 1
s_lshl_b32 {st1}, {st1}, 6
s_add_u32 {st0}, {st0}, {st1}""")
            for m in range(4): a(f"buffer_load_dwordx2 {b2[2*m:2*m+2]}, {t0}, {srd['b2']}, {st0} offen offset:{m*16}")
        if n >= 12:
            k = n - 12
            for nn in ([k] if n < 21 else range(k, 22)):
                for ct in range(2):
                    for tt in range(2):
                        d = acc[(2*ct+tt)*16:(2*ct+tt)*16+16]
                        a(f"v_mfma_f32_32x32x16_bf16 {d}, {w2[(nn*2+ct)*4:(nn*2+ct)*4+4]}, {hh[nn*8+tt*4:nn*8+tt*4+4]}, {d if nn else 0}")
    own = hh[0:16]
    reduce_scatter(a, acc, own, hh[16:64], sw, st0, vl16, t2, 0)
    ob = hh[64:72]
    for m in range(4):
        for h in range(2):
            for src in (hb, b2):
                a(f"v_lshlrev_b32 {t0}, 16, {src[2*m+h]}\nv_and_b32 {t1}, 0xffff0000, {src[2*m+h]}")
                a(f"v_add_f32 {own[4*m+2*h]}, {own[4*m+2*h]}, {t0}\nv_add_f32 {own[4*m+2*h+1]}, {own[4*m+2*h+1]}, {t1}")
            a(f"v_cvt_pk_bf16_f32 {ob[2*m+h]}, {own[4*m+2*h]}, {own[4*m+2*h+1]}")
    for p in range(2):
        for h in range(2): a(f"v_permlane32_swap_b32 {ob[4*p+h]}, {ob[4*p+2+h]}")
    a(f"""v_and_b32 {t0}, 31, {lane}
v_lshlrev_b32 {t2}, 10, {t0}
v_lshrrev_b32 {t0}, 5, {lane}
v_lshl_add_u32 {t2}, {t0}, 4, {t2}
s_lshl_b32 {shb}, {srb}, 16
s_and_b32 {st0}, {sw}, 1
s_lshl_b32 {st0}, {st0}, 15
s_add_u32 {shb}, {shb}, {st0}
s_lshl_b32 {st0}, {sj}, 7
s_add_u32 {shb}, {shb}, {st0}
s_lshr_b32 {st0}, {sw}, 1
s_lshl_b32 {st0}, {st0}, 6
s_add_u32 {shb}, {shb}, {st0}""")
    for p in range(2): a(f"buffer_store_dwordx4 {ob[4*p:4*p+4]}, {t2}, {srd['out']}, {shb} offen offset:{p*32}")
    a("L_end_k4:\ns_endpgm")
    return a.finish(), V.peak, A.peak

def assemble(kernels, extra_empty=0):
    hdr = open('cdna_kernels/' + NAME + '.s.ref').read().split('; Override')[0]
    o = hdr
    for (n, fn, lds) in kernels: o += f"; @launch kernel={n}_kernel grid=(256,1,1) block=(256,1,1) lds={lds}\n"
    o += '.amdgcn_target "amdgcn-amd-amdhsa--gfx950"\n.text\n'
    d = '.section .rodata,"a"\n'
    done = set()
    for (n, fn, lds) in kernels:
        if n in done: continue
        done.add(n)
        body, v, ag = fn()
        o += f".globl {n}_kernel\n.p2align 8\n.type {n}_kernel,@function\n{n}_kernel:\n{body}"
        acc = (v + 3) // 4 * 4
        d += ".p2align 6\n" + descriptor(n + '_kernel', acc + ag, acc)
        print(n, 'vgpr', v, 'agpr', ag, 'lines', body.count('\n'), file=sys.stderr)
    return o + d

if __name__ == '__main__':
    ks = [('k1', k1, 163840), ('k2', k2, 65536), ('k3', k3, 65536), ('k4', k4, 65536)]
    open(sys.argv[1] if len(sys.argv) > 1 else 'v1.s', 'w').write(assemble(ks))
```

```python
import gen1 as G
from asmlib import *
def kempty():
    a=Asm(); a("s_endpgm"); return a.finish(), 8, 0
base=[('k1', G.k1, 163840), ('k2', G.k2, 65536), ('k3', G.k3, 65536), ('k4', G.k4, 65536)]
e=('ke',kempty,0)
open('../cdna_kernels/va.s','w').write(G.assemble(base))
open('../cdna_kernels/vb.s','w').write(G.assemble(base+[e]))
open('../cdna_kernels/vc.s','w').write(G.assemble(base+[e,e,e,e]))
open('../cdna_kernels/vd.s','w').write(G.assemble([e]+base))
open('../cdna_kernels/ve.s','w').write(G.assemble(base+base[1:]))
```

```python
from asmlib import *
import struct, sys
def f32(x): return '0x%08x' % struct.unpack('<I', struct.pack('<f', x))[0]
NAME = 'sequential_preLN__linear_attn_block__mixer_channel_mlp__prompt'
WS_PQ = 0
WS_WO = WS_PQ + (2 << 20)
WS_W1 = WS_WO + (512 << 10)
WS_W2 = WS_W1 + 88 * 16384
WS_CS = WS_W2 + 8 * 88 * 2048
WS_KV = WS_CS + 32768
WS_H  = WS_KV + 65536
WS_ST = WS_H + (2 << 20)
WS_HH = WS_ST + 32 * 8192
WS_END = WS_HH + 32 * 2 * 86 * 1024
OOB = 0x7ff00000
LOG2E = 1.4426950408889634; LN2 = 0.6931471805599453
KA = dict(x=0, wqkv=8, wo=16, w1=32, b1=40, w2=48, b2=56, out=64, dbg=72, ws=80)
SZ = dict(x=2048*512*2, wqkv=512*1536*2, wo=512*512*2, w1=512*1376*2, b1=1376*2, w2=1376*512*2, b2=512*2,
          out=2048*512*2, dbg=256, ws=WS_END + 65536)

STAMP = False
CODEPF = 0
WS_DBG = WS_END
class Stamps:
    def __init__(self, a, S, kid):
        self.a = a; self.kid = kid; self.n = 0
        if STAMP:
            self.r = S.alloc(28, 4); self.rt = S.alloc(4, 4)
            a.hidden(f"s_memrealtime {self.rt[0:2]}")
        self()
    def __call__(self):
        if STAMP:
            self.a.hidden(f"s_memtime {self.r[2*self.n:2*self.n+2]}"); self.n += 1
    def dump(self, srd, S, V):
        if not STAMP: return
        a = self.a
        a("s_waitcnt vmcnt(0)"); self()
        v0 = V.alloc(); v1 = V.alloc(); s0 = S.alloc()
        t = f"s_memrealtime {self.rt[2:4]}\ns_waitcnt lgkmcnt(0)\nv_lshrrev_b32 {v0}, 6, v0\nv_lshlrev_b32 {v0}, 28, {v0}\ns_lshl_b32 {s0}, s2, 6\ns_add_u32 {s0}, {s0}, {WS_DBG + self.kid*16384}\n"
        for i in range(1, self.n):
            t += f"s_sub_u32 {self.r[2*i]}, {self.r[2*i]}, {self.r[0]}\nv_mov_b32 {v1}, {self.r[2*i]}\nbuffer_store_dword {v1}, {v0}, {srd}, {s0} offen offset:{4*i}\n"
        t += f"v_mov_b32 {v1}, {self.rt[0]}\nbuffer_store_dword {v1}, {v0}, {srd}, {s0} offen offset:56\n"
        t += f"v_mov_b32 {v1}, {self.rt[2]}\nbuffer_store_dword {v1}, {v0}, {srd}, {s0} offen offset:60\n"
        a.hidden(t)

def prologue(a, S, names):
    a("s_cmp_ge_u32 s2, 256\ns_cbranch_scc1 L_end_%s" % a.tag)
    a.st = Stamps(a, S, int(a.tag[1]) - 1)
    srd = {}
    for n in names:
        srd[n] = S.alloc(4)
        a(f"s_load_dwordx2 {srd[n][0:2]}, s[0:1], {KA[n]}")
    for n in names:
        a(f"s_mov_b32 {srd[n][2]}, {SZ[n]}\ns_mov_b32 {srd[n][3]}, 0x00020000")
    return srd

DPP_X1 = 'quad_perm:[1,0,3,2] row_mask:0xf bank_mask:0xf'
DPP_X2 = 'quad_perm:[2,3,0,1] row_mask:0xf bank_mask:0xf'
DPP_HM = 'row_half_mirror row_mask:0xf bank_mask:0xf'

def k1():
    a = Asm(); a.tag = 'k1'
    S = Regs('s', 4, 100); V = Regs('v', 1, 256); A = Regs('a', 0, 256)
    srd = prologue(a, S, ['x', 'wqkv', 'ws', 'dbg', 'wo', 'w1', 'w2'])
    if CODEPF:
        a(f"""s_getpc_b64 s[96:97]
s_and_b32 s96, s96, 0xffffff00
s_lshr_b32 s98, s2, 3
s_lshl_b32 s98, s98, 10
v_and_b32 v250, 7, v0
v_lshl_add_u32 v250, v250, 7, s98
v_min_u32 v250, {CODEPF - 4}, v250
v_mov_b32 v251, s97
v_add_co_u32 v250, vcc, s96, v250
v_addc_co_u32 v251, vcc, 0, v251, vcc
v_cmp_gt_u32 vcc, 8, v0
s_and_saveexec_b64 s[98:99], vcc
s_cbranch_execz L_k1_nopf""")
        a.hidden("global_load_dword v252, v[250:251], off\nL_k1_nopf:\ns_mov_b64 exec, s[98:99]")
        V.peak = 253
    sw, sj, srb, st0, st1, ssoff = [S.alloc() for _ in range(6)]
    lane, t0, t1, t2, t3 = [V.alloc() for _ in range(5)]
    a(f"""v_and_b32 {lane}, 63, v0
v_lshrrev_b32 {t0}, 6, v0
v_readfirstlane_b32 {sw}, {t0}
s_lshr_b32 {st0}, s2, 3
s_and_b32 {sj}, s2, 1
s_lshl_b32 {sj}, {sj}, 2
s_and_b32 {st1}, {st0}, 3
s_add_u32 {sj}, {sj}, {st1}
s_bfe_u32 {srb}, s2, 0x20001
s_lshl_b32 {srb}, {srb}, 3
s_lshr_b32 {st1}, {st0}, 2
s_add_u32 {srb}, {srb}, {st1}""")
    shead = S.alloc()
    a(f"s_lshl_b32 {shead}, {sj}, 2\ns_add_u32 {shead}, {shead}, {sw}")
    vx = V.alloc()
    a(f"""v_lshrrev_b32 {t0}, 3, {lane}
v_and_b32 {t1}, 7, {lane}
v_lshlrev_b32 {vx}, 10, {t0}
v_lshl_add_u32 {vx}, {t1}, 4, {vx}""")
    sxb = S.alloc()
    a(f"s_lshl_b32 {sxb}, {srb}, 16\ns_lshl_b32 {st0}, {sw}, 14\ns_add_u32 {sxb}, {sxb}, {st0}")
    vw = V.alloc()
    a(f"""v_bfe_u32 {t2}, {lane}, 4, 1
s_and_b32 {st0}, {sw}, 1
s_lshl_b32 {st0}, {st0}, 1
v_or_b32 {t2}, {st0}, {t2}
v_lshrrev_b32 {t3}, 1, {t1}
v_xor_b32 {t2}, {t2}, {t3}
v_lshlrev_b32 {t2}, 5, {t2}
v_and_b32 {t3}, 1, {lane}
v_lshl_add_u32 {t2}, {t3}, 4, {t2}
v_mul_u32_u24 {vw}, 3072, {t0}
v_add_u32 {vw}, {vw}, {t2}""")
    swb = S.alloc(); sldsw = S.alloc()
    a(f"""s_mul_i32 {swb}, {sw}, {8*3072}
s_lshl_b32 {st0}, {sj}, 7
s_add_u32 {swb}, {swb}, {st0}
s_lshl_b32 {sldsw}, {sw}, 10""")
    vl16 = V.alloc()
    a(f"v_lshlrev_b32 {vl16}, 4, {lane}")
    skvb = S.alloc()
    a(f"s_lshl_b32 {skvb}, {shead}, 11\ns_add_u32 {skvb}, {skvb}, {WS_KV}")
    xr = V.alloc(64, 4)
    a("s_waitcnt lgkmcnt(0)"); a.st()
    szero = S.alloc()
    a(f"s_cmp_eq_u32 {srb}, 0\ns_cselect_b32 {szero}, {skvb}, {OOB}")
    vz = V.alloc(4, 4)
    for i in range(4): a(f"v_mov_b32 {vz[i]}, 0")
    a(f"buffer_store_dwordx4 {vz}, {vl16}, {srd['ws']}, {szero} offen sc1")
    a(f"buffer_store_dwordx4 {vz}, {vl16}, {srd['ws']}, {szero} offen offset:1024 sc1")
    xl = []
    for i in range(2):
        if i == 1: a(f"s_add_u32 {sxb}, {sxb}, 8192")
        for n in range(8):
            xl.append(a(f"buffer_load_dwordx4 {xr[(i*8+n)*4:(i*8+n)*4+4]}, {vx}, {srd['x']}, {sxb} offen offset:{n*128}"))
    WB = 65536
    def dma_w(ks, part, ldsoff):
        a(f"s_add_u32 m0, {sldsw}, {ldsoff}\ns_add_u32 {ssoff}, {swb}, {ks*32*3072 + part*1024}")
        return a(f"buffer_load_dwordx4 {vw}, {srd['wqkv']}, {ssoff} offen lds")
    def kv_lds(ks, p):
        c = ks // 2
        return WB + (c % 6) * 16384 + (ks & 1) * 8192 + p * 4096
    def q_lds(ks):
        return WB + (2 + ks // 4) * 16384 + (ks & 3) * 4096
    chunk_tok = {}
    def dma_chunk(c):
        for ks in (2*c, 2*c+1):
            for p in (0, 1): chunk_tok[c] = dma_w(ks, 1 + p, kv_lds(ks, p))
    for c in range(6): dma_chunk(c)
    a.st(); a.wait(xl[0]); a.st()
    vone = V.alloc(); vfl = V.alloc()
    a(f"""s_lshl_b32 {st0}, {shead}, 2
s_cmp_eq_u32 {srb}, 0
s_cselect_b32 {st1}, {st0}, {OOB}
v_mov_b32 {vone}, 1
v_mov_b32 {vfl}, 0
buffer_store_dword {vone}, {vfl}, {srd['dbg']}, {st1} offen sc1""")
    sflag = S.alloc(); a(f"s_mov_b32 {sflag}, {st0}")
    sones = S.alloc(); slo = S.alloc(); shi = S.alloc()
    a(f"s_mov_b32 {sones}, 0x3f803f80\ns_mov_b32 {slo}, 0x00003f80\ns_mov_b32 {shi}, 0x3f800000")
    sm = V.alloc(4); sq = V.alloc(4)
    for i in range(4): a(f"v_mov_b32 {sm[i]}, 0\nv_mov_b32 {sq[i]}, 0")
    for i in range(2):
        for r in range(32):
            a(f"v_dot2_f32_bf16 {sm[2*i + (r&1)]}, {xr[i*32+r]}, {sones}, {sm[2*i + (r&1)]}")
    a.st()
    def red8(v, other):
        a(f"v_add_f32 {v}, {v}, {other}")
        for d in (DPP_X1, DPP_X2, DPP_HM): a(f"v_add_f32 {v}, {v}, {v} {d}")
    for i in range(2): red8(sm[2*i], sm[2*i+1])
    for i in range(2): a(f"v_mul_f32 {sm[2*i]}, {f32(-1/512)}, {sm[2*i]}")
    vxw = V.alloc(2)
    a(f"""v_bfe_u32 {t2}, {lane}, 2, 1
v_and_b32 {t3}, 3, {lane}
v_mul_u32_u24 {t1}, 12, {t2}
v_add_u32 {t1}, {t1}, {t3}
v_lshlrev_b32 {t2}, 12, {t2}
v_lshl_add_u32 {t2}, {t3}, 8, {t2}
v_add_u32 {t2}, {sldsw}, {t2}
v_xor_b32 {t3}, {t0}, {t1}
v_lshl_add_u32 {vxw[0]}, {t3}, 4, {t2}
v_xor_b32 {t3}, 8, {t3}
v_lshl_add_u32 {vxw[1]}, {t3}, 4, {t2}""")
    tmp = V.alloc(16, 4)
    for i in range(2):
        for n in range(8):
            b = (i*8+n)*4; tb = (n & 1) * 8
            for r in range(4):
                a(f"v_dot2_f32_bf16 {tmp[tb+2*r]}, {xr[b+r]}, {slo}, {sm[2*i]}")
                a(f"v_dot2_f32_bf16 {tmp[tb+2*r+1]}, {xr[b+r]}, {shi}, {sm[2*i]}")
            for r in range(4):
                a(f"v_cvt_pk_bf16_f32 {xr[b+r]}, {tmp[tb+2*r]}, {tmp[tb+2*r+1]}")
            a(f"ds_write_b128 {vxw[i]}, {xr[b:b+4]} offset:{n*8192}")
    vxa = V.alloc(2); vwa = V.alloc(2)
    a(f"""v_lshrrev_b32 {t0}, 4, {lane}
v_and_b32 {t1}, 15, {lane}
v_xor_b32 {t2}, {t0}, {t1}
v_lshlrev_b32 {t2}, 4, {t2}
v_lshl_add_u32 {vxa[0]}, {t0}, 8, {t2}
v_xor_b32 {vxa[1]}, {12*16}, {vxa[0]}
v_bfe_u32 {t2}, {lane}, 3, 1
v_and_b32 {t3}, 1, {t0}
v_lshl_or_b32 {t2}, {t3}, 1, {t2}
v_xor_b32 {t2}, {sw}, {t2}
v_lshlrev_b32 {t2}, 5, {t2}
v_and_b32 {t3}, 3, {lane}
v_lshl_add_u32 {t2}, {t3}, 3, {t2}
v_lshrrev_b32 {t3}, 2, {t1}
v_lshl_add_u32 {t3}, {t0}, 3, {t3}
v_lshl_add_u32 {t2}, {t3}, 7, {t2}
v_add_u32 {vwa[0]}, {WB}, {t2}
v_add_u32 {vwa[1]}, {WB + 49152}, {t2}""")
    xf = A.alloc(256)
    def xfrag(ks, tt): return xf[(ks*4+tt)*4:(ks*4+tt)*4+4]
    wf = V.alloc(32, 4)
    def wfrag(ks, p): b = ((ks // 2) & 1) * 16 + (ks & 1) * 8 + p * 4; return wf[b:b+4]
    def tr(dst, off):
        off -= WB
        base = vwa[0] if off < 49152 else vwa[1]
        if off >= 49152: off -= 49152
        return [f"ds_read_b64_tr_b16 {dst[0:2]}, {base} offset:{off}", f"ds_read_b64_tr_b16 {dst[2:4]}, {base} offset:{off+512}"]
    def reads(c):
        o = []
        for ks in (2*c, 2*c+1):
            for p in (0, 1): o += tr(wfrag(ks, p), kv_lds(ks, p))
            for tt in range(4): o.append(f"ds_read_b128 {xfrag(ks, tt)}, {vxa[ks&1]} offset:{ks*4096 + tt*1024}")
        return o
    a.st(); a.wait(chunk_tok[0])
    a("s_waitcnt lgkmcnt(0)\ns_barrier"); a.st()
    for r in reads(0): a(r)
    for i in range(2):
        for r in range(32):
            a(f"v_dot2_f32_bf16 {sq[2*i + (r&1)]}, {xr[i*32+r]}, {xr[i*32+r]}, {sq[2*i + (r&1)]}")
    for i in range(2): red8(sq[2*i], sq[2*i+1])
    seps = S.alloc(); a(f"s_mov_b32 {seps}, {f32(1e-5)}")
    for i in range(2):
        a(f"v_mov_b32 {sq[2*i+1]}, {f32(1/512)}\nv_fma_f32 {sq[2*i]}, {sq[2*i]}, {sq[2*i+1]}, {seps}\nv_rsq_f32 {sq[2*i]}, {sq[2*i]}")
        a(f"v_mul_f32 {sq[2*i+1]}, {f32(LOG2E)}, {sq[2*i]}")
    RS = 16384
    vrs = V.alloc()
    a(f"v_lshrrev_b32 {vrs}, 3, {lane}\nv_lshlrev_b32 {vrs}, 2, {vrs}\ns_lshl_b32 {st0}, {sw}, 6\nv_add_u32 {vrs}, {st0}, {vrs}")
    acck = xr[0:16]; accv = xr[16:32]; accq = xr[32:48]
    su = 's2'
    sptype = S.alloc(); spsrc = S.alloc(); spitch = S.alloc(); sdst = S.alloc(); psrd = S.alloc(4)
    a(f"""s_mov_b32 {sptype}, 3
s_mov_b32 {psrd[0]}, {srd['w1'][0]}
s_mov_b32 {psrd[1]}, {srd['w1'][1]}
s_mov_b32 {psrd[2]}, 0
s_mov_b32 {psrd[3]}, 0x00020000
s_mov_b32 {spsrc}, 0
s_mov_b32 {spitch}, 1024
s_mov_b32 {sdst}, 0
s_cmp_ge_u32 {su}, 208
s_cbranch_scc1 L_k1_pd
s_cmp_ge_u32 {su}, 176
s_cbranch_scc1 L_k1_pwo
s_cmp_ge_u32 {su}, 88
s_cbranch_scc1 L_k1_pw2
s_mov_b32 {sptype}, 0
s_mov_b32 {psrd[2]}, {SZ['w1']}
s_mov_b32 {spitch}, 2752
s_and_b32 {st0}, {su}, 3
s_lshr_b32 {st1}, {su}, 2
s_mul_i32 {spsrc}, {st0}, {128*2752}
s_lshl_b32 {sdst}, {st1}, 7
s_add_u32 {spsrc}, {spsrc}, {sdst}
s_lshl_b32 {sdst}, {st1}, 2
s_add_u32 {sdst}, {sdst}, {sw}
s_lshl_b32 {sdst}, {sdst}, 14
s_lshl_b32 {st0}, {st0}, 12
s_add_u32 {sdst}, {sdst}, {st0}
s_add_u32 {sdst}, {sdst}, {WS_W1}
s_branch L_k1_pd
L_k1_pw2:
s_mov_b32 {sptype}, 1
s_mov_b32 {psrd[0]}, {srd['w2'][0]}
s_mov_b32 {psrd[1]}, {srd['w2'][1]}
s_mov_b32 {psrd[2]}, {SZ['w2']}
s_sub_u32 {st0}, {su}, 88
s_lshr_b32 {st1}, {st0}, 3
s_and_b32 {st0}, {st0}, 7
s_lshl_b32 {spsrc}, {st1}, 17
s_lshl_b32 {sdst}, {st0}, 7
s_add_u32 {spsrc}, {spsrc}, {sdst}
s_mul_i32 {sdst}, {st0}, {88*2048}
s_lshl_b32 {st1}, {st1}, 14
s_add_u32 {sdst}, {sdst}, {st1}
s_lshl_b32 {st1}, {sw}, 12
s_add_u32 {sdst}, {sdst}, {st1}
s_add_u32 {sdst}, {sdst}, {WS_W2}
s_branch L_k1_pd
L_k1_pwo:
s_mov_b32 {sptype}, 2
s_mov_b32 {psrd[0]}, {srd['wo'][0]}
s_mov_b32 {psrd[1]}, {srd['wo'][1]}
s_mov_b32 {psrd[2]}, {SZ['wo']}
s_sub_u32 {st0}, {su}, 176
s_lshr_b32 {st1}, {st0}, 3
s_and_b32 {st0}, {st0}, 7
s_lshl_b32 {spsrc}, {st1}, 17
s_lshl_b32 {sdst}, {st0}, 7
s_add_u32 {spsrc}, {spsrc}, {sdst}
s_lshl_b32 {sdst}, {st0}, 16
s_lshl_b32 {st1}, {st1}, 14
s_add_u32 {sdst}, {sdst}, {st1}
s_lshl_b32 {st1}, {sw}, 12
s_add_u32 {sdst}, {sdst}, {st1}
s_add_u32 {sdst}, {sdst}, {WS_WO}
L_k1_pd:""")
    vp = V.alloc(2)
    a(f"""s_mul_i32 {st0}, {sw}, {spitch}
s_lshl_b32 {st0}, {st0}, 5
s_add_u32 {spsrc}, {spsrc}, {st0}
v_lshrrev_b32 {t0}, 3, {lane}
v_mul_lo_u32 {t0}, {t0}, {spitch}
v_bfe_u32 {t1}, {lane}, 4, 1
v_lshlrev_b32 {t1}, 1, {t1}
v_bfe_u32 {t2}, {lane}, 1, 2
v_xor_b32 {t1}, {t1}, {t2}
v_lshlrev_b32 {t1}, 5, {t1}
v_and_b32 {t2}, 1, {lane}
v_lshl_add_u32 {t1}, {t2}, 4, {t1}
v_add_u32 {vp[0]}, {t0}, {t1}
v_xor_b32 {t1}, 32, {t1}
v_add_u32 {vp[1]}, {t0}, {t1}""")
    qtok = None; ptok = None; a.st()
    vflag = V.alloc()
    for c in range(8):
        if c < 7: a.wait(chunk_tok[c+1])
        a("s_waitcnt lgkmcnt(0)\ns_barrier")
        side = []
        if c == 1:
            side.append(f"buffer_load_dword {vflag}, {vfl}, {srd['dbg']}, {sflag} offen sc1")
        if c == 2:
            for i in range(2):
                side.append(f"ds_write_b32 {vrs}, {sq[2*i]} offset:{RS + i*32}")
                side.append(f"ds_write_b32 {vrs}, {sq[2*i+1]} offset:{RS + 256 + i*32}")
        rd = reads(c+1) if c < 7 else []
        mf = []
        for ks in (2*c, 2*c+1):
            for tt in range(4):
                for p, acc in ((0, acck), (1, accv)):
                    d = acc[tt*4:tt*4+4]
                    mf.append(f"v_mfma_f32_16x16x32_bf16 {d}, {xfrag(ks, tt)}, {wfrag(ks, p)}, {d if ks else 0}")
        for i, m in enumerate(mf):
            a(m)
            if i < len(rd): a(rd[i])
            if i == 1:
                for s in side: a(s)
            if i in (2, 5, 8, 11):
                k = (i - 2) // 3
                if c < 2:
                    ks = 2*(c+6) + (k >> 1); chunk_tok[c+6] = dma_w(ks, 1 + (k & 1), kv_lds(ks, k & 1))
                elif c < 6:
                    ks = (c-2)*4 + k; qtok = dma_w(ks, 0, q_lds(ks))
                elif c == 6:
                    a(f"s_lshl_b32 {st0}, {sw}, 12\ns_add_u32 m0, {st0}, {k*1024}")
                    a(f"s_mul_i32 {st0}, {spitch}, {8*k}\ns_add_u32 {ssoff}, {spsrc}, {st0}")
                    ptok = a(f"buffer_load_dwordx4 {vp[k>>1]}, {psrd}, {ssoff} offen lds")
    a.st()
    rk = V.alloc(16, 4); rv = V.alloc(16, 4); rq = V.alloc(4)
    a(f"v_lshrrev_b32 {t0}, 4, {lane}\nv_lshlrev_b32 {t0}, 4, {t0}\nv_and_b32 {t1}, 15, {lane}\nv_lshlrev_b32 {t1}, 2, {t1}")
    for tt in range(4):
        a(f"ds_read_b128 {rk[tt*4:tt*4+4]}, {t0} offset:{RS + 256 + tt*64}")
        a(f"ds_read_b128 {rv[tt*4:tt*4+4]}, {t0} offset:{RS + tt*64}")
    for tt in range(4): a(f"ds_read_b32 {rq[tt]}, {t1} offset:{RS + 256 + tt*64}")
    sdel = S.alloc(); sln2 = S.alloc()
    a(f"s_mov_b32 {sdel}, {f32(1e-6/LN2)}\ns_mov_b32 {sln2}, {f32(LN2)}")
    def phi4(acc4, scale):
        for r in range(4): a(f"v_fma_f32 {acc4[r]}, {acc4[r]}, {scale(r)}, {sdel}")
        for r in range(4): a(f"v_exp_f32 {tmp[r]}, {acc4[r]} clamp")
        for r in range(4): a(f"v_max_f32 {acc4[r]}, {sdel}, {acc4[r]}")
        for r in range(4): a(f"v_fma_f32 {acc4[r]}, {acc4[r]}, {sln2}, {tmp[r]}")
    pkf = V.alloc(8, 4); vf = V.alloc(8, 4); onesf = V.alloc(4, 4)
    for r in range(4): a(f"v_mov_b32 {onesf[r]}, {sones}")
    for tt in range(4):
        phi4(acck[tt*4:tt*4+4], lambda r: rk[tt*4+r])
        for r in range(4): a(f"v_mul_f32 {accv[tt*4+r]}, {accv[tt*4+r]}, {rv[tt*4+r]}")
        for h in range(2):
            a(f"v_cvt_pk_bf16_f32 {pkf[tt*2+h]}, {acck[tt*4+2*h]}, {acck[tt*4+2*h+1]}")
            a(f"v_cvt_pk_bf16_f32 {vf[tt*2+h]}, {accv[tt*4+2*h]}, {accv[tt*4+2*h+1]}")
    dkv = tmp[8:12]; dz = tmp[12:16]
    for h in range(2):
        a(f"v_mfma_f32_16x16x32_bf16 {dkv}, {pkf[h*4:h*4+4]}, {vf[h*4:h*4+4]}, {dkv if h else 0}")
        a(f"v_mfma_f32_16x16x32_bf16 {dz}, {pkf[h*4:h*4+4]}, {onesf}, {dz if h else 0}")
    KS = 20480
    va = V.alloc(4)
    a(f"""s_lshl_b32 {st0}, {sw}, 11
s_add_u32 {st0}, {st0}, {KS}
v_add_u32 {va[0]}, {st0}, {vl16}
v_add_u32 {va[1]}, {st0}, {t0}
v_lshlrev_b32 {va[3]}, 2, {lane}
v_add_u32 {va[2]}, {st0}, {va[3]}
v_add_u32 {t1}, {st0}, {t1}""")
    a(f"ds_write_b128 {va[0]}, {dkv}\nds_write_b128 {va[1]}, {dz} offset:1024")
    for g in range(4): a(f"ds_read_b32 {tmp[g]}, {va[2]} offset:{g*256}")
    a(f"ds_read_b32 {tmp[4]}, {t1} offset:1024")
    a(f"""v_bfe_u32 {t2}, {lane}, 2, 1
v_lshlrev_b32 {t2}, 10, {t2}
v_bfe_u32 {t3}, {lane}, 3, 1
v_lshl_add_u32 {t2}, {t3}, 9, {t2}
v_bfe_u32 {t3}, {lane}, 4, 1
v_lshl_add_u32 {t2}, {t3}, 6, {t2}
v_and_b32 {t3}, 3, {lane}
v_lshl_add_u32 {t2}, {t3}, 2, {t2}
v_add_u32 {t2}, 256, {t2}
v_lshrrev_b32 {t3}, 5, {lane}
v_lshl_add_u32 {t2}, {t3}, 30, {t2}""")
    a(f"""v_readfirstlane_b32 {st0}, {vflag}
s_cmp_lg_u32 {st0}, 0
s_cbranch_scc1 L_k1_go""")
    a.hidden(f"""s_mov_b32 {st1}, 0
L_k1_spin:
s_add_u32 {st1}, {st1}, 1
s_cmp_ge_u32 {st1}, 0x100000
s_cbranch_scc1 L_k1_go
buffer_load_dword {vflag}, {vfl}, {srd['dbg']}, {sflag} offen sc1
s_waitcnt vmcnt(0)
v_readfirstlane_b32 {st0}, {vflag}
s_nop 3
s_cmp_eq_u32 {st0}, 0
s_cbranch_scc1 L_k1_spin
L_k1_go:""")
    a.st(); a.wait(ptok); a.st()
    for gg in range(4):
        a(f"buffer_atomic_add_f32 {tmp[gg]}, {va[3]}, {srd['ws']}, {skvb} offen offset:{(gg&1)*1024 + (gg>>1)*512}")
    a(f"buffer_atomic_add_f32 {tmp[4]}, {t2}, {srd['ws']}, {skvb} offen")
    a("s_barrier")
    def qfrag(ks): b = (ks & 7) * 4; return wf[b:b+4]
    for ks in range(4):
        for r in tr(qfrag(ks), q_lds(ks)): a(r)
    for ks in range(16):
        nx = tr(qfrag(ks+4), q_lds(ks+4)) if ks + 4 < 16 else []
        for tt in range(4):
            d = accq[tt*4:tt*4+4]
            a(f"v_mfma_f32_16x16x32_bf16 {d}, {qfrag(ks)}, {xfrag(ks, tt)}, {d if ks else 0}")
            if tt < len(nx): a(nx[tt])
    a.st()
    pf = V.alloc(16, 4)
    a(f"s_cmp_eq_u32 {sptype}, 3\ns_cbranch_scc1 L_k1_pend")
    a(f"s_cmp_eq_u32 {sptype}, 0\ns_cbranch_scc1 L_k1_p1")
    a.hidden(f"""v_lshrrev_b32 {t0}, 5, {lane}
s_cmp_eq_u32 {sptype}, 1
s_cselect_b32 {st0}, 10, 9
s_cselect_b32 {st1}, 1, 2
s_lshl_b32 {st1}, {st1}, 9
v_lshlrev_b32 {t0}, {st0}, {t0}
v_bfe_u32 {t1}, {lane}, 2, 2
v_lshl_add_u32 {t0}, {t1}, 7, {t0}
v_bfe_u32 {t1}, {lane}, 3, 1
v_lshlrev_b32 {t1}, 1, {t1}
v_bfe_u32 {t2}, {lane}, 4, 1
v_or_b32 {t1}, {t1}, {t2}
v_lshl_add_u32 {t0}, {t1}, 5, {t0}
v_and_b32 {t1}, 3, {lane}
v_lshl_add_u32 {t0}, {t1}, 3, {t0}
s_lshl_b32 {st0}, {sw}, 12
v_add_u32 {t0}, {st0}, {t0}""")
    txt = []
    for f in range(2):
        for ct in range(2):
            d = pf[(f*2+ct)*4:(f*2+ct)*4+4]
            txt.append(f"v_xor_b32 {t1}, {ct*64 + f*32}, {t0}\nv_add_u32 {t2}, {st1}, {t1}")
            txt.append(f"ds_read_b64_tr_b16 {d[0:2]}, {t1} offset:{f*2048}\nds_read_b64_tr_b16 {d[2:4]}, {t2} offset:{f*2048}")
    txt.append("s_waitcnt lgkmcnt(0)")
    for n in range(4): txt.append(f"buffer_store_dwordx4 {pf[n*4:n*4+4]}, {vl16}, {srd['ws']}, {sdst} offen offset:{n*1024}")
    txt.append("s_branch L_k1_pend\nL_k1_p1:")
    txt.append(f"""v_bfe_u32 {t0}, {lane}, 4, 1
v_lshlrev_b32 {t1}, 11, {t0}
v_bfe_u32 {t2}, {lane}, 3, 1
v_lshl_or_b32 {t0}, {t2}, 1, {t0}
v_xor_b32 {t0}, {sw}, {t0}
v_lshl_add_u32 {t0}, {t0}, 5, {t1}
v_lshrrev_b32 {t1}, 5, {lane}
v_lshl_add_u32 {t0}, {t1}, 9, {t0}
v_bfe_u32 {t1}, {lane}, 2, 2
v_lshl_add_u32 {t0}, {t1}, 7, {t0}
v_and_b32 {t1}, 3, {lane}
v_lshl_add_u32 {t0}, {t1}, 3, {t0}""")
    for n in range(4):
        d = pf[n*4:n*4+4]
        txt.append(f"ds_read_b64_tr_b16 {d[0:2]}, {t0} offset:{n*4096}\nds_read_b64_tr_b16 {d[2:4]}, {t0} offset:{n*4096+1024}")
    txt.append("s_waitcnt lgkmcnt(0)")
    for n in range(4): txt.append(f"buffer_store_dwordx4 {pf[n*4:n*4+4]}, {vl16}, {srd['ws']}, {sdst} offen offset:{n*1024}")
    for n in range(4): txt.append(f"v_mfma_f32_16x16x32_bf16 {dz}, {pf[n*4:n*4+4]}, {onesf}, {dz if n else 0}")
    txt.append(f"""s_and_b32 {st0}, {su}, 3
s_mul_i32 {st0}, {st0}, {1408*4}
s_lshr_b32 {st1}, {su}, 2
s_lshl_b32 {st1}, {st1}, 2
s_add_u32 {st1}, {st1}, {sw}
s_lshl_b32 {st1}, {st1}, 6
s_add_u32 {st0}, {st0}, {st1}
s_add_u32 {st0}, {st0}, {WS_CS}
v_lshrrev_b32 {t0}, 4, {lane}
v_lshlrev_b32 {t0}, 4, {t0}
v_and_b32 {t1}, 15, {lane}
v_lshl_add_u32 {t0}, {t1}, 26, {t0}
buffer_store_dwordx4 {dz}, {t0}, {srd['ws']}, {st0} offen
L_k1_pend:""")
    a.hidden("\n".join(txt))
    a.st()
    for tt in range(4):
        phi4(accq[tt*4:tt*4+4], lambda r: rq[tt])
    for t32 in range(2):
        d = pkf[t32*4:t32*4+4]
        for s in range(2):
            for h in range(2):
                a(f"v_cvt_pk_bf16_f32 {d[2*s+h]}, {accq[(2*t32+s)*4+2*h]}, {accq[(2*t32+s)*4+2*h+1]}")
        for h in range(2): a(f"v_permlane16_swap_b32 {d[h]}, {d[2+h]}")
        a(f"s_lshl_b32 {st0}, {srb}, 16\ns_lshl_b32 {st1}, {shead}, 10\ns_add_u32 {st0}, {st0}, {st1}\ns_add_u32 {st0}, {st0}, {WS_PQ + t32*32768}")
        a(f"buffer_store_dwordx4 {d}, {vl16}, {srd['ws']}, {st0} offen")
    a.st.dump(srd["ws"], S, V)
    a("L_end_k1:\ns_endpgm")
    return a.finish(), V.peak, A.peak

def ids(a, S, V):
    sw, sj, srb, st0, st1 = [S.alloc() for _ in range(5)]
    lane, t0, t1, t2, t3, vl16 = [V.alloc() for _ in range(6)]
    a(f"""v_and_b32 {lane}, 63, v0
v_lshrrev_b32 {t0}, 6, v0
v_readfirstlane_b32 {sw}, {t0}
s_bfe_u32 {sj}, s2, 0x30003
s_and_b32 {srb}, s2, 7
s_lshl_b32 {srb}, {srb}, 2
s_lshr_b32 {st0}, s2, 6
s_add_u32 {srb}, {srb}, {st0}
v_lshlrev_b32 {vl16}, 4, {lane}""")
    return sw, sj, srb, st0, st1, lane, t0, t1, t2, t3, vl16

def reduce_scatter(a, acc, own, tmp48, sw, st0, vl16, vt, base):
    a(f"s_lshl_b32 {st0}, {sw}, 12\nv_add_u32 {vt}, {st0}, {vl16}")
    for t in range(4):
        for q in range(4):
            a(f"ds_write_b128 {vt}, {acc[t*16+q*4:t*16+q*4+4]} offset:{base + t*16384 + q*1024}")
    a(f"s_lshl_b32 {st0}, {sw}, 14\nv_add_u32 {vt}, {st0}, {vl16}")
    a("s_waitcnt lgkmcnt(0)\ns_barrier")
    for s in range(4):
        for q in range(4):
            d = own[q*4:q*4+4] if s == 0 else tmp48[(s-1)*16+q*4:(s-1)*16+q*4+4]
            a(f"ds_read_b128 {d}, {vt} offset:{base + s*4096 + q*1024}")
    for s in range(3):
        for r in range(0, 16, 2):
            a(f"v_pk_add_f32 {own[r:r+2]}, {own[r:r+2]}, {tmp48[s*16+r:s*16+r+2]}")

def hf_addr(a, vh, shb, sw, sj, srb, st0, st1, lane, t0, t1):
    a(f"""v_bfe_u32 {t0}, {lane}, 4, 1
v_lshlrev_b32 {vh}, 14, {t0}
v_lshrrev_b32 {t0}, 5, {lane}
v_lshl_add_u32 {vh}, {t0}, 9, {vh}
v_and_b32 {t0}, 15, {lane}
v_lshl_add_u32 {vh}, {t0}, 4, {vh}
s_lshl_b32 {shb}, {srb}, 16
s_and_b32 {st0}, {sw}, 1
s_lshl_b32 {st0}, {st0}, 15
s_add_u32 {shb}, {shb}, {st0}
s_lshl_b32 {st0}, {sj}, 1
s_lshr_b32 {st1}, {sw}, 1
s_add_u32 {st0}, {st0}, {st1}
s_lshl_b32 {st0}, {st0}, 10
s_add_u32 {shb}, {shb}, {st0}
s_add_u32 {shb}, {shb}, {WS_H}""")

def k2():
    a = Asm(); a.tag = 'k2'
    S = Regs('s', 4, 100); V = Regs('v', 1, 256); A = Regs('a', 0, 256)
    srd = prologue(a, S, ['ws', 'x'])
    sw, sj, srb, st0, st1, lane, t0, t1, t2, t3, vl16 = ids(a, S, V)
    skv, spq, swo, sx = [S.alloc() for _ in range(4)]
    a(f"""s_lshl_b32 {skv}, {sw}, 14
s_add_u32 {skv}, {skv}, {WS_KV}
s_lshl_b32 {spq}, {srb}, 16
s_lshl_b32 {st0}, {sw}, 13
s_add_u32 {spq}, {spq}, {st0}
s_add_u32 {spq}, {spq}, {WS_PQ}
s_lshl_b32 {swo}, {sj}, 16
s_lshl_b32 {st0}, {sw}, 14
s_add_u32 {swo}, {swo}, {st0}
s_add_u32 {swo}, {swo}, {WS_WO}""")
    kvr = V.alloc(64, 4); pq = A.alloc(64); wo = A.alloc(64)
    a("s_waitcnt lgkmcnt(0)")
    def ld(dst, sbase, off, extra=''):
        if off >= 4096:
            a(f"s_add_u32 {st1}, {sbase}, {off & ~4095}"); sbase = st1; off &= 4095
        return a(f"buffer_load_dwordx4 {dst}, {vl16}, {srd['ws']}, {sbase} offen offset:{off} {extra}")
    for hh in range(8):
        for q in range(2): ld(kvr[hh*8+q*4:hh*8+q*4+4], skv, hh*2048 + q*1024)
        for tt in range(2): ld(pq[(hh*2+tt)*4:(hh*2+tt)*4+4], spq, tt*32768 + hh*1024)
        for ct in range(2): ld(wo[(hh*2+ct)*4:(hh*2+ct)*4+4], swo, hh*2048 + ct*1024)
    xr = V.alloc(8, 4); vx = V.alloc()
    a(f"""v_and_b32 {t0}, 31, {lane}
v_lshlrev_b32 {vx}, 10, {t0}
v_lshrrev_b32 {t0}, 5, {lane}
v_lshl_add_u32 {vx}, {t0}, 3, {vx}
s_lshl_b32 {sx}, {srb}, 16
s_and_b32 {st0}, {sw}, 1
s_lshl_b32 {st0}, {st0}, 15
s_add_u32 {sx}, {sx}, {st0}
s_lshl_b32 {st0}, {sj}, 7
s_add_u32 {sx}, {sx}, {st0}
s_lshr_b32 {st0}, {sw}, 1
s_lshl_b32 {st0}, {st0}, 6
s_add_u32 {sx}, {sx}, {st0}""")
    for m in range(4): a(f"buffer_load_dwordx2 {xr[2*m:2*m+2]}, {vx}, {srd['x']}, {sx} offen offset:{m*16}")
    acc = V.alloc(64, 4); D = V.alloc(32, 4); of = V.alloc(8, 4); kz = V.alloc(8, 4)
    se6 = S.alloc(); a(f"s_mov_b32 {se6}, {f32(1e-6)}")
    units = [(hh, tt) for hh in range(8) for tt in range(2)]
    def cvt_kv(hh):
        b = (hh & 1) * 4
        for r in range(4): a(f"v_cvt_pk_bf16_f32 {kz[b+r]}, {kvr[hh*8+2*r]}, {kvr[hh*8+2*r+1]}")
    def omfma(n):
        hh, tt = units[n]
        if tt == 0: cvt_kv(hh)
        b = (hh & 1) * 4
        a(f"v_mfma_f32_32x32x16_bf16 {D[(n&1)*16:(n&1)*16+16]}, {kz[b:b+4]}, {pq[n*4:n*4+4]}, 0")
    def pmfma(n, ct):
        hh, tt = units[n]; d = acc[(2*ct+tt)*16:(2*ct+tt)*16+16]
        a(f"v_mfma_f32_32x32x16_bf16 {d}, {wo[(hh*2+ct)*4:(hh*2+ct)*4+4]}, {of[(n&1)*4:(n&1)*4+4]}, {d if hh else 0}")
    a.st(); omfma(0); a.st()
    for n in range(16):
        d = D[(n&1)*16:(n&1)*16+16]; o = of[(n&1)*4:(n&1)*4+4]
        if n + 1 < 16: omfma(n+1)
        if n > 0: pmfma(n-1, 0)
        a(f"v_add_f32 {d[8]}, {se6}, {d[8]}\nv_rcp_f32 {d[8]}, {d[8]}")
        if n > 0: pmfma(n-1, 1)
        for r in range(8): a(f"v_mul_f32 {d[r]}, {d[r]}, {d[8]}")
        for r in range(4): a(f"v_cvt_pk_bf16_f32 {o[r]}, {d[2*r]}, {d[2*r+1]}")
    pmfma(15, 0); pmfma(15, 1)
    a.st(); own = D[0:16]
    reduce_scatter(a, acc, own, kvr[0:48], sw, st0, vl16, t2, 0)
    a.st(); hb = of
    for m in range(4):
        for h in range(2):
            a(f"v_lshlrev_b32 {t0}, 16, {xr[2*m+h]}\nv_and_b32 {t1}, 0xffff0000, {xr[2*m+h]}")
            a(f"v_add_f32 {own[4*m+2*h]}, {own[4*m+2*h]}, {t0}\nv_add_f32 {own[4*m+2*h+1]}, {own[4*m+2*h+1]}, {t1}")
            a(f"v_cvt_pk_bf16_f32 {hb[2*m+h]}, {own[4*m+2*h]}, {own[4*m+2*h+1]}")
    vh = V.alloc(); shb = S.alloc()
    hf_addr(a, vh, shb, sw, sj, srb, st0, st1, lane, t0, t1)
    for m in range(2): a(f"buffer_store_dwordx4 {hb[4*m:4*m+4]}, {vh}, {srd['ws']}, {shb} offen offset:{m*256}")
    st = V.alloc(4); sones = S.alloc()
    a(f"s_mov_b32 {sones}, 0x3f803f80\nv_mov_b32 {st[0]}, 0\nv_mov_b32 {st[1]}, 0")
    for r in range(8):
        a(f"v_dot2_f32_bf16 {st[0]}, {hb[r]}, {sones}, {st[0]}\nv_dot2_f32_bf16 {st[1]}, {hb[r]}, {hb[r]}, {st[1]}")
    a(f"v_mov_b32 {st[2]}, {st[0]}\nv_mov_b32 {st[3]}, {st[1]}")
    a(f"v_permlane32_swap_b32 {st[2]}, {st[0]}\nv_permlane32_swap_b32 {st[3]}, {st[1]}")
    a(f"v_add_f32 {st[0]}, {st[0]}, {st[2]}\nv_add_f32 {st[1]}, {st[1]}, {st[3]}")
    a(f"""v_and_b32 {t0}, 31, {lane}
v_lshlrev_b32 {t0}, 5, {t0}
v_lshrrev_b32 {t1}, 5, {lane}
v_lshl_add_u32 {t0}, {t1}, 30, {t0}
s_lshl_b32 {st0}, {sj}, 1
s_lshr_b32 {st1}, {sw}, 1
s_add_u32 {st0}, {st0}, {st1}
s_and_b32 {st1}, {st0}, 3
s_lshl_b32 {st1}, {st1}, 3
s_lshr_b32 {st0}, {st0}, 2
s_lshl_b32 {st0}, {st0}, 11
s_add_u32 {st0}, {st0}, {st1}
s_and_b32 {st1}, {sw}, 1
s_lshl_b32 {st1}, {st1}, 10
s_add_u32 {st0}, {st0}, {st1}
s_lshl_b32 {st1}, {srb}, 13
s_add_u32 {st0}, {st0}, {st1}
s_add_u32 {st0}, {st0}, {WS_ST}
buffer_store_dwordx2 {st[0:2]}, {t0}, {srd['ws']}, {st0} offen""")
    a.st.dump(srd["ws"], S, V)
    a("L_end_k2:\ns_endpgm")
    return a.finish(), V.peak, A.peak

GA = -2 * 0.7978845608028654 * 0.044715 * LOG2E
GB = -2 * 0.7978845608028654 * LOG2E

def k3():
    a = Asm(); a.tag = 'k3'
    S = Regs('s', 4, 100); V = Regs('v', 1, 256); A = Regs('a', 0, 256)
    srd = prologue(a, S, ['ws', 'b1'])
    sw, sj, srb, st0, st1, lane, t0, t1, t2, t3, vl16 = ids(a, S, V)
    sc = [S.alloc() for _ in range(3)]; sval = S.alloc()
    a(f"""s_mul_i32 {sc[0]}, {sj}, 11
s_cmp_eq_u32 {sj}, 7
s_cselect_b32 {sc[0]}, 76, {sc[0]}
s_add_u32 {sc[0]}, {sc[0]}, {sw}
s_add_u32 {sc[1]}, {sc[0]}, 4
s_add_u32 {sc[2]}, {sc[0]}, 8
s_cmp_ge_u32 {sj}, 6
s_cselect_b32 {st0}, 2, 3
s_cmp_lt_u32 {sw}, {st0}
s_cselect_b32 {sval}, 0, {OOB}""")
    shs = S.alloc(); sldsw = S.alloc(); ssoff = S.alloc()
    a(f"s_lshl_b32 {shs}, {srb}, 16\ns_lshl_b32 {sldsw}, {sw}, 12\ns_add_u32 {shs}, {shs}, {sldsw}\ns_add_u32 {shs}, {shs}, {WS_H}")
    a("s_waitcnt lgkmcnt(0)")
    htok = []
    for tt in range(4):
        for i in range(4):
            a(f"s_add_u32 m0, {sldsw}, {tt*16384 + i*1024}\ns_add_u32 {ssoff}, {shs}, {tt*16384 + i*1024}")
            tk = a(f"buffer_load_dwordx4 {vl16}, {srd['ws']}, {ssoff} offen lds")
        htok.append(tk)
        if tt == 0:
            w1 = A.alloc(192)
            sw1 = [S.alloc() for _ in range(3)]
            for i in range(3):
                a(f"s_lshl_b32 {sw1[i]}, {sc[i]}, 14\ns_add_u32 {sw1[i]}, {sw1[i]}, {WS_W1}")
            a(f"s_add_u32 {sw1[2]}, {sw1[2]}, {sval}")
            for ks in range(16):
                for i in range(3):
                    if ks % 4 == 0 and ks: a(f"s_add_u32 {sw1[i]}, {sw1[i]}, 4096")
                    a(f"buffer_load_dwordx4 {w1[(ks*3+i)*4:(ks*3+i)*4+4]}, {vl16}, {srd['ws']}, {sw1[i]} offen offset:{(ks%4)*1024}")
    stv = V.alloc(32, 4); cs = V.alloc(48, 4); b1 = V.alloc(6, 2); b1f = V.alloc(12, 4)
    a(f"""v_lshrrev_b32 {t0}, 4, {lane}
v_and_b32 {t1}, 15, {lane}
v_lshlrev_b32 {t2}, 11, {t0}
v_lshl_add_u32 {t2}, {t1}, 5, {t2}
s_lshl_b32 {st0}, {srb}, 13
s_add_u32 {st0}, {st0}, {WS_ST}
v_lshlrev_b32 {t3}, 4, {t0}
v_lshlrev_b32 {t1}, 3, {t0}""")
    for tt in range(4):
        for q in range(2): a(f"buffer_load_dwordx4 {stv[tt*8+q*4:tt*8+q*4+4]}, {t2}, {srd['ws']}, {st0} offen offset:{tt*512 + q*16}")
    for i in range(3):
        for kq in range(4):
            a(f"s_lshl_b32 {st0}, {sc[i]}, 6\ns_add_u32 {st0}, {st0}, {WS_CS + kq*1408*4}")
            a(f"buffer_load_dwordx4 {cs[(i*4+kq)*4:(i*4+kq)*4+4]}, {t3}, {srd['ws']}, {st0} offen")
        a(f"s_lshl_b32 {st0}, {sc[i]}, 5")
        a(f"buffer_load_dwordx2 {b1[2*i:2*i+2]}, {t1}, {srd['b1']}, {st0} offen")
    a.st()
    for i in range(3):
        for kq in range(1, 4):
            for r in range(0, 4, 2): a(f"v_pk_add_f32 {cs[i*16+r:i*16+r+2]}, {cs[i*16+r:i*16+r+2]}, {cs[i*16+kq*4+r:i*16+kq*4+r+2]}")
        for h in range(2):
            a(f"v_lshlrev_b32 {b1f[i*4+2*h]}, 16, {b1[2*i+h]}\nv_and_b32 {b1f[i*4+2*h+1]}, 0xffff0000, {b1[2*i+h]}")
    rr = V.alloc(4); nm = V.alloc(4); seps = S.alloc()
    a(f"s_mov_b32 {seps}, {f32(1e-5)}")
    for tt in range(4):
        s = stv[tt*8:tt*8+8]
        a(f"v_pk_add_f32 {s[0:2]}, {s[0:2]}, {s[2:4]}\nv_pk_add_f32 {s[4:6]}, {s[4:6]}, {s[6:8]}\nv_pk_add_f32 {s[0:2]}, {s[0:2]}, {s[4:6]}")
        for sw_ in ('v_permlane16_swap_b32', 'v_permlane32_swap_b32'):
            a(f"v_mov_b32 {s[2]}, {s[0]}\nv_mov_b32 {s[3]}, {s[1]}\n{sw_} {s[2]}, {s[0]}\n{sw_} {s[3]}, {s[1]}")
            a(f"v_pk_add_f32 {s[0:2]}, {s[0:2]}, {s[2:4]}")
        a(f"""v_mul_f32 {s[0]}, {f32(1/512)}, {s[0]}
v_mul_f32 {s[1]}, {f32(1/512)}, {s[1]}
v_fma_f32 {s[1]}, -{s[0]}, {s[0]}, {s[1]}
v_max_f32 {s[1]}, 0, {s[1]}
v_add_f32 {s[2]}, {seps}, {s[1]}
v_rsq_f32 {s[2]}, {s[2]}
v_mul_f32 {s[3]}, {s[2]}, {s[2]}
v_fma_f32 {s[3]}, {s[3]}, {s[1]}, {seps}
v_rsq_f32 {s[3]}, {s[3]}
v_mul_f32 {rr[tt]}, {s[2]}, {s[3]}
v_mul_f32 {nm[tt]}, -{rr[tt]}, {s[0]}""")
    acc = V.alloc(24, 4)
    hf = V.alloc(16, 4)
    pk = V.alloc(12, 4)
    tm = V.alloc(8, 4)
    sga = S.alloc(); sgb = S.alloc()
    a(f"s_mov_b32 {sga}, {f32(GA)}\nv_mov_b32 {t0}, {f32(GB)}")
    shh = [S.alloc() for _ in range(3)]
    for i in range(3):
        a(f"s_mul_i32 {st0}, {srb}, {2*86*1024}\ns_lshl_b32 {shh[i]}, {sc[i]}, 10\ns_add_u32 {shh[i]}, {shh[i]}, {st0}\ns_add_u32 {shh[i]}, {shh[i]}, {WS_HH}")
    a(f"s_add_u32 {shh[2]}, {shh[2]}, {sval}")
    def epi(tt):
        o = []
        for i in range(3):
            d = acc[(tt&1)*12+i*4:(tt&1)*12+i*4+4]
            for r in range(4): o.append(f"v_fma_f32 {tm[r]}, {nm[tt]}, {cs[i*16+r]}, {b1f[i*4+r]}")
            for r in range(4): o.append(f"v_fma_f32 {d[r]}, {rr[tt]}, {d[r]}, {tm[r]}")
            for r in range(4): o.append(f"v_mul_f32 {tm[r]}, {d[r]}, {d[r]}")
            for r in range(4): o.append(f"v_fma_f32 {tm[r]}, {tm[r]}, {sga}, {t0}")
            for r in range(4): o.append(f"v_mul_f32 {tm[r]}, {tm[r]}, {d[r]}")
            for r in range(4): o.append(f"v_exp_f32 {tm[r]}, {tm[r]}")
            for r in range(4): o.append(f"v_add_f32 {tm[r]}, 1.0, {tm[r]}")
            for r in range(4): o.append(f"v_rcp_f32 {tm[r]}, {tm[r]}")
            for r in range(4): o.append(f"v_mul_f32 {d[r]}, {d[r]}, {tm[r]}")
            for h in range(2): o.append(f"v_cvt_pk_bf16_f32 {pk[i*4+(tt&1)*2+h]}, {d[2*h]}, {d[2*h+1]}")
            if tt & 1:
                for h in range(2): o.append(f"v_permlane16_swap_b32 {pk[i*4+h]}, {pk[i*4+2+h]}")
                if tt == 3: o.append(f"s_add_u32 {shh[i]}, {shh[i]}, {86*1024}")
                o.append(f"buffer_store_dwordx4 {pk[i*4:i*4+4]}, {vl16}, {srd['ws']}, {shh[i]} offen")
        return o
    def rd(n): return f"ds_read_b128 {hf[(n&3)*4:(n&3)*4+4]}, {vl16} offset:{n*1024}"
    for tt in range(4):
        a.st(); a.wait(htok[tt]); a("s_barrier"); a.st()
        for k in range(3): a(rd(tt*16 + k))
        e = epi(tt-1) if tt else []
        per = -(-len(e) // 46) if e else 0
        ei = 0
        for ks in range(16):
            n = tt*16 + ks
            for i in range(3):
                d = acc[(tt&1)*12+i*4:(tt&1)*12+i*4+4]
                a(f"v_mfma_f32_16x16x32_bf16 {d}, {w1[(ks*3+i)*4:(ks*3+i)*4+4]}, {hf[(n&3)*4:(n&3)*4+4]}, {d if ks else 0}")
                if i == 0 and ks + 3 < 16: a(rd(n + 3))
                if ks*3 + i >= 2:
                    for x in e[ei:ei+per]: a(x)
                    ei += per
        for x in e[ei:]: a(x)
    a.st()
    for x in epi(3): a(x)
    a.st()
    a.st.dump(srd["ws"], S, V)
    a("L_end_k3:\ns_endpgm")
    return a.finish(), V.peak, A.peak

def k4():
    a = Asm(); a.tag = 'k4'
    S = Regs('s', 4, 100); V = Regs('v', 1, 256); A = Regs('a', 0, 256)
    srd = prologue(a, S, ['ws', 'b2', 'out'])
    sw, sj, srb, st0, st1, lane, t0, t1, t2, t3, vl16 = ids(a, S, V)
    sw2, shh, shh1, sval = [S.alloc() for _ in range(4)]
    a(f"""s_mul_i32 {sw2}, {sj}, {88*2048}
s_lshl_b32 {st0}, {sw}, 11
s_add_u32 {sw2}, {sw2}, {st0}
s_add_u32 {sw2}, {sw2}, {WS_W2}
s_mul_i32 {shh}, {srb}, {2*86*1024}
s_lshl_b32 {st0}, {sw}, 10
s_add_u32 {shh}, {shh}, {st0}
s_add_u32 {shh}, {shh}, {WS_HH}
s_add_u32 {shh1}, {shh}, {86*1024}
s_cmp_lt_u32 {sw}, 2
s_cselect_b32 {sval}, 0, {OOB}""")
    w2 = A.alloc(176); acc = A.alloc(64); hh = V.alloc(176, 4)
    vh = V.alloc(); shb = S.alloc(); hb = V.alloc(8, 4); b2 = V.alloc(8, 4)
    hf_addr(a, vh, shb, sw, sj, srb, st0, st1, lane, t0, t1)
    a("s_waitcnt lgkmcnt(0)")
    for n in range(22):
        if n == 21: a(f"s_add_u32 {shh}, {shh}, {sval}\ns_add_u32 {shh1}, {shh1}, {sval}")
        for ct in range(2): a(f"buffer_load_dwordx4 {w2[(n*2+ct)*4:(n*2+ct)*4+4]}, {vl16}, {srd['ws']}, {sw2} offen offset:{ct*1024}")
        a(f"buffer_load_dwordx4 {hh[n*8:n*8+4]}, {vl16}, {srd['ws']}, {shh} offen")
        a(f"buffer_load_dwordx4 {hh[n*8+4:n*8+8]}, {vl16}, {srd['ws']}, {shh1} offen")
        a(f"s_add_u32 {sw2}, {sw2}, 8192\ns_add_u32 {shh}, {shh}, 4096\ns_add_u32 {shh1}, {shh1}, 4096")
        if n == 14:
            for m in range(2): a(f"buffer_load_dwordx4 {hb[4*m:4*m+4]}, {vh}, {srd['ws']}, {shb} offen offset:{m*256}")
            a(f"""v_lshrrev_b32 {t0}, 5, {lane}
v_lshlrev_b32 {t0}, 3, {t0}
s_lshl_b32 {st0}, {sj}, 7
s_lshr_b32 {st1}, {sw}, 1
s_lshl_b32 {st1}, {st1}, 6
s_add_u32 {st0}, {st0}, {st1}""")
            for m in range(4): a(f"buffer_load_dwordx2 {b2[2*m:2*m+2]}, {t0}, {srd['b2']}, {st0} offen offset:{m*16}")
        if n in (12, 13, 21): a.st()
        if n >= 12:
            k = n - 12
            for nn in ([k] if n < 21 else range(k, 22)):
                for ct in range(2):
                    for tt in range(2):
                        d = acc[(2*ct+tt)*16:(2*ct+tt)*16+16]
                        a(f"v_mfma_f32_32x32x16_bf16 {d}, {w2[(nn*2+ct)*4:(nn*2+ct)*4+4]}, {hh[nn*8+tt*4:nn*8+tt*4+4]}, {d if nn else 0}")
    a.st(); own = hh[0:16]
    reduce_scatter(a, acc, own, hh[16:64], sw, st0, vl16, t2, 0)
    a.st(); ob = hh[64:72]
    for m in range(4):
        for h in range(2):
            for src in (hb, b2):
                a(f"v_lshlrev_b32 {t0}, 16, {src[2*m+h]}\nv_and_b32 {t1}, 0xffff0000, {src[2*m+h]}")
                a(f"v_add_f32 {own[4*m+2*h]}, {own[4*m+2*h]}, {t0}\nv_add_f32 {own[4*m+2*h+1]}, {own[4*m+2*h+1]}, {t1}")
            a(f"v_cvt_pk_bf16_f32 {ob[2*m+h]}, {own[4*m+2*h]}, {own[4*m+2*h+1]}")
    for p in range(2):
        for h in range(2): a(f"v_permlane32_swap_b32 {ob[4*p+h]}, {ob[4*p+2+h]}")
    a(f"""v_and_b32 {t0}, 31, {lane}
v_lshlrev_b32 {t2}, 10, {t0}
v_lshrrev_b32 {t0}, 5, {lane}
v_lshl_add_u32 {t2}, {t0}, 4, {t2}
s_lshl_b32 {shb}, {srb}, 16
s_and_b32 {st0}, {sw}, 1
s_lshl_b32 {st0}, {st0}, 15
s_add_u32 {shb}, {shb}, {st0}
s_lshl_b32 {st0}, {sj}, 7
s_add_u32 {shb}, {shb}, {st0}
s_lshr_b32 {st0}, {sw}, 1
s_lshl_b32 {st0}, {st0}, 6
s_add_u32 {shb}, {shb}, {st0}""")
    for p in range(2): a(f"buffer_store_dwordx4 {ob[4*p:4*p+4]}, {t2}, {srd['out']}, {shb} offen offset:{p*32}")
    a.st.dump(srd["ws"], S, V)
    a("L_end_k4:\ns_endpgm")
    return a.finish(), V.peak, A.peak

def assemble(kernels, extra_empty=0):
    hdr = open('cdna_kernels/' + NAME + '.s.ref').read().split('; Override')[0]
    o = hdr
    for (n, fn, lds) in kernels: o += f"; @launch kernel={n}_kernel grid=(256,1,1) block=(256,1,1) lds={lds}\n"
    o += '.amdgcn_target "amdgcn-amd-amdhsa--gfx950"\n.text\n'
    d = '.section .rodata,"a"\n'
    done = set()
    for (n, fn, lds) in kernels:
        if n in done: continue
        done.add(n)
        body, v, ag = fn()
        o += f".globl {n}_kernel\n.p2align 8\n.type {n}_kernel,@function\n{n}_kernel:\n{body}"
        acc = (v + 3) // 4 * 4
        d += ".p2align 6\n" + descriptor(n + '_kernel', acc + ag, acc)
        print(n, 'vgpr', v, 'agpr', ag, 'lines', body.count('\n'), file=sys.stderr)
    return o + d

if __name__ == '__main__':
    STAMP = len(sys.argv) > 2
    ks = [('k1', k1, 163840), ('k2', k2, 65536), ('k3', k3, 65536), ('k4', k4, 65536)]
    open(sys.argv[1] if len(sys.argv) > 1 else 'v1.s', 'w').write(assemble(ks))
```

```python
import gen1 as G
from asmlib import *
base=[('k1', G.k1, 163840), ('k2', G.k2, 65536), ('k3', G.k3, 65536), ('k4', G.k4, 65536)]
open('../cdna_kernels/va.s','w').write(G.assemble(base))
G.CODEPF=26000
open('../cdna_kernels/vb.s','w').write(G.assemble(base))
```

```python
import gen1 as G
from asmlib import *
G.STAMP=True
def mk(kend, ks=0, col_s=56, col_e=60):
    def k5():
        a=Asm()
        a(f"""s_cmp_ge_u32 s2, 1
s_cbranch_scc1 L_end_k5
s_load_dwordx2 s[4:5], s[0:1], 80
s_mov_b32 s6, {G.SZ['ws']}
s_mov_b32 s7, 0x00020000
v_lshlrev_b32 v1, 6, v0
s_mov_b32 s8, {G.WS_DBG + ks*16384}
s_mov_b32 s9, {G.WS_DBG + kend*16384}
s_waitcnt lgkmcnt(0)
buffer_load_dword v2, v1, s[4:7], s8 offen offset:{col_s}
buffer_load_dword v3, v1, s[4:7], s9 offen offset:{col_e}
v_lshlrev_b32 v4, 2, v0
s_waitcnt vmcnt(0)
ds_write_b32 v4, v2
ds_write_b32 v4, v3 offset:1024
s_waitcnt lgkmcnt(0)
s_barrier
s_mov_b32 s10, 0
v_mov_b32 v5, 0
L_k5_loop:
ds_read_b32 v6, v5
ds_read_b32 v7, v5 offset:1024
s_waitcnt lgkmcnt(0)
v_min_u32 v2, v2, v6
v_max_u32 v3, v3, v7
v_add_u32 v5, 4, v5
s_add_u32 s10, s10, 1
s_cmp_lt_u32 s10, 256
s_cbranch_scc1 L_k5_loop
v_sub_u32 v2, v3, v2
s_nop 1
v_readfirstlane_b32 s11, v2
s_nop 3
s_min_u32 s11, s11, 10000
s_mul_i32 s11, s11, 10
s_memrealtime s[12:13]
s_waitcnt lgkmcnt(0)
L_k5_spin:
s_memrealtime s[14:15]
s_waitcnt lgkmcnt(0)
s_sub_u32 s16, s14, s12
s_cmp_lt_u32 s16, s11
s_cbranch_scc1 L_k5_spin
L_end_k5:
s_endpgm""")
        return a.finish(), 16, 0
    return k5
base=[('k1', G.k1, 163840), ('k2', G.k2, 65536), ('k3', G.k3, 65536), ('k4', G.k4, 65536)]
open('../cdna_kernels/va.s','w').write(G.assemble(base+[('k5',mk(0,0,56,56),4096)]))
open('../cdna_kernels/vb.s','w').write(G.assemble(base+[('k5',mk(0),4096)]))
open('../cdna_kernels/vc.s','w').write(G.assemble(base+[('k5',mk(3),4096)]))
open('../cdna_kernels/vd.s','w').write(G.assemble(base+[('k5',mk(3,1),4096)]))
open('../cdna_kernels/ve.s','w').write(G.assemble(base))
```

```python
from asmlib import *
import struct, sys
def f32(x): return '0x%08x' % struct.unpack('<I', struct.pack('<f', x))[0]
NAME = 'sequential_preLN__linear_attn_block__mixer_channel_mlp__prompt'
WS_PQ = 0
WS_W1 = WS_PQ + (2 << 20)
WS_W2 = WS_W1 + 88 * 16384
WS_CS = WS_W2 + 8 * 88 * 2048
WS_KV = WS_CS + 32768
WS_H  = WS_KV + 65536
WS_ST = WS_H + (2 << 20)
WS_HH = WS_ST + 32 * 16384
WS_FL = WS_HH + 32 * 2 * 86 * 1024
WS_PF = WS_FL + 32 * 4096
WS_END = WS_PF + 32768
WS_DBG = WS_END
OOB = 0x7ff00000
LOG2E = 1.4426950408889634; LN2 = 0.6931471805599453
GA = -2 * 0.7978845608028654 * 0.044715 * LOG2E
GB = -2 * 0.7978845608028654 * LOG2E
KA = dict(x=0, wqkv=8, wo=16, w1=32, b1=40, w2=48, b2=56, out=64, dbg=72, ws=80)
SZ = dict(x=2048*512*2, wqkv=512*1536*2, wo=512*512*2, w1=512*1376*2, b1=1376*2, w2=1376*512*2, b2=512*2,
          out=2048*512*2, dbg=256, ws=WS_END + 16384)
DPP_X1 = 'quad_perm:[1,0,3,2] row_mask:0xf bank_mask:0xf'
DPP_X2 = 'quad_perm:[2,3,0,1] row_mask:0xf bank_mask:0xf'
DPP_HM = 'row_half_mirror row_mask:0xf bank_mask:0xf'
SPIN = 0x40000
STAMPS = None
CODE_BYTES = 0

def v(b, n=1): return R('v', b, n)
def ag(b, n=1): return R('a', b, n)

class K:
    def __init__(self):
        self.a = Asm(); self.S = Regs('s', 4, 102); self.nlab = 0
        self.stamped = []
    def emit(self, x):
        if callable(x): return x()
        return self.a(x)
    def weave(self, main, side, start=0, every=1, per=1):
        side = list(side); k = 0
        for i, m in enumerate(main):
            self.emit(m)
            if i >= start and (i - start) % every == 0:
                for _ in range(per):
                    if k < len(side): self.emit(side[k]); k += 1
        for x in side[k:]: self.emit(x)
    def stamp(self, name):
        if STAMPS and name in STAMPS:
            n = len(self.stamped); self.stamped.append(name)
            self.a.hidden(f"s_memtime {self.str_[2*n:2*n+2]}")
    def check(self, vreg, cmp_, mask, reload, st0, st1):
        a = self.a; self.nlab += 1; n = self.nlab
        a(cmp_)
        a(f"s_cmp_eq_u32 vcc_lo, {mask}\ns_cbranch_scc1 L_ok{n}")
        a.hidden(f"""s_mov_b32 {st1}, 0
L_spin{n}:
{reload}
s_add_u32 {st1}, {st1}, 1
s_waitcnt vmcnt(0)
{cmp_}
s_cmp_ge_u32 {st1}, {SPIN}
s_cbranch_scc1 L_ok{n}
s_nop 1
s_cmp_eq_u32 vcc_lo, {mask}
s_cbranch_scc0 L_spin{n}
L_ok{n}:""")

def kernel():
    k = K(); a = k.a; S = k.S
    a("s_cmp_ge_u32 s2, 256\ns_cbranch_scc1 L_end")
    if STAMPS:
        k.str_ = S.alloc(24, 4); rt = S.alloc(4, 4)
        a.hidden(f"s_memrealtime {rt[0:2]}")
        STAMPS.insert(0, 'start') if STAMPS[0] != 'start' else None
    k.stamp('start')
    srd = {}
    for n in ['x', 'wqkv', 'ws', 'dbg', 'wo', 'b1', 'b2', 'out']:
        srd[n] = S.alloc(4); a(f"s_load_dwordx2 {srd[n][0:2]}, s[0:1], {KA[n]}")
    psrd = S.alloc(4)
    st0, st1, ssoff = [S.alloc() for _ in range(3)]
    a(f"s_cmp_lt_u32 s2, 88\ns_cselect_b32 {st0}, {KA['w1']}, {KA['w2']}\ns_load_dwordx2 {psrd[0:2]}, s[0:1], {st0}")
    for n in srd: a(f"s_mov_b32 {srd[n][2]}, {SZ[n]}\ns_mov_b32 {srd[n][3]}, 0x00020000")
    a(f"s_cmp_lt_u32 s2, 176\ns_cselect_b32 {psrd[2]}, {SZ['w1']}, 0\ns_mov_b32 {psrd[3]}, 0x00020000")
    ws = srd['ws']
    sw, sj, srb, shead = [S.alloc() for _ in range(4)]
    lane, vl16, t0, t1, t2, t3 = v(1), v(2), v(4), v(5), v(6), v(7)
    vxd, vwd = v(8), v(9)
    a(f"""v_and_b32 {lane}, 63, v0
v_lshrrev_b32 {t0}, 6, v0
v_readfirstlane_b32 {sw}, {t0}
s_bfe_u32 {sj}, s2, 0x30003
s_and_b32 {srb}, s2, 7
s_lshl_b32 {srb}, {srb}, 2
s_lshr_b32 {st0}, s2, 6
s_add_u32 {srb}, {srb}, {st0}
v_lshlrev_b32 {vl16}, 4, {lane}
v_lshrrev_b32 {t0}, 3, {lane}
v_and_b32 {t1}, 7, {lane}
v_xor_b32 {t2}, {t0}, {t1}
v_lshlrev_b32 {t2}, 4, {t2}
v_lshl_add_u32 {vxd}, {t0}, 10, {t2}
s_lshl_b32 {shead}, {sj}, 2
s_add_u32 {shead}, {shead}, {sw}""")
    a(f"""v_bfe_u32 {t2}, {lane}, 4, 1
s_and_b32 {st0}, {sw}, 1
s_lshl_b32 {st0}, {st0}, 1
v_or_b32 {t2}, {st0}, {t2}
v_lshrrev_b32 {t3}, 1, {t1}
v_xor_b32 {t2}, {t2}, {t3}
v_lshlrev_b32 {t2}, 5, {t2}
v_and_b32 {t3}, 1, {lane}
v_lshl_add_u32 {t2}, {t3}, 4, {t2}
v_mul_u32_u24 {vwd}, 3072, {t0}
v_add_u32 {vwd}, {vwd}, {t2}""")
    sxb, swb, sw10, sw11 = [S.alloc() for _ in range(4)]
    a(f"""s_lshl_b32 {sxb}, {srb}, 16
s_lshl_b32 {st0}, {sw}, 14
s_add_u32 {sxb}, {sxb}, {st0}
s_mul_i32 {swb}, {sw}, {8*3072}
s_lshl_b32 {st0}, {sj}, 7
s_add_u32 {swb}, {swb}, {st0}
s_lshl_b32 {sw10}, {sw}, 10
s_lshl_b32 {sw11}, {sw}, 11""")
    WB = 65536; PB = WB + 5 * 16384
    tok = {}
    def dma_x(c, o):
        def f():
            a(f"s_add_u32 m0, {sw11}, {c*8192 + o*1024}\ns_add_u32 {ssoff}, {sxb}, {o*8192 + c*128}")
            tok['x', c] = a(f"buffer_load_dwordx4 {vxd}, {srd['x']}, {ssoff} offen lds")
        return f
    def dma_w(key, ks, part, ldsoff):
        def f():
            a(f"s_add_u32 m0, {sw10}, {ldsoff}\ns_add_u32 {ssoff}, {swb}, {ks*32*3072 + part*1024}")
            tok[key] = a(f"buffer_load_dwordx4 {vwd}, {srd['wqkv']}, {ssoff} offen lds")
        return f
    def kv_lds(ks, p): return WB + ((ks // 2) % 5) * 16384 + (ks & 1) * 8192 + p * 4096
    QSLOT = [3, 4, 0, 1]
    def q_lds(ks): return WB + QSLOT[ks // 4] * 16384 + (ks & 3) * 4096
    X = lambda c: [dma_x(c, 0), dma_x(c, 1)]
    W = lambda c: [dma_w(('w', c), ks, 1 + p, kv_lds(ks, p)) for ks in (2*c, 2*c+1) for p in (0, 1)]
    Q = lambda n: [dma_w(('q', n), ks, 0, q_lds(ks)) for ks in range(4*n, 4*n+4)]
    spsrc, spitch, sdst, scs = [S.alloc() for _ in range(4)]
    vp = v(10, 2); vxa = v(12, 2); vsa = v(14, 2); vwa = v(16, 2); vxr = v(18, 2)
    pa = v(32, 8)
    seg1 = f"""s_cmp_lt_u32 s2, 88
s_cbranch_scc0 L_pw2
s_mov_b32 {spitch}, 2752
s_and_b32 {st0}, s2, 3
s_lshr_b32 {st1}, s2, 2
s_mul_i32 {spsrc}, {st0}, {128*2752}
s_lshl_b32 {sdst}, {st1}, 7
s_add_u32 {spsrc}, {spsrc}, {sdst}
s_lshl_b32 {sdst}, {st1}, 2
s_add_u32 {sdst}, {sdst}, {sw}
s_lshl_b32 {scs}, {sdst}, 6
s_lshl_b32 {sdst}, {sdst}, 14
s_lshl_b32 {st1}, {st0}, 12
s_add_u32 {sdst}, {sdst}, {st1}
s_add_u32 {sdst}, {sdst}, {WS_W1}
s_mul_i32 {st0}, {st0}, {1408*4}
s_add_u32 {scs}, {scs}, {st0}
s_add_u32 {scs}, {scs}, {WS_CS}
v_bfe_u32 {t0}, {lane}, 4, 1
v_lshlrev_b32 {t1}, 11, {t0}
v_bfe_u32 {t2}, {lane}, 3, 1
v_lshl_or_b32 {t0}, {t2}, 1, {t0}
v_xor_b32 {t0}, {sw}, {t0}
v_lshl_add_u32 {t0}, {t0}, 5, {t1}
v_lshrrev_b32 {t1}, 5, {lane}
v_lshl_add_u32 {t0}, {t1}, 9, {t0}
v_bfe_u32 {t1}, {lane}, 2, 2
v_lshl_add_u32 {t0}, {t1}, 7, {t0}
v_and_b32 {t1}, 3, {lane}
v_lshl_add_u32 {t0}, {t1}, 3, {t0}
""" + "".join(f"v_add_u32 {pa[2*n]}, {PB + n*4096}, {t0}\nv_add_u32 {pa[2*n+1]}, {PB + n*4096 + 1024}, {t0}\n" for n in range(4)) + f"""s_branch L_pd
L_pw2:
s_mov_b32 {spitch}, 1024
s_mov_b32 {scs}, {OOB}
s_sub_u32 {st0}, s2, 88
s_lshr_b32 {st1}, {st0}, 3
s_and_b32 {st0}, {st0}, 7
s_lshl_b32 {spsrc}, {st1}, 17
s_lshl_b32 {sdst}, {st0}, 7
s_add_u32 {spsrc}, {spsrc}, {sdst}
s_mul_i32 {sdst}, {st0}, {88*2048}
s_lshl_b32 {st1}, {st1}, 14
s_add_u32 {sdst}, {sdst}, {st1}
s_lshl_b32 {st1}, {sw}, 12
s_add_u32 {sdst}, {sdst}, {st1}
s_add_u32 {sdst}, {sdst}, {WS_W2}
s_cmp_lt_u32 s2, 176
s_cselect_b32 {sdst}, {sdst}, {OOB}
v_lshrrev_b32 {t0}, 5, {lane}
v_lshlrev_b32 {t0}, 10, {t0}
v_bfe_u32 {t1}, {lane}, 2, 2
v_lshl_add_u32 {t0}, {t1}, 7, {t0}
v_bfe_u32 {t1}, {lane}, 3, 1
v_lshlrev_b32 {t1}, 1, {t1}
v_bfe_u32 {t2}, {lane}, 4, 1
v_or_b32 {t1}, {t1}, {t2}
v_lshl_add_u32 {t0}, {t1}, 5, {t0}
v_and_b32 {t1}, 3, {lane}
v_lshl_add_u32 {t0}, {t1}, 3, {t0}
s_lshl_b32 {st1}, {sw}, 12
v_add_u32 {t0}, {st1}, {t0}
""" + "".join(f"v_xor_b32 {t1}, {(n&1)*64 + (n>>1)*32}, {t0}\nv_add_u32 {pa[2*n]}, {PB + (n>>1)*2048}, {t1}\nv_add_u32 {pa[2*n+1]}, {PB + (n>>1)*2048 + 512}, {t1}\n" for n in range(4)) + f"""L_pd:
s_mul_i32 {st0}, {sw}, {spitch}
s_lshl_b32 {st0}, {st0}, 5
s_add_u32 {spsrc}, {spsrc}, {st0}
v_lshrrev_b32 {t0}, 3, {lane}
v_mul_lo_u32 {t0}, {t0}, {spitch}
v_bfe_u32 {t1}, {lane}, 4, 1
v_lshlrev_b32 {t1}, 1, {t1}
v_bfe_u32 {t2}, {lane}, 1, 2
v_xor_b32 {t1}, {t1}, {t2}
v_lshlrev_b32 {t1}, 5, {t1}
v_and_b32 {t2}, 1, {lane}
v_lshl_add_u32 {t1}, {t2}, 4, {t1}
v_add_u32 {vp[0]}, {t0}, {t1}
v_xor_b32 {t1}, 32, {t1}
v_add_u32 {vp[1]}, {t0}, {t1}"""
    def dma_p(i):
        def f():
            a(f"s_lshl_b32 {st0}, {sw}, 12\ns_add_u32 m0, {st0}, {PB + i*1024}\ns_mul_i32 {st0}, {spitch}, {8*i}\ns_add_u32 {ssoff}, {spsrc}, {st0}")
            tok['p'] = a(f"buffer_load_dwordx4 {vp[i>>1]}, {psrd}, {ssoff} offen lds")
        return f
    seg2 = f"""v_lshrrev_b32 {t0}, 4, {lane}
v_and_b32 {t1}, 7, {lane}
v_xor_b32 {t2}, {t0}, {t1}
v_lshlrev_b32 {t2}, 4, {t2}
v_lshl_add_u32 {t2}, {t1}, 7, {t2}
v_bfe_u32 {t3}, {lane}, 3, 1
v_lshl_add_u32 {vxa[0]}, {t3}, 10, {t2}
v_xor_b32 {vxa[1]}, 64, {vxa[0]}
v_add_u32 {vsa[0]}, {sw11}, {vxa[0]}
v_add_u32 {vsa[1]}, {sw11}, {vxa[1]}
v_and_b32 {t2}, 1, {t0}
v_lshl_or_b32 {t2}, {t2}, 1, {t3}
v_xor_b32 {t2}, {sw}, {t2}
v_lshlrev_b32 {t2}, 5, {t2}
v_and_b32 {t3}, 3, {lane}
v_lshl_add_u32 {t2}, {t3}, 3, {t2}
v_bfe_u32 {t3}, {lane}, 2, 2
v_lshl_add_u32 {t3}, {t0}, 3, {t3}
v_lshl_add_u32 {t2}, {t3}, 7, {t2}
v_add_u32 {vwa[0]}, {WB}, {t2}
v_add_u32 {vwa[1]}, {WB + 49152}, {t2}"""
    seg3 = f"""s_lshl_b32 {st0}, {sw}, 1
v_xor_b32 {t2}, {st0}, {t1}
v_lshlrev_b32 {t2}, 4, {t2}
v_lshl_add_u32 {t2}, {t1}, 7, {t2}
v_bfe_u32 {t3}, {lane}, 3, 2
v_lshl_add_u32 {t2}, {t3}, 10, {t2}
v_lshrrev_b32 {t3}, 5, {lane}
v_lshl_add_u32 {t2}, {t3}, 3, {t2}
s_lshl_b32 {st0}, {sj}, 13
v_add_u32 {vxr[0]}, {st0}, {t2}
v_xor_b32 {vxr[1]}, 16, {vxr[0]}"""
    ones = v(40, 4); vroot = v(20); vrootA = v(21); vz = v(44, 4)
    sones = S.alloc()
    seg4 = f"s_mov_b32 {sones}, 0x3f803f80\n" + "".join(f"v_mov_b32 {ones[r]}, {sones}\n" for r in range(4)) + f"""v_lshlrev_b32 {vrootA}, 5, {lane}"""
    a("s_waitcnt lgkmcnt(0)"); k.stamp('karg')
    for f in X(0) + W(0): f()
    skvb = S.alloc(); sflb = S.alloc()
    a(f"""s_lshl_b32 {skvb}, {shead}, 11
s_add_u32 {skvb}, {skvb}, {WS_KV}
s_lshl_b32 {sflb}, {srb}, 12
s_add_u32 {sflb}, {sflb}, {WS_FL}""")
    for r in range(4): a(f"v_mov_b32 {vz[r]}, 0")
    a(f"s_cmp_ge_u32 s2, 8\ns_cbranch_scc1 L_nozero")
    a.hidden(f"""s_lshl_b32 {st0}, s2, 2
s_add_u32 {st0}, {st0}, {sw}
s_lshl_b32 {st0}, {st0}, 11
s_add_u32 {st0}, {st0}, {WS_KV}
buffer_store_dwordx4 {vz}, {vl16}, {ws}, {st0} offen sc1
buffer_store_dwordx4 {vz}, {vl16}, {ws}, {st0} offen offset:1024 sc1
s_mul_i32 {st0}, s2, {22*128}
s_lshl_b32 {st1}, {sw}, 28
s_add_u32 {st0}, {st0}, {st1}
s_add_u32 {st0}, {st0}, {WS_PF}
v_cmp_gt_u32 vcc, 22, {lane}
v_lshlrev_b32 {t0}, 7, {lane}
v_mov_b32 {t1}, {OOB >> 1}
v_cndmask_b32 {t0}, {t1}, {t0}, vcc
buffer_store_dword {vz[0]}, {t0}, {ws}, {st0} offen sc1
L_nozero:""")
    a(f"s_cmp_lg_u32 {sw}, 1\ns_cbranch_scc1 L_nofl")
    a.hidden(f"""s_lshl_b32 {st0}, {sj}, 7
s_add_u32 {st0}, {st0}, {sflb}
v_lshrrev_b32 {t0}, 2, {lane}
v_lshlrev_b32 {t0}, 26, {t0}
v_lshl_add_u32 {t0}, {lane}, 10, {t0}
buffer_store_dword {vz[0]}, {t0}, {ws}, {st0} offen sc1
L_nofl:""")
    if CODE_BYTES:
        a(f"s_cmp_lg_u32 {sw}, 2\ns_cbranch_scc1 L_nopf")
        a.hidden(f"""s_getpc_b64 {R('s', spsrc.b & ~1, 2) if False else 'vcc'}
s_lshr_b32 {st0}, s2, 3
s_lshl_b32 {st0}, {st0}, 10
v_and_b32 {t0}, 7, {lane}
v_lshl_add_u32 {t0}, {t0}, 7, {st0}
v_min_u32 {t0}, {CODE_BYTES - 1024}, {t0}
v_mov_b32 {t1}, vcc_hi
v_add_co_u32 {t0}, vcc, vcc_lo, {t0}
v_addc_co_u32 {t1}, vcc, 0, {t1}, vcc
global_load_dword {t2}, v[{t0.b}:{t1.b}], off
s_waitcnt vmcnt(63)
L_nopf:""")
    for f in X(1) + W(1): f()
    a(seg1)
    for f in X(2) + X(3): f()
    a(seg2)
    for f in W(2): f()
    a(seg3); a(seg4)
    for f in [dma_p(i) for i in range(4)] + X(4) + X(5) + W(3): f()
    k.stamp('issued')
    xf = ag(0, 256)
    def xfrag(ks, tt): return xf[(ks*4+tt)*4:(ks*4+tt)*4+4]
    wf = v(48, 32)
    def wfrag(ks, p): b = ((ks // 2) & 1) * 16 + (ks & 1) * 8 + p * 4; return wf[b:b+4]
    def tr(dst, off):
        off -= WB
        base = vwa[0] if off < 49152 else vwa[1]
        if off >= 49152: off -= 49152
        return [f"ds_read_b64_tr_b16 {dst[0:2]}, {base} offset:{off}", f"ds_read_b64_tr_b16 {dst[2:4]}, {base} offset:{off+512}"]
    def reads(c):
        o = []
        for ks in (2*c, 2*c+1):
            for p in (0, 1): o += tr(wfrag(ks, p), kv_lds(ks, p))
            for tt in range(4): o.append(f"ds_read_b128 {xfrag(ks, tt)}, {vxa[ks&1]} offset:{c*8192 + tt*2048}")
        return o
    sf = v(80, 16); acck = v(96, 16); accv = v(112, 16); accq = v(128, 16); csk = v(144, 4); csv = v(148, 4); csq = v(152, 4)
    rsum = v(156, 4); gram = v(160, 4); pf = v(164, 16); dcs = v(180, 4)
    nmv = v(184, 16); rlv = v(200, 16); rv = v(216, 16); qs = v(232, 8); tmp = v(240, 16)
    xres = v(24, 8)
    a.wait(tok['w', 0]); a("s_barrier"); k.stamp('first')
    for r in reads(0): a(r)
    SB = PB
    KS = PB + 2048
    stats_at = {0: (0, 1), 1: (2, 3), 2: (4, 5), 4: (6, 7)}
    smA = S.alloc(2); smC = S.alloc(2); seps = S.alloc()
    vpfA = v(22); vpf = v(23)
    for c in range(8):
        if c < 7: a.wait(tok['w', c+1])
        if c == 7: a.wait(tok['ps'])
        a("s_waitcnt lgkmcnt(0)\ns_barrier")
        if c == 0:
            a(f"s_cmp_ge_u32 s2, 8\ns_cbranch_scc1 L_noroot\ns_cmp_lg_u32 {sw}, 0\ns_cbranch_scc1 L_noroot")
            a.hidden(f"""s_lshl_b32 {st0}, s2, 5
v_lshlrev_b32 {t0}, 24, {lane}
v_mov_b32 {t1}, 1
buffer_store_dword {t1}, {t0}, {srd['dbg']}, {st0} offen sc1
L_noroot:""")
        if c == 7:
            k.check(vroot, f"v_cmp_ne_u32 vcc, 0, {vroot}", 0xff, f"buffer_load_dword {vroot}, {vrootA}, {srd['dbg']}, 0 offen sc1", st0, st1)
            a(f"s_cmp_lg_u32 {sw}, 3\ns_cbranch_scc1 L_nopfl\ns_cmp_ge_u32 s2, 176\ns_cbranch_scc1 L_nopfl")
            a.hidden(f"""s_lshl_b32 {st0}, s2, 7
s_add_u32 {st0}, {st0}, {WS_PF}
v_lshlrev_b32 {t0}, 24, {lane}
v_mov_b32 {t1}, 1
buffer_store_dword {t1}, {t0}, {ws}, {st0} offen sc1
L_nopfl:""")
        mf = []
        for ks in (2*c, 2*c+1):
            for tt in range(4):
                for p, acc in ((0, acck), (1, accv)):
                    d = acc[tt*4:tt*4+4]
                    mf.append(f"v_mfma_f32_16x16x32_bf16 {d}, {xfrag(ks, tt)}, {wfrag(ks, p)}, {d if ks else 0}")
            for p, acc in ((0, csk), (1, csv)):
                mf.append(f"v_mfma_f32_16x16x32_bf16 {acc}, {ones}, {wfrag(ks, p)}, {acc if ks else 0}")
        side = []
        if c in stats_at:
            for i, cc in enumerate(stats_at[c]):
                for p in range(2): side.append(f"ds_read_b128 {sf[(2*i+p)*4:(2*i+p)*4+4]}, {vsa[p]} offset:{cc*8192}")
            for i in range(4):
                first = (c == 0 and i == 0)
                mf.append(f"v_mfma_f32_16x16x32_bf16 {rsum}, {sf[i*4:i*4+4]}, {ones}, {0 if first else rsum}")
                mf.append(f"v_mfma_f32_16x16x32_bf16 {gram}, {sf[i*4:i*4+4]}, {sf[i*4:i*4+4]}, {0 if first else gram}")
        if c == 3:
            for n in range(4):
                side += [f"ds_read_b64_tr_b16 {pf[n*4:n*4+2]}, {pa[2*n]}", f"ds_read_b64_tr_b16 {pf[n*4+2:n*4+4]}, {pa[2*n+1]}"]
            for n in range(4): mf.append(f"v_mfma_f32_16x16x32_bf16 {dcs}, {pf[n*4:n*4+4]}, {ones}, {dcs if n else 0}")
        dm = {0: W(4) + X(6), 1: X(7) + W(5), 2: W(6), 3: W(7), 4: [], 5: Q(1), 6: Q(2), 7: Q(3)}[c]
        if c == 4:
            def pst(n):
                def f(): tok['ps'] = a(f"buffer_store_dwordx4 {pf[n*4:n*4+4]}, {vl16}, {ws}, {sdst} offen offset:{n*1024} sc1")
                return f
            def pcs():
                a(f"v_lshrrev_b32 {t0}, 4, {lane}\nv_lshlrev_b32 {t0}, 4, {t0}\nv_and_b32 {t1}, 15, {lane}\nv_lshl_add_u32 {t0}, {t1}, 26, {t0}")
                tok['ps'] = a(f"buffer_store_dwordx4 {dcs}, {t0}, {ws}, {scs} offen sc1")
            dm = [pst(n) for n in range(4)] + [pcs] + Q(0)
        if c == 6:
            dm = [f"buffer_load_dword {vroot}, {vrootA}, {srd['dbg']}, 0 offen sc1"] + dm
        rd = reads(c+1) if c < 7 else []
        if c == 6:
            rd = rd + [f"ds_read_b64 {xres[4*H+2*e:4*H+2*e+2]}, {vxr[e]} offset:{H*4096}" for H in range(2) for e in range(2)]
        if c == 7:
            a(f"v_lshrrev_b32 {t2}, 4, {lane}\nv_lshlrev_b32 {t2}, 4, {t2}\nv_and_b32 {t3}, 15, {lane}\nv_lshlrev_b32 {t3}, 3, {t3}\nv_add_u32 {t2}, {SB}, {t2}\nv_add_u32 {t3}, {SB}, {t3}")
            for tt in range(4):
                rd += [f"ds_read_b128 {nmv[tt*4:tt*4+4]}, {t2} offset:{tt*64}", f"ds_read_b128 {rlv[tt*4:tt*4+4]}, {t2} offset:{512 + tt*64}",
                       f"ds_read_b128 {rv[tt*4:tt*4+4]}, {t2} offset:{256 + tt*64}", f"ds_read_b64 {qs[tt*2:tt*2+2]}, {t3} offset:{768 + tt*128}"]
        items = side + rd
        di = 0; ii = 0
        for i, m in enumerate(mf):
            a(m)
            for _ in range(2 if len(items) > len(mf) and i < len(items) - len(mf) else 1):
                if ii < len(items): k.emit(items[ii]); ii += 1
            if i % 2 == 1 and di < len(dm): k.emit(dm[di]); di += 1
        assert ii == len(items) and di == len(dm)
        if c == 5:
            a(f"""s_mov_b32 {smA[0]}, 0xaaaaaaaa
s_mov_b32 {smA[1]}, 0xaaaaaaaa
s_mov_b32 {smC[0]}, 0xcccccccc
s_mov_b32 {smC[1]}, 0xcccccccc
s_mov_b32 {seps}, {f32(1e-5)}
v_cndmask_b32 {rsum[0]}, {rsum[0]}, {rsum[1]}, {smA}
v_cndmask_b32 {rsum[2]}, {rsum[2]}, {rsum[3]}, {smA}
v_cndmask_b32 {gram[0]}, {gram[0]}, {gram[1]}, {smA}
v_cndmask_b32 {gram[2]}, {gram[2]}, {gram[3]}, {smA}
v_cndmask_b32 {rsum[0]}, {rsum[0]}, {rsum[2]}, {smC}
v_cndmask_b32 {gram[0]}, {gram[0]}, {gram[2]}, {smC}
v_mul_f32 {rsum[0]}, {f32(-1/512)}, {rsum[0]}
v_mul_f32 {gram[0]}, {f32(1/512)}, {gram[0]}
v_fma_f32 {gram[0]}, -{rsum[0]}, {rsum[0]}, {gram[0]}
v_max_f32 {gram[0]}, 0, {gram[0]}
v_add_f32 {gram[0]}, {seps}, {gram[0]}
v_rsq_f32 {gram[0]}, {gram[0]}
v_and_b32 {t0}, 15, {lane}
v_lshlrev_b32 {t0}, 2, {t0}
s_lshl_b32 {st0}, {sw}, 6
v_add_u32 {t0}, {st0}, {t0}
v_mul_f32 {rsum[1]}, {f32(LOG2E)}, {gram[0]}
v_lshlrev_b32 {t1}, 1, {t0}
v_add_u32 {t0}, {SB}, {t0}
v_add_u32 {t1}, {SB}, {t1}
s_mov_b32 exec_lo, 0x00f0000f
s_mov_b32 exec_hi, 0xf0000f00
ds_write_b32 {t0}, {rsum[0]}
ds_write_b32 {t0}, {gram[0]} offset:256
ds_write_b32 {t0}, {rsum[1]} offset:512
ds_write_b64 {t1}, {rsum[0:2]} offset:768
s_mov_b64 exec, -1""")
    k.stamp('pass1')
    sdel = S.alloc(2); sln2 = S.alloc(2)
    a(f"s_mov_b32 {sdel[0]}, {f32(1e-6/LN2)}\ns_mov_b32 {sdel[1]}, {f32(1e-6/LN2)}\ns_mov_b32 {sln2[0]}, {f32(LN2)}\ns_mov_b32 {sln2[1]}, {f32(LN2)}")
    def phi_tail(acc, n):
        for r in range(n): a(f"v_exp_f32 {tmp[r]}, {acc[r]} clamp")
        for r in range(n): a(f"v_max_f32 {acc[r]}, {sdel[0]}, {acc[r]}")
        for r in range(0, n, 2): a(f"v_pk_fma_f32 {acc[r:r+2]}, {acc[r:r+2]}, {sln2}, {tmp[r:r+2]}")
    pkf = v(48, 8); vf = v(56, 8)
    for r in range(0, 16, 2): a(f"v_pk_fma_f32 {acck[r:r+2]}, {nmv[r:r+2]}, {csk[0:2]}, {acck[r:r+2]}")
    for r in range(0, 16, 2): a(f"v_pk_fma_f32 {acck[r:r+2]}, {acck[r:r+2]}, {rlv[r:r+2]}, {sdel}")
    phi_tail(acck, 16)
    for r in range(8): a(f"v_cvt_pk_bf16_f32 {pkf[r]}, {acck[2*r]}, {acck[2*r+1]}")
    for r in range(0, 16, 2): a(f"v_pk_fma_f32 {accv[r:r+2]}, {nmv[r:r+2]}, {csv[0:2]}, {accv[r:r+2]}")
    for r in range(0, 16, 2): a(f"v_pk_mul_f32 {accv[r:r+2]}, {accv[r:r+2]}, {rv[r:r+2]}")
    for r in range(8): a(f"v_cvt_pk_bf16_f32 {vf[r]}, {accv[2*r]}, {accv[2*r+1]}")
    dkv = tmp[8:12]; dz = tmp[12:16]
    for h in range(2):
        a(f"v_mfma_f32_16x16x32_bf16 {dkv}, {pkf[h*4:h*4+4]}, {vf[h*4:h*4+4]}, {dkv if h else 0}")
        a(f"v_mfma_f32_16x16x32_bf16 {dz}, {pkf[h*4:h*4+4]}, {ones}, {dz if h else 0}")
    va = v(64, 6)
    a(f"""s_add_u32 {st0}, {sw11}, {KS}
v_add_u32 {va[0]}, {st0}, {vl16}
v_lshrrev_b32 {t0}, 4, {lane}
v_lshl_add_u32 {va[1]}, {t0}, 4, {st0}
v_lshlrev_b32 {va[3]}, 2, {lane}
v_add_u32 {va[2]}, {st0}, {va[3]}
v_and_b32 {t1}, 15, {lane}
v_lshl_add_u32 {va[4]}, {t1}, 2, {st0}""")
    a(f"ds_write_b128 {va[0]}, {dkv}\nds_write_b128 {va[1]}, {dz} offset:1024")
    for g in range(4): a(f"ds_read_b32 {tmp[g]}, {va[2]} offset:{g*256}")
    a(f"ds_read_b32 {tmp[4]}, {va[4]} offset:1024")
    a(f"""v_bfe_u32 {t2}, {lane}, 2, 1
v_lshlrev_b32 {t2}, 10, {t2}
v_bfe_u32 {t3}, {lane}, 3, 1
v_lshl_add_u32 {t2}, {t3}, 9, {t2}
v_bfe_u32 {t3}, {lane}, 4, 1
v_lshl_add_u32 {t2}, {t3}, 6, {t2}
v_and_b32 {t3}, 3, {lane}
v_lshl_add_u32 {t2}, {t3}, 2, {t2}
v_add_u32 {t2}, 256, {t2}
v_lshrrev_b32 {t3}, 5, {lane}
v_lshl_add_u32 {va[5]}, {t3}, 30, {t2}""")
    for gg in range(4):
        a(f"buffer_atomic_add_f32 {tmp[gg]}, {va[3]}, {ws}, {skvb} offen offset:{(gg&1)*1024 + (gg>>1)*512}")
    a(f"buffer_atomic_add_f32 {tmp[4]}, {va[5]}, {ws}, {skvb} offen")
    k.stamp('atom')
    a.wait(tok['q', 3]); a("s_barrier")
    vwo = v(10); swo = spsrc; sw14 = spitch
    a(f"""v_lshrrev_b32 {t0}, 3, {lane}
v_bfe_u32 {t1}, {lane}, 4, 1
v_lshlrev_b32 {t1}, 1, {t1}
v_bfe_u32 {t2}, {lane}, 1, 2
v_xor_b32 {t1}, {t1}, {t2}
v_lshlrev_b32 {t1}, 5, {t1}
v_lshl_add_u32 {t1}, {t0}, 10, {t1}
v_and_b32 {t2}, 1, {lane}
v_lshl_add_u32 {vwo}, {t2}, 4, {t1}
s_lshl_b32 {swo}, {sw}, 17
s_lshl_b32 {st0}, {sj}, 7
s_add_u32 {swo}, {swo}, {st0}
s_lshl_b32 {sw14}, {sw}, 14""")
    def dma_wo(i):
        def f():
            a(f"s_add_u32 m0, {sw14}, {i*1024}\ns_add_u32 {ssoff}, {swo}, {i*8192}")
            tok['wo'] = a(f"buffer_load_dwordx4 {vwo}, {srd['wo']}, {ssoff} offen lds")
        return f
    qf = v(64+8, 32)
    def qfrag(ks): b = (ks & 7) * 4; return qf[b:b+4]
    for ks in range(4):
        for r in tr(qfrag(ks), q_lds(ks)): a(r)
    sc0 = S.alloc(); sval = S.alloc()
    a(f"""s_mul_i32 {sc0}, {sj}, 11
s_cmp_eq_u32 {sj}, 7
s_cselect_b32 {sc0}, 76, {sc0}
s_cmp_ge_u32 {sj}, 6
s_cselect_b32 {st0}, 2, 3
s_cmp_lt_u32 {sw}, {st0}
s_cselect_b32 {sval}, 0, {OOB}
s_and_b32 {st0}, {sc0}, 0x7c
v_lshlrev_b32 {t0}, 3, {lane}
s_sub_u32 {st1}, {sj}, {128 - 88}
v_add_u32 {t0}, {st1}, {t0}
v_add_u32 {t1}, {st0}, {lane}
v_cmp_gt_u32 vcc, 16, {lane}
v_cndmask_b32 {t0}, {t0}, {t1}, vcc
v_lshlrev_b32 {t0}, 7, {t0}
v_cmp_gt_u32 vcc, 27, {lane}
v_mov_b32 {t1}, {OOB}
v_cndmask_b32 {vpfA}, {t1}, {t0}, vcc""")
    spf = S.alloc(); a(f"s_mov_b32 {spf}, {WS_PF}")
    pfload = f"buffer_load_dword {vpf}, {vpfA}, {ws}, {spf} offen sc1"
    for ks in range(16):
        nx = tr(qfrag(ks+4), q_lds(ks+4)) if ks + 4 < 16 else []
        for tt in range(4):
            d = accq[tt*4:tt*4+4]
            a(f"v_mfma_f32_16x16x32_bf16 {d}, {qfrag(ks)}, {xfrag(ks, tt)}, {d if ks else 0}")
            if tt < len(nx): a(nx[tt])
            if tt == 2: dma_wo(ks)()
        a(f"v_mfma_f32_16x16x32_bf16 {csq}, {qfrag(ks)}, {ones}, {csq if ks else 0}")
    a(pfload)
    k.stamp('pass2')
    for tt in range(4):
        for r in (0, 2):
            d = accq[tt*4+r:tt*4+r+2]
            a(f"v_pk_fma_f32 {d}, {qs[tt*2:tt*2+2]}, {csq[r:r+2]}, {d} op_sel_hi:[0,1,1]")
    for tt in range(4):
        for r in (0, 2):
            d = accq[tt*4+r:tt*4+r+2]
            a(f"v_pk_fma_f32 {d}, {d}, {qs[tt*2:tt*2+2]}, {sdel} op_sel:[0,1,0]")
    phi_tail(accq, 16)
    a(f"s_lshl_b32 {st0}, {srb}, 16\ns_lshl_b32 {st1}, {shead}, 10\ns_add_u32 {st0}, {st0}, {st1}\ns_add_u32 {st0}, {st0}, {WS_PQ}\ns_add_u32 {st1}, {st0}, 32768")
    for t32 in range(2):
        d = pkf[t32*4:t32*4+4]
        for s in range(2):
            for h in range(2):
                a(f"v_cvt_pk_bf16_f32 {d[2*s+h]}, {accq[(2*t32+s)*4+2*h]}, {accq[(2*t32+s)*4+2*h+1]}")
        for h in range(2): a(f"v_permlane16_swap_b32 {d[h]}, {d[2+h]}")
        tok['pq'] = a(f"buffer_store_dwordx4 {d}, {vl16}, {ws}, {(st0, st1)[t32]} offen sc1")
    k.stamp('pqst')
    k.check(vpf, f"v_cmp_ne_u32 vcc, 0, {vpf}", 0x7ffffff, pfload, st0, st1)
    w1 = ag(0, 192)
    sw1 = [S.alloc() for _ in range(3)]
    for i in range(3):
        a(f"s_add_u32 {sw1[i]}, {sc0}, {sw}\ns_lshl_b32 {sw1[i]}, {sw1[i]}, 14\ns_add_u32 {sw1[i]}, {sw1[i]}, {WS_W1 + i*4*16384}")
    a(f"s_add_u32 {sw1[2]}, {sw1[2]}, {sval}")
    def ld_w1(n):
        ks, i = divmod(n, 3)
        def f():
            if ks % 4 == 0 and ks: a(f"s_add_u32 {sw1[i]}, {sw1[i]}, 4096")
            a(f"buffer_load_dwordx4 {w1[n*4:n*4+4]}, {vl16}, {ws}, {sw1[i]} offen offset:{(ks%4)*1024} sc1")
        return f
    W1L = [ld_w1(n) for n in range(48)]
    NW1A, NW1B = 10, 22
    for f in W1L[:NW1A]: f()
    a.wait(tok['pq'])
    a(f"""s_and_b32 {st0}, {srb}, 3
s_lshl_b32 {st0}, {st0}, 9
s_add_u32 {st0}, {st0}, {skvb}
v_lshlrev_b32 {t0}, 24, {lane}
v_mov_b32 {t1}, 1
buffer_atomic_add {t1}, {t0}, {ws}, {st0} offen offset:384""")
    k.stamp('arrive')
    WO = v(48, 64); KZ = v(112, 32); OF = v(144, 8)
    vwr = v(12, 2)
    a(f"""v_bfe_u32 {t0}, {lane}, 4, 1
v_bfe_u32 {t1}, {lane}, 3, 1
v_lshl_or_b32 {t0}, {t1}, 1, {t0}
v_xor_b32 {t0}, {sw}, {t0}
v_lshlrev_b32 {t0}, 5, {t0}
v_and_b32 {t1}, 3, {lane}
v_lshl_add_u32 {t0}, {t1}, 3, {t0}
v_bfe_u32 {t1}, {lane}, 2, 2
v_lshl_add_u32 {t0}, {t1}, 7, {t0}
v_lshrrev_b32 {t1}, 5, {lane}
v_lshl_add_u32 {t0}, {t1}, 9, {t0}
v_add_u32 {vwr[0]}, {sw14}, {t0}
v_xor_b32 {vwr[1]}, 64, {vwr[0]}""")
    wor = []
    for hh in range(8):
        for t in range(2):
            d = WO[(hh*2+t)*4:(hh*2+t)*4+4]
            wor += [f"ds_read_b64_tr_b16 {d[0:2]}, {vwr[t]} offset:{hh*2048}", f"ds_read_b64_tr_b16 {d[2:4]}, {vwr[t]} offset:{hh*2048+1024}"]
    k.weave(wor, W1L[NW1A:NW1B], start=1, every=2)
    skv, spq = sxb, swb
    vcA = v(14); vc = v(15)
    a(f"""s_lshl_b32 {skv}, {sw}, 14
s_add_u32 {skv}, {skv}, {WS_KV}
s_lshl_b32 {spq}, {srb}, 16
s_lshl_b32 {st0}, {sw}, 13
s_add_u32 {spq}, {spq}, {st0}
s_add_u32 {spq}, {spq}, {WS_PQ}
v_lshlrev_b32 {t0}, 9, {lane}
v_lshrrev_b32 {t1}, 5, {lane}
v_lshl_add_u32 {vcA}, {t1}, 30, {t0}""")
    cload = f"buffer_load_dword {vc}, {vcA}, {ws}, {skv} offen offset:384 sc1"
    a(cload)
    k.check(vc, f"v_cmp_eq_u32 vcc, 8, {vc}", -1, cload, st0, st1)
    k.stamp('s1')
    PQ = ag(192, 64); ACC = v(160, 32); D = v(192, 32); KVR = v(224, 32)
    def ld(dst, sbase, off):
        def f():
            sb, o = sbase, off
            if o >= 4096: a(f"s_add_u32 {ssoff}, {sb}, {o & ~4095}"); sb = ssoff; o &= 4095
            a(f"buffer_load_dwordx4 {dst}, {vl16}, {ws}, {sb} offen offset:{o} sc1")
        return f
    def kvr(hh): return KVR[(hh & 3)*8:(hh & 3)*8+8]
    def head_loads(hh): return [ld(kvr(hh)[0:4], skv, hh*2048), ld(kvr(hh)[4:8], skv, hh*2048 + 1024), ld(PQ[hh*4:hh*4+4], spq, hh*1024)]
    for hh in range(4):
        for f in head_loads(hh): f()
    se6 = S.alloc(); a(f"s_mov_b32 {se6}, {f32(1e-6)}")
    vrw = v(16, 3); vrr = v(19); vh = v(20); vst = v(21); shb = S.alloc(); sstb = S.alloc()
    for r in (1, 2, 3):
        a(f"s_xor_b32 {st0}, {sw}, {r}\ns_lshl_b32 {st0}, {st0}, 13\ns_add_u32 {st0}, {st0}, {65536 + r*2048}\nv_add_u32 {vrw[r-1]}, {st0}, {vl16}")
    a(f"""s_lshl_b32 {st0}, {sw}, 13
s_add_u32 {st0}, {st0}, 65536
v_add_u32 {vrr}, {st0}, {vl16}
v_bfe_u32 {t0}, {lane}, 4, 1
v_lshlrev_b32 {vh}, 14, {t0}
v_lshrrev_b32 {t0}, 5, {lane}
v_lshl_add_u32 {vh}, {t0}, 9, {vh}
v_and_b32 {t1}, 15, {lane}
v_lshl_add_u32 {vh}, {t1}, 4, {vh}
v_and_b32 {t1}, 31, {lane}
v_lshlrev_b32 {t1}, 8, {t1}
v_lshl_add_u32 {vst}, {t0}, 30, {t1}
s_lshl_b32 {shb}, {srb}, 16
s_lshl_b32 {st0}, {sj}, 1
s_lshr_b32 {st1}, {sw}, 1
s_add_u32 {st0}, {st0}, {st1}
s_lshl_b32 {st0}, {st0}, 10
s_add_u32 {shb}, {shb}, {st0}
s_and_b32 {st0}, {sw}, 1
s_lshl_b32 {st0}, {st0}, 8
s_add_u32 {shb}, {shb}, {st0}
s_add_u32 {shb}, {shb}, {WS_H}
s_lshl_b32 {sstb}, {srb}, 14
s_lshl_b32 {st0}, {shead}, 3
s_add_u32 {sstb}, {sstb}, {st0}
s_add_u32 {sstb}, {sstb}, {WS_ST}""")
    def p2_half(H, side):
        def cvt_kv(hh): return [f"v_cvt_pk_bf16_f32 {KZ[hh*4+r]}, {kvr(hh)[2*r]}, {kvr(hh)[2*r+1]}" for r in range(4)]
        def om(n): return f"v_mfma_f32_32x32x16_bf16 {D[(n&1)*16:(n&1)*16+16]}, {KZ[n*4:n*4+4]}, {PQ[(H*8+n)*4:(H*8+n)*4+4]}, 0"
        def pm(n, t):
            d = ACC[t*16:t*16+16]
            return f"v_mfma_f32_32x32x16_bf16 {d}, {WO[(n*2+t)*4:(n*2+t)*4+4]}, {OF[(n&1)*4:(n&1)*4+4]}, {d if n else 0}"
        if H == 0:
            for x in cvt_kv(0): a(x)
        a(om(0))
        if H == 0:
            for x in cvt_kv(1): a(x)
        for n in range(8):
            d = D[(n&1)*16:(n&1)*16+16]; o = OF[(n&1)*4:(n&1)*4+4]
            ex = list(side(n))
            if n + 1 < 8: a(om(n+1))
            if ex: k.emit(ex.pop(0))
            a(f"v_add_f32 {d[8]}, {se6}, {d[8]}\nv_rcp_f32 {d[8]}, {d[8]}")
            if H == 0 and n + 2 < 8:
                for x in cvt_kv(n+2)[:2]: a(x)
            if n > 0: a(pm(n-1, 0))
            if ex: k.emit(ex.pop(0))
            for r in range(5): a(f"v_mul_f32 {d[r]}, {d[r]}, {d[8]}")
            if n > 0: a(pm(n-1, 1))
            if ex: k.emit(ex.pop(0))
            for r in range(5, 8): a(f"v_mul_f32 {d[r]}, {d[r]}, {d[8]}")
            for r in range(4): a(f"v_cvt_pk_bf16_f32 {o[r]}, {d[2*r]}, {d[2*r+1]}")
            if H == 0 and n + 2 < 8:
                for x in cvt_kv(n+2)[2:]: a(x)
            for x in ex: k.emit(x)
        a(pm(7, 0)); a(pm(7, 1))
    def reduce(acc, tm, base, side=()):
        side = list(side)
        for r in (1, 2, 3):
            for q in range(2):
                a(f"ds_write_b128 {vrw[r-1]}, {acc[r*8+q*4:r*8+q*4+4]} offset:{base + q*1024}")
                if side: k.emit(side.pop(0))
        a("s_waitcnt lgkmcnt(0)\ns_barrier")
        for r in (1, 2, 3):
            for q in range(2): a(f"ds_read_b128 {tm[(r-1)*8+q*4:(r-1)*8+q*4+4]}, {vrr} offset:{base + r*2048 + q*1024}")
        for x in side: k.emit(x)
        for r in range(3):
            for e in range(0, 8, 2): a(f"v_pk_add_f32 {acc[e:e+2]}, {acc[e:e+2]}, {tm[r*8+e:r*8+e+2]}")
    HB = v(32, 16); hp = OF; stt = v(152, 4)
    def p2_epi(H):
        own = ACC[0:8]; h4 = hp[H*4:H*4+4]
        for r in range(4):
            a(f"v_lshlrev_b32 {D[2*r]}, 16, {xres[4*H+r]}\nv_and_b32 {D[2*r+1]}, 0xffff0000, {xres[4*H+r]}")
        for e in range(0, 8, 2): a(f"v_pk_add_f32 {own[e:e+2]}, {own[e:e+2]}, {D[e:e+2]}")
        for r in range(4): a(f"v_cvt_pk_bf16_f32 {h4[r]}, {own[2*r]}, {own[2*r+1]}")
        if H: a(f"s_add_u32 {shb}, {shb}, 32768\ns_add_u32 {sstb}, {sstb}, 8192")
        a(f"buffer_store_dwordx4 {h4}, {vh}, {ws}, {shb} offen sc1")
        a(f"v_mov_b32 {stt[0]}, 0\nv_mov_b32 {stt[1]}, 0")
        for r in range(4):
            a(f"v_dot2_f32_bf16 {stt[0]}, {h4[r]}, {sones}, {stt[0]}\nv_dot2_f32_bf16 {stt[1]}, {h4[r]}, {h4[r]}, {stt[1]}")
        for r in range(4):
            a(f"v_lshlrev_b32 {HB[8*H+2*r]}, 16, {h4[r]}\nv_and_b32 {HB[8*H+2*r+1]}, 0xffff0000, {h4[r]}")
        a(f"v_mov_b32 {stt[2]}, {stt[0]}\nv_mov_b32 {stt[3]}, {stt[1]}")
        a(f"v_permlane32_swap_b32 {stt[2]}, {stt[0]}\nv_permlane32_swap_b32 {stt[3]}, {stt[1]}")
        a(f"v_pk_add_f32 {stt[0:2]}, {stt[0:2]}, {stt[2:4]}")
        tok['h', H] = a(f"buffer_store_dwordx2 {stt[0:2]}, {vst}, {ws}, {sstb} offen sc1")
    vone = v(22); vlz = v(23); vfA = v(14); vfl = v(15)
    def flag(sync):
        k.nlab += 1; n = k.nlab
        a(f"s_cmp_lg_u32 {sw}, 3\ns_cbranch_scc1 L_nf{n}")
        a.hidden(f"""s_lshl_b32 {st0}, {sj}, 7
s_add_u32 {st0}, {st0}, {sflb}
buffer_store_dword {vone}, {vlz}, {ws}, {st0} offen offset:{sync*1024} sc1
L_nf{n}:""")
    def fload(sync): return f"buffer_load_dword {vfl}, {vfA}, {ws}, {sflb} offen offset:{sync*1024} sc1"
    def fcheck(sync): k.check(vfl, f"v_cmp_ne_u32 vcc, 0, {vfl}", 0xff, fload(sync), st0, st1)
    pqB = [ld(PQ[(8+hh)*4:(8+hh)*4+4], spq, 32768 + hh*1024) for hh in range(8)]
    p2_half(0, lambda n: head_loads(n+4) if n < 4 else pqB[(n-4)*2:(n-4)*2+2])
    k.stamp('p2a')
    a(f"""v_mov_b32 {vone}, 1
v_lshlrev_b32 {vlz}, 24, {lane}
v_lshrrev_b32 {t0}, 3, {lane}
v_lshlrev_b32 {t0}, 26, {t0}
v_lshl_add_u32 {vfA}, {lane}, 7, {t0}""")
    wi = NW1B
    reduce(ACC, KVR, 0, W1L[wi:wi+4]); wi += 4
    p2_epi(0)
    k.stamp('puba')
    def sideB(n):
        nonlocal wi
        o = W1L[wi:wi+2] if n != 5 else []
        wi += len(o)
        if n == 5: o = [lambda: (a.wait(tok['h', 0]), a("s_barrier"), flag(0))]
        return o
    p2_half(1, sideB)
    reduce(ACC, KVR, 32768, W1L[wi:wi+4]); wi += 4
    p2_epi(1)
    k.stamp('pubb')
    for f in W1L[wi:]: f()
    CB = 131072
    a(f"""s_lshl_b32 {st0}, {sc0}, 6
s_mul_i32 {st1}, {sw}, {1408*4}
s_add_u32 {st0}, {st0}, {st1}
s_add_u32 {st0}, {st0}, {WS_CS}
s_add_u32 m0, {sw10}, {CB}""")
    a(f"buffer_load_dwordx4 {vl16}, {ws}, {st0} offen sc1 lds")
    a(f"s_lshl_b32 {st0}, {sc0}, 5\ns_mov_b32 m0, {CB + 4096}")
    a(f"buffer_load_dwordx4 {vl16}, {srd['b1']}, {st0} offen lds")
    b2 = v(156, 4)
    a(f"""v_lshrrev_b32 {t0}, 5, {lane}
v_lshlrev_b32 {t0}, 3, {t0}
s_lshl_b32 {st0}, {shead}, 5""")
    for e in range(2): a(f"buffer_load_dwordx2 {b2[2*e:2*e+2]}, {t0}, {srd['b2']}, {st0} offen offset:{e*16}")
    a(fload(0)); fcheck(0)
    a("s_waitcnt vmcnt(0)\ns_barrier"); flag(1)
    k.stamp('s2')
    shs = skv; sw12 = spq
    a(f"s_lshl_b32 {shs}, {srb}, 16\ns_lshl_b32 {sw12}, {sw}, 12\ns_add_u32 {shs}, {shs}, {sw12}\ns_add_u32 {shs}, {shs}, {WS_H}")
    def dma_h(tt, i):
        def f():
            a(f"s_add_u32 m0, {sw12}, {tt*16384 + i*1024}\ns_add_u32 {ssoff}, {shs}, {tt*16384 + i*1024}")
            tok['ht', tt] = a(f"buffer_load_dwordx4 {vl16}, {ws}, {ssoff} offen sc1 lds")
        return f
    acc3 = v(160, 24); hf = v(184, 16); pk = v(200, 12); tm = v(212, 12); cs = v(224, 12); b1f = v(236, 12); rn = v(248, 8)
    sv = v(24, 8); vsl = v(12); vsw = v(13)
    RB = CB + 8192
    sst = sstb
    a(f"""s_lshl_b32 {sst}, {srb}, 14
s_add_u32 {sst}, {sst}, {sw11}
s_add_u32 {sst}, {sst}, {WS_ST}
v_lshlrev_b32 {vsl}, 5, {lane}""")
    def stat_loads(H):
        def g(q):
            def f():
                if H and q == 0: a(f"s_add_u32 {sst}, {sst}, 8192")
                a(f"buffer_load_dwordx4 {sv[q*4:q*4+4]}, {vsl}, {ws}, {sst} offen offset:{q*16} sc1")
            return f
        return [g(0), g(1)]
    def stat_math(H):
        s = sv
        a(f"v_pk_add_f32 {s[0:2]}, {s[0:2]}, {s[2:4]}\nv_pk_add_f32 {s[4:6]}, {s[4:6]}, {s[6:8]}\nv_pk_add_f32 {s[0:2]}, {s[0:2]}, {s[4:6]}")
        for d in (DPP_X1, DPP_X2, DPP_HM): a(f"v_add_f32 {s[0]}, {s[0]}, {s[0]} {d}\nv_add_f32 {s[1]}, {s[1]}, {s[1]} {d}")
        a(f"""v_mul_f32 {s[0]}, {f32(1/512)}, {s[0]}
v_mul_f32 {s[1]}, {f32(1/512)}, {s[1]}
v_fma_f32 {s[1]}, -{s[0]}, {s[0]}, {s[1]}
v_max_f32 {s[1]}, 0, {s[1]}
v_add_f32 {s[2]}, {seps}, {s[1]}
v_rsq_f32 {s[2]}, {s[2]}
v_mul_f32 {s[3]}, {s[2]}, {s[2]}
v_fma_f32 {s[3]}, {s[3]}, {s[1]}, {seps}
v_rsq_f32 {s[3]}, {s[3]}
v_mul_f32 {s[2]}, {s[2]}, {s[3]}
v_mul_f32 {s[3]}, -{s[2]}, {s[0]}
ds_write_b64 {vsw}, {s[2:4]} offset:{H*256}""")
    for f in [dma_h(0, i) for i in range(4)] + stat_loads(0) + [dma_h(1, i) for i in range(4)]: f()
    a(f"""v_lshrrev_b32 {t0}, 4, {lane}
s_lshl_b32 {st0}, {sw}, 6
s_add_u32 {st0}, {st0}, {CB}
v_lshl_add_u32 {t1}, {t0}, 4, {st0}
s_lshl_b32 {st0}, {sw}, 5
s_add_u32 {st0}, {st0}, {CB + 4096}
v_lshl_add_u32 {t2}, {t0}, 3, {st0}
v_and_b32 {t3}, 56, {lane}
s_lshl_b32 {st0}, {sw}, 6
s_add_u32 {st0}, {st0}, {RB}
v_add_u32 {vsw}, {st0}, {t3}""")
    ctmp = v(160, 48)
    for i in range(3):
        for kq in range(4):
            d = cs[i*4:i*4+4] if kq == 0 else ctmp[(i*3+kq-1)*4:(i*3+kq-1)*4+4]
            a(f"ds_read_b128 {d}, {t1} offset:{kq*1024 + i*256}")
        a(f"ds_read_b64 {ctmp[36+2*i:38+2*i]}, {t2} offset:{i*128}")
    for H in range(2):
        for r in range(4):
            a(f"v_lshlrev_b32 {tm[0]}, 16, {b2[r]}\nv_and_b32 {tm[1]}, 0xffff0000, {b2[r]}\nv_pk_add_f32 {HB[8*H+2*r:8*H+2*r+2]}, {HB[8*H+2*r:8*H+2*r+2]}, {tm[0:2]}")
    for i in range(3):
        for kq in range(3):
            for r in (0, 2): a(f"v_pk_add_f32 {cs[i*4+r:i*4+r+2]}, {cs[i*4+r:i*4+r+2]}, {ctmp[(i*3+kq)*4+r:(i*3+kq)*4+r+2]}")
        for h in range(2):
            a(f"v_lshlrev_b32 {b1f[i*4+2*h]}, 16, {ctmp[36+2*i+h]}\nv_and_b32 {b1f[i*4+2*h+1]}, 0xffff0000, {ctmp[36+2*i+h]}")
    sgab = S.alloc(2); vgb = v(10, 2); vrn = v(3)
    shh = sw1
    for i in range(3):
        a(f"s_mul_i32 {st0}, {srb}, {2*86*1024}\ns_add_u32 {shh[i]}, {sc0}, {sw}\ns_lshl_b32 {shh[i]}, {shh[i]}, 10\ns_add_u32 {shh[i]}, {shh[i]}, {st0}\ns_add_u32 {shh[i]}, {shh[i]}, {WS_HH + i*4096}")
    a(f"""s_add_u32 {shh[2]}, {shh[2]}, {sval}
s_mov_b32 {sgab[0]}, {f32(GA)}
s_mov_b32 {sgab[1]}, {f32(GA)}
v_mov_b32 {vgb[0]}, {f32(GB)}
v_mov_b32 {vgb[1]}, {f32(GB)}
v_and_b32 {t0}, 15, {lane}
v_lshlrev_b32 {t0}, 3, {t0}
v_add_u32 {vrn}, {RB}, {t0}""")
    stat_math(0)
    W2A = ag(192, 64); W2V = v(48, 112)
    def w2frag(n, t): i = n*2 + t; return W2V[i*4:i*4+4] if i < 28 else W2A[(i-28)*4:(i-28)*4+4]
    vw2 = v(8, 2); sw2 = shb
    a(f"""s_and_b32 {st0}, {sw}, 1
s_lshl_b32 {st0}, {st0}, 8
s_lshr_b32 {st1}, {sw}, 1
s_lshl_b32 {st1}, {st1}, 10
s_add_u32 {st0}, {st0}, {st1}
v_xor_b32 {vw2[0]}, {st0}, {vl16}
v_xor_b32 {vw2[1]}, 1024, {vw2[0]}
s_mul_i32 {sw2}, {sj}, {88*2048}
s_add_u32 {sw2}, {sw2}, {sw11}
s_add_u32 {sw2}, {sw2}, {WS_W2}""")
    def ld_w2(i):
        n, t = divmod(i, 2)
        def f():
            if t == 0 and n: a(f"s_add_u32 {sw2}, {sw2}, 8192")
            a(f"buffer_load_dwordx4 {w2frag(n, t)}, {vw2[t]}, {ws}, {sw2} offen sc1")
        return f
    W2L = [ld_w2(i) for i in range(44)]
    def epi1(tt):
        ac = acc3[(tt&1)*12:(tt&1)*12+12]; p = rn[tt*2:tt*2+2]
        for e in range(0, 12, 2): a(f"v_pk_fma_f32 {tm[e:e+2]}, {p}, {cs[e:e+2]}, {b1f[e:e+2]} op_sel:[1,0,0]")
        for e in range(0, 12, 2): a(f"v_pk_fma_f32 {ac[e:e+2]}, {p}, {ac[e:e+2]}, {tm[e:e+2]} op_sel_hi:[0,1,1]")
        for e in range(0, 12, 2): a(f"v_pk_mul_f32 {tm[e:e+2]}, {ac[e:e+2]}, {ac[e:e+2]}")
        for e in range(0, 12, 2): a(f"v_pk_fma_f32 {tm[e:e+2]}, {tm[e:e+2]}, {sgab}, {vgb}")
        for e in range(0, 12, 2): a(f"v_pk_mul_f32 {tm[e:e+2]}, {tm[e:e+2]}, {ac[e:e+2]}")
    def epi2(tt):
        return [f"v_exp_f32 {tm[e]}, {tm[e]}" for e in range(12)] + [f"v_add_f32 {tm[e]}, 1.0, {tm[e]}" for e in range(12)] + [f"v_rcp_f32 {tm[e]}, {tm[e]}" for e in range(12)]
    def epi3(tt):
        ac = acc3[(tt&1)*12:(tt&1)*12+12]
        for e in range(0, 12, 2): a(f"v_pk_mul_f32 {ac[e:e+2]}, {ac[e:e+2]}, {tm[e:e+2]}")
        for i in range(3):
            for h in range(2): a(f"v_cvt_pk_bf16_f32 {pk[i*4+(tt&1)*2+h]}, {ac[i*4+2*h]}, {ac[i*4+2*h+1]}")
        if tt & 1:
            for i in range(3):
                for h in range(2): a(f"v_permlane16_swap_b32 {pk[i*4+h]}, {pk[i*4+2+h]}")
            for i in range(3):
                if tt == 3: a(f"s_add_u32 {shh[i]}, {shh[i]}, {86*1024}")
                tok['hh', tt >> 1] = a(f"buffer_store_dwordx4 {pk[i*4:i*4+4]}, {vl16}, {ws}, {shh[i]} offen sc1")
    def rd(n): return f"ds_read_b128 {hf[(n&3)*4:(n&3)*4+4]}, {vl16} offset:{n*1024}"
    w2i = 0
    for tt in range(4):
        a.wait(tok['ht', tt]); a("s_waitcnt lgkmcnt(0)\ns_barrier")
        k.stamp('t%d' % tt)
        for n in range(3): a(rd(tt*16 + n))
        if tt in (0, 2):
            for q in range(2): a(f"ds_read_b64 {rn[(tt+q)*2:(tt+q)*2+2]}, {vrn} offset:{(tt+q)*128}")
        if tt: epi1(tt-1)
        e = epi2(tt-1) if tt else []
        ei = 0
        at = {}
        if tt == 0:
            for i in range(12): at[3*i + 5] = [W2L[i]]
            at[44] = [fload(1)]
        if tt == 1:
            B = [dma_h(2, i) for i in range(4)] + stat_loads(1) + [dma_h(3, i) for i in range(4)]
            at[8] = [lambda: fcheck(1)]
            for i, f in enumerate(B): at[9 + 3*i] = [f]
            for i in range(2): at[40 + 3*i] = [W2L[12 + i]]
        if tt == 2:
            for i in range(15): at[3*i + 2] = [W2L[14 + i]]
        if tt == 3:
            at[20] = [lambda: (a.wait(tok['hh', 0]), a("s_barrier"), flag(2))]
            for i in range(15): at[3*i + 3] = [W2L[29 + i]]
        for ks in range(16):
            n = tt*16 + ks
            for i in range(3):
                d = acc3[(tt&1)*12+i*4:(tt&1)*12+i*4+4]
                a(f"v_mfma_f32_16x16x32_bf16 {d}, {w1[(ks*3+i)*4:(ks*3+i)*4+4]}, {hf[(n&3)*4:(n&3)*4+4]}, {d if ks else 0}")
                if i == 0 and ks + 3 < 16: a(rd(n + 3))
                elif ei < len(e):
                    a(e[ei]); ei += 1
                    if 12 <= ei < 24: a(e[ei]); ei += 1
                for x in at.get(ks*3 + i, []): k.emit(x)
        assert ei == len(e)
        if tt == 1: stat_math(1)
        if tt: epi3(tt-1)
    k.stamp('p3m')
    epi1(3)
    for x in epi2(3): a(x)
    epi3(3)
    k.stamp('p3e')
    HH = ag(0, 176); acc4 = v(160, 64); tm4 = v(224, 24); ob = v(248, 4)
    shv = sst; vo = v(12); sob = sw2
    a(f"""s_mul_i32 {shv}, {srb}, {2*86*1024}
s_add_u32 {shv}, {shv}, {sw10}
s_add_u32 {shv}, {shv}, {WS_HH}
s_cmp_lt_u32 {sw}, 2
s_cselect_b32 {sval}, 0, {OOB}
v_and_b32 {t0}, 31, {lane}
v_lshlrev_b32 {vo}, 10, {t0}
v_lshrrev_b32 {t0}, 5, {lane}
v_lshl_add_u32 {vo}, {t0}, 4, {vo}
s_lshl_b32 {sob}, {srb}, 16
s_lshl_b32 {st0}, {shead}, 5
s_add_u32 {sob}, {sob}, {st0}""")
    a(fload(2)); fcheck(2)
    a("s_waitcnt vmcnt(0)\ns_barrier"); flag(3)
    k.stamp('s3')
    def ld_hh(H, n):
        def f():
            a(f"s_add_u32 {ssoff}, {shv}, {H*86*1024 + n*4096}")
            if n == 21: a(f"s_add_u32 {ssoff}, {ssoff}, {sval}")
            a(f"buffer_load_dwordx4 {HH[(H*22+n)*4:(H*22+n)*4+4]}, {vl16}, {ws}, {ssoff} offen sc1")
        return f
    def p4_mf(H):
        o = []
        for n in range(22):
            for t in range(2):
                d = acc4[H*32+t*16:H*32+t*16+16]
                o.append(f"v_mfma_f32_32x32x16_bf16 {d}, {w2frag(n, t)}, {HH[(H*22+n)*4:(H*22+n)*4+4]}, {d if n else 0}")
        return o
    def p4_epi(H):
        own = acc4[H*32:H*32+8]
        for e in range(0, 8, 2): a(f"v_pk_add_f32 {own[e:e+2]}, {own[e:e+2]}, {HB[8*H+e:8*H+e+2]}")
        for r in range(4): a(f"v_cvt_pk_bf16_f32 {ob[r]}, {own[2*r]}, {own[2*r+1]}")
        for h in range(2): a(f"v_permlane32_swap_b32 {ob[h]}, {ob[2+h]}")
        if H: a(f"s_add_u32 {sob}, {sob}, 32768")
        a(f"buffer_store_dwordx4 {ob}, {vo}, {srd['out']}, {sob} offen")
    LA = [ld_hh(0, n) for n in range(22)]; LB = [ld_hh(1, n) for n in range(22)]
    AH = 10
    for f in LA[:AH]: f()
    k.weave(p4_mf(0), LA[AH:] + [fload(3)], start=0, every=2)
    k.stamp('p4a')
    fcheck(3)
    k.stamp('s3b')
    reduce(acc4[0:32], tm4, 0, LB[:AH])
    p4_epi(0)
    k.weave(p4_mf(1), LB[AH:], start=0, every=2)
    k.stamp('p4b')
    reduce(acc4[32:64], tm4, 32768)
    p4_epi(1)
    if STAMPS:
        a("s_waitcnt vmcnt(0)"); STAMPS.append('end'); k.stamp('end')
        t = f"s_memrealtime {rt[2:4]}\ns_waitcnt lgkmcnt(0)\nv_lshrrev_b32 {t0}, 6, v0\nv_lshlrev_b32 {t0}, 28, {t0}\ns_lshl_b32 {st0}, s2, 6\ns_add_u32 {st0}, {st0}, {WS_DBG}\n"
        for i in range(1, len(k.stamped)):
            t += f"s_sub_u32 {st1}, {k.str_[2*i]}, {k.str_[0]}\nv_mov_b32 {t1}, {st1}\nbuffer_store_dword {t1}, {t0}, {ws}, {st0} offen offset:{4*i}\n"
        t += f"v_mov_b32 {t1}, {rt[0]}\nbuffer_store_dword {t1}, {t0}, {ws}, {st0} offen offset:56\n"
        t += f"v_mov_b32 {t1}, {rt[2]}\nbuffer_store_dword {t1}, {t0}, {ws}, {st0} offen offset:60\n"
        a.hidden(t)
        print('stamps:', k.stamped[1:], file=sys.stderr)
    a("L_end:\ns_endpgm")
    return a.finish(), S.peak

def assemble():
    hdr = open('cdna_kernels/' + NAME + '.s.ref').read().split('; Override')[0]
    body, sp = kernel()
    print('sgpr', sp, 'lines', body.count('\n'), 'nops', body.count('s_nop'), file=sys.stderr)
    n = NAME + '_kernel'
    return (hdr + "; @launch grid=(256,1,1) block=(256,1,1) lds=163840\n" + '.amdgcn_target "amdgcn-amd-amdhsa--gfx950"\n.text\n'
            + f".globl {n}\n.p2align 8\n.type {n},@function\n{n}:\n{body}" + '.section .rodata,"a"\n.p2align 6\n' + descriptor(n, 512, 256))

if __name__ == '__main__':
    if len(sys.argv) > 2: STAMPS = sys.argv[2].split(',')
    open(sys.argv[1], 'w').write(assemble())
```

```python
from asmlib import *
import struct, sys
def f32(x): return '0x%08x' % struct.unpack('<I', struct.pack('<f', x))[0]
NAME = 'sequential_preLN__linear_attn_block__mixer_channel_mlp__prompt'
WS_PQ = 0
WS_W2 = WS_PQ + (2 << 20)
WS_KV = WS_W2 + 8 * 88 * 2048
WS_H  = WS_KV + 65536
WS_ST = WS_H + (2 << 20)
WS_HH = WS_ST + 32 * 16384
WS_FL = WS_HH + 32 * 2 * 88 * 1024
WS_END = WS_FL + 32 * 4096
WS_DBG = WS_END
OOB = 0x7ff00000
LOG2E = 1.4426950408889634; LN2 = 0.6931471805599453
GA = -2 * 0.7978845608028654 * 0.044715 * LOG2E
GB = -2 * 0.7978845608028654 * LOG2E
KA = dict(x=0, wqkv=8, wo=16, w1=32, b1=40, w2=48, b2=56, out=64, dbg=72, ws=80)
SZ = dict(x=2048*512*2, wqkv=512*1536*2, wo=512*512*2, w1=512*1376*2, b1=1376*2, w2=1376*512*2, b2=512*2,
          out=2048*512*2, dbg=256, ws=WS_END + 16384)
DPP_X1 = 'quad_perm:[1,0,3,2] row_mask:0xf bank_mask:0xf'
DPP_X2 = 'quad_perm:[2,3,0,1] row_mask:0xf bank_mask:0xf'
DPP_HM = 'row_half_mirror row_mask:0xf bank_mask:0xf'
SPIN = 0x40000
STAMPS = None
D1 = 8
D2 = 1
D3 = 1
NU_ARR = 0
AH = 10
PF = 0
VG1 = 4
FA = 6
LOCAL = 1
LST = ''
F3 = 30
WSOFF = 0
PST = 1
U01 = 0

def v(b, n=1): return R('v', b, n)
def ag(b, n=1): return R('a', b, n)

class It:
    def __init__(self, x, cost=None, kind=None, after=0, by=None):
        self.x = x; self.after = after; self.by = by
        self.dw = 2 if isinstance(x, str) and 'b128' in x.split()[0] else 1
        if kind is None:
            mn = x.split()[0]
            kind = ('trans' if mn.startswith(TRANS) else 'valu' if mn.startswith('v_') else 'ds' if mn.startswith('ds_')
                    else 'vmem' if mn.startswith(('buffer', 'global')) else 'salu')
        self.kind = kind
        self.cost = cost if cost is not None else {'trans': 2, 'valu': 1, 'ds': 1, 'vmem': 3, 'salu': 1}.get(kind, 1)
def its(text, after=0): return [It(l.strip(), after=after) for l in text.split('\n') if l.strip()]

class K:
    def __init__(self):
        self.a = Asm(); self.S = Regs('s', 4, 102); self.nlab = 0
        self.stamped = []; self.tok = {}
    def emit(self, x):
        if isinstance(x, It): x = x.x
        if callable(x): return x()
        return self.a(x)
    def run(self, items):
        for x in items: self.emit(x)
    def vm(self, text, key=None, after=0):
        def f():
            t = self.a(text)
            if key is not None: self.tok[key] = t
        return It(f, kind='vmem', after=after)
    def pack(self, mf, queues, big, reserve=None, vgap=0):
        qs = [[x if isinstance(x, It) else It(x) for x in q] for q in queues]
        cap, vcap, dcap = (7, 6, 4) if big else (3, 2, 2)
        lastv = -99
        for i, m in enumerate(mf):
            for q in qs:
                late = [n for n, x in enumerate(q) if x.by is not None and x.by <= i]
                if late:
                    assert all(x.after < i for x in q[:late[-1] + 1])
                    self.run(q[:late[-1] + 1]); del q[:late[-1] + 1]
            self.emit(m)
            s = cap - (reserve(i) if reserve else 0); vs = vcap; d = dcap
            for q in qs:
                while q:
                    x = q[0]
                    if x.after > i or x.cost > s: break
                    if x.kind in ('valu', 'trans') and x.cost > vs: break
                    if x.kind == 'ds' and x.dw > d: break
                    if x.kind == 'vmem' and i - lastv < vgap: break
                    q.pop(0); self.emit(x); s -= x.cost
                    if x.kind in ('valu', 'trans'): vs -= x.cost
                    if x.kind == 'trans' and not big: s = 0
                    if x.kind == 'ds': d -= x.dw
                    if x.kind == 'vmem': lastv = i
        left = sum(len(q) for q in qs)
        for q in qs: self.run(q)
        return left
    def stamp(self, name):
        if STAMPS and name in STAMPS:
            n = len(self.stamped); self.stamped.append(name)
            self.a.hidden(f"s_memtime {self.str_[2*n:2*n+2]}")
    def check(self, cmp_, mask, reload, st1):
        a = self.a; self.nlab += 1; n = self.nlab
        a(cmp_)
        a(f"s_cmp_eq_u32 vcc_lo, {mask}\ns_cbranch_scc1 L_ok{n}")
        a.hidden(f"""s_mov_b32 {st1}, 0
L_spin{n}:
{reload}
s_add_u32 {st1}, {st1}, 1
s_waitcnt vmcnt(0)
{cmp_}
s_cmp_ge_u32 {st1}, {SPIN}
s_cbranch_scc1 L_ok{n}
s_nop 1
s_cmp_eq_u32 vcc_lo, {mask}
s_cbranch_scc0 L_spin{n}
L_ok{n}:""")

def kernel():
    k = K(); a = k.a; S = k.S; tok = k.tok
    a("s_cmp_ge_u32 s2, 256\ns_cbranch_scc1 L_end")
    if STAMPS:
        k.str_ = S.alloc(2*len(STAMPS) + 4, 4); rt = S.alloc(4, 4)
        a.hidden(f"s_memrealtime {rt[0:2]}")
        STAMPS.insert(0, 'start')
    k.stamp('start')
    srd = {}
    for n in ['x', 'wqkv', 'ws', 'dbg', 'wo', 'w1', 'w2', 'b1', 'b2', 'out']: srd[n] = S.alloc(4)
    for n in ['x', 'wqkv']: a(f"s_load_dwordx2 {srd[n][0:2]}, s[0:1], {KA[n]}")
    for n in ['x', 'wqkv']: a(f"s_mov_b32 {srd[n][2]}, {SZ[n]}\ns_mov_b32 {srd[n][3]}, 0x00020000")
    ws = srd['ws']
    st0, st1, ssoff, sw, sj, srb, shead, sj1, srb1, shead1 = [S.alloc() for _ in range(10)]
    sxb, swb, sw10, sw11, sw12, srot, sc_x, sc_w = [S.alloc() for _ in range(8)]
    lane, vl16, t0, t1, t2, t3 = v(1), v(2), v(4), v(5), v(6), v(7)
    vxd = v(8, 2); vwd = v(10, 2)
    a(f"""v_and_b32 {lane}, 63, v0
v_lshrrev_b32 {t0}, 6, v0
v_readfirstlane_b32 {sw}, {t0}
s_and_b32 {sj1}, s2, 1
s_lshl_b32 {sj1}, {sj1}, 2
s_bfe_u32 {st0}, s2, 0x20003
s_add_u32 {sj1}, {sj1}, {st0}
s_bfe_u32 {srb1}, s2, 0x20001
s_lshl_b32 {srb1}, {srb1}, 3
s_lshr_b32 {st0}, s2, 5
s_add_u32 {srb1}, {srb1}, {st0}
v_lshrrev_b32 {t0}, 3, {lane}
v_and_b32 {t1}, 7, {lane}
v_xor_b32 {t2}, {t0}, {t1}
v_lshlrev_b32 {t2}, 4, {t2}
v_lshl_add_u32 {vxd[0]}, {t0}, 10, {t2}
v_add_u32 {vxd[1]}, 7168, {vxd[0]}
v_bfe_u32 {t2}, {lane}, 4, 1
s_and_b32 {st0}, {sw}, 1
s_lshl_b32 {st0}, {st0}, 1
v_or_b32 {t2}, {st0}, {t2}
v_lshrrev_b32 {t3}, 1, {t1}
v_xor_b32 {t2}, {t2}, {t3}
v_lshlrev_b32 {t2}, 5, {t2}
v_and_b32 {t3}, 1, {lane}
v_lshl_add_u32 {t2}, {t3}, 4, {t2}
v_mul_u32_u24 {vwd[0]}, 3072, {t0}
v_add_u32 {vwd[0]}, {vwd[0]}, {t2}
v_add_u32 {vwd[1]}, {98304 - 2048}, {vwd[0]}
s_lshl_b32 {sxb}, {srb1}, 16
s_lshl_b32 {st0}, {sw}, 14
s_add_u32 {sxb}, {sxb}, {st0}
s_mul_i32 {swb}, {sw}, {8*3072}
s_lshl_b32 {st0}, {sj1}, 7
s_add_u32 {swb}, {swb}, {st0}
s_lshl_b32 {sw10}, {sw}, 10
s_lshl_b32 {sw11}, {sw}, 11
s_lshl_b32 {sw12}, {sw}, 12
s_add_u32 {srot}, {srb1}, {sj1}
s_and_b32 {srot}, {srot}, {D1 - 1}
s_mul_i32 {srot}, {srot}, {8 // D1}""")
    WB = 65536; PB = WB + 5 * 16384; XR = PB + 8192
    def X(c):
        return (its(f"s_add_u32 {sc_x}, {srot}, {c}\ns_and_b32 {sc_x}, {sc_x}, 7\ns_lshl_b32 {sc_x}, {sc_x}, 7\ns_add_u32 {sc_x}, {sc_x}, {sxb}\ns_add_u32 m0, {sw11}, {c*8192}")
                + [k.vm(f"buffer_load_dwordx4 {vxd[o]}, {srd['x']}, {sc_x} offen offset:{o*1024} lds", ('x', c)) for o in range(2)])
    def wrot(c, add): return f"s_add_u32 {sc_w}, {srot}, {c}\ns_and_b32 {sc_w}, {sc_w}, 7\ns_mul_i32 {sc_w}, {sc_w}, {64*3072}\ns_add_u32 {sc_w}, {sc_w}, {swb}\n" + (f"s_add_u32 {sc_w}, {sc_w}, {add}\n" if add else "")
    def W(c):
        return (its(wrot(c, 1024) + f"s_add_u32 m0, {sw12}, {WB + (c % 5)*16384}")
                + [k.vm(f"buffer_load_dwordx4 {vwd[i >> 1]}, {srd['wqkv']}, {sc_w} offen offset:{i*1024} lds", ('w', c)) for i in range(4)])
    QSLOT = [3, 4, 0, 1]; QPOS = [0, 2048, 1024, 3072]
    def Q(n):
        o = []
        for h in range(2):
            o += its(wrot(2*n + h, 0) + f"s_add_u32 m0, {sw12}, {WB + QSLOT[n]*16384 + h*1024}")
            o += [k.vm(f"buffer_load_dwordx4 {vwd[i]}, {srd['wqkv']}, {sc_w} offen offset:{i*2048} lds", ('q', n)) for i in range(2)]
        return o
    def kv_lds(ks, p): return ((ks // 2) % 5) * 16384 + (ks & 1) * 2048 + p * 1024
    def q_lds(ks): return QSLOT[ks // 4] * 16384 + QPOS[ks & 3]
    a("s_waitcnt lgkmcnt(0)"); k.stamp('karg')
    k.run(X(0) + W(0))
    for n in srd:
        if n not in ('x', 'wqkv'): a(f"s_load_dwordx2 {srd[n][0:2]}, s[0:1], {KA[n]}")
    k.run(X(1) + W(1))
    for n in srd:
        if n not in ('x', 'wqkv'): a(f"s_mov_b32 {srd[n][2]}, {SZ[n]}\ns_mov_b32 {srd[n][3]}, 0x00020000")
    skvb, sflb, spsrc, sxr, sdst, sones, seps = [S.alloc() for _ in range(7)]
    vz = v(44, 4); ones = v(40, 4); sxcc = S.alloc()
    a(f"s_getreg_b32 {sxcc}, hwreg(HW_REG_XCC_ID)\ns_and_b32 {sxcc}, {sxcc}, 15\ns_add_u32 {sxcc}, {sxcc}, 1")
    a(f"""s_bfe_u32 {sj}, s2, 0x30003
s_and_b32 {srb}, s2, 7
s_lshl_b32 {srb}, {srb}, 2
s_lshr_b32 {st0}, s2, 6
s_add_u32 {srb}, {srb}, {st0}
s_lshl_b32 {shead}, {sj}, 2
s_add_u32 {shead}, {shead}, {sw}
s_lshl_b32 {shead1}, {sj1}, 2
s_add_u32 {shead1}, {shead1}, {sw}
s_lshl_b32 {skvb}, {shead1}, 11
s_add_u32 {skvb}, {skvb}, {WS_KV}
s_lshl_b32 {sflb}, {srb}, 12
s_add_u32 {sflb}, {sflb}, {WS_FL}
v_lshlrev_b32 {vl16}, 4, {lane}""")
    for r in range(4): a(f"v_mov_b32 {vz[r]}, 0")
    a("s_waitcnt lgkmcnt(0)")
    if WSOFF: a(f"s_add_u32 {ws[0]}, {ws[0]}, {WSOFF}\ns_addc_u32 {ws[1]}, {ws[1]}, 0")
    a(f"s_cmp_ge_u32 s2, 8\ns_cbranch_scc1 L_nozero")
    a.hidden(f"""s_lshl_b32 {st0}, s2, 2
s_add_u32 {st0}, {st0}, {sw}
s_lshl_b32 {st0}, {st0}, 11
s_add_u32 {st0}, {st0}, {WS_KV}
buffer_store_dwordx4 {vz}, {vl16}, {ws}, {st0} offen sc1
buffer_store_dwordx4 {vz}, {vl16}, {ws}, {st0} offen offset:1024 sc1
L_nozero:""")
    a(f"s_cmp_lg_u32 {sw}, 1\ns_cbranch_scc1 L_nofl")
    a.hidden(f"""s_lshl_b32 {st0}, {sj}, 7
s_add_u32 {st0}, {st0}, {sflb}
v_lshrrev_b32 {t0}, 2, {lane}
v_lshlrev_b32 {t0}, 26, {t0}
v_lshl_add_u32 {t0}, {lane}, 10, {t0}
v_mov_b32 {vz[1]}, {sxcc}
buffer_store_dwordx2 {vz[0:2]}, {t0}, {ws}, {st0} offen sc1
L_nofl:""")
    k.run(X(2) + W(2))
    k.stamp('issued')
    vxa = v(12, 2); vsa = v(14, 2); vwa = v(16, 2); vxr = v(18, 2); vroot = v(20); vrootA = v(21); vp = v(22, 2); vw1d = v(3)
    pa = v(32, 2); va = v(34, 6)
    SB = 0
    KS = 8192
    a(f"""v_lshrrev_b32 {t0}, 4, {lane}
v_and_b32 {t1}, 7, {lane}
v_xor_b32 {t2}, {t0}, {t1}
v_lshlrev_b32 {t2}, 4, {t2}
v_lshl_add_u32 {t2}, {t1}, 7, {t2}
v_bfe_u32 {t3}, {lane}, 3, 1
v_lshl_add_u32 {vxa[0]}, {t3}, 10, {t2}
v_xor_b32 {vxa[1]}, 64, {vxa[0]}
v_add_u32 {vsa[0]}, {sw11}, {vxa[0]}
v_add_u32 {vsa[1]}, {sw11}, {vxa[1]}
v_and_b32 {t2}, 1, {t0}
v_lshl_or_b32 {t2}, {t2}, 1, {t3}
v_xor_b32 {t2}, {sw}, {t2}
v_lshlrev_b32 {t2}, 5, {t2}
v_and_b32 {t3}, 3, {lane}
v_lshl_add_u32 {t2}, {t3}, 3, {t2}
v_bfe_u32 {t3}, {lane}, 2, 2
v_lshl_add_u32 {t2}, {t3}, 7, {t2}
v_lshl_add_u32 {t2}, {t0}, 12, {t2}
v_add_u32 {vwa[0]}, {WB}, {t2}
v_add_u32 {vwa[1]}, {WB + 49152}, {t2}
s_mov_b32 {sones}, 0x3f803f80
v_mov_b32 {ones[0]}, {sones}
v_mov_b32 {ones[1]}, {sones}
v_mov_b32 {ones[2]}, {sones}
v_mov_b32 {ones[3]}, {sones}""")
    later = its(f"""s_lshl_b32 {st0}, {sw}, 1
v_xor_b32 {t2}, {st0}, {t1}
v_lshlrev_b32 {t2}, 4, {t2}
v_lshl_add_u32 {t2}, {t1}, 7, {t2}
v_bfe_u32 {t3}, {lane}, 3, 2
v_lshl_add_u32 {t2}, {t3}, 10, {t2}
v_lshrrev_b32 {t3}, 5, {lane}
v_lshl_add_u32 {t2}, {t3}, 3, {t2}
v_add_u32 {vxr[0]}, {XR}, {t2}
v_xor_b32 {vxr[1]}, 16, {vxr[0]}
s_mov_b32 {seps}, {f32(1e-5)}
v_lshlrev_b32 {vrootA}, 5, {lane}
s_add_u32 {st0}, {sw11}, {KS}
v_add_u32 {va[0]}, {st0}, {vl16}
v_lshl_add_u32 {va[1]}, {t0}, 4, {st0}
v_lshlrev_b32 {va[3]}, 2, {lane}
v_add_u32 {va[2]}, {st0}, {va[3]}
v_and_b32 {t1}, 15, {lane}
v_lshl_add_u32 {va[4]}, {t1}, 2, {st0}
v_bfe_u32 {t2}, {lane}, 2, 1
v_lshlrev_b32 {t2}, 10, {t2}
v_bfe_u32 {t1}, {lane}, 3, 1
v_lshl_add_u32 {t2}, {t1}, 9, {t2}
v_bfe_u32 {t1}, {lane}, 4, 1
v_lshl_add_u32 {t2}, {t1}, 6, {t2}
v_and_b32 {t1}, 3, {lane}
v_lshl_add_u32 {t2}, {t1}, 2, {t2}
v_add_u32 {t2}, 256, {t2}
v_lshl_add_u32 {va[5]}, {t3}, 30, {t2}""")
    later += its(f"""s_lshr_b32 {st1}, s2, 3
s_and_b32 {st0}, s2, 7
s_lshl_b32 {spsrc}, {st1}, 16
s_lshl_b32 {sdst}, {st0}, 7
s_add_u32 {spsrc}, {spsrc}, {sdst}
s_lshl_b32 {sdst}, {sw}, 14
s_add_u32 {spsrc}, {spsrc}, {sdst}
s_mul_i32 {sdst}, {st0}, {88*2048}
s_lshl_b32 {st1}, {st1}, 11
s_add_u32 {sdst}, {sdst}, {st1}
s_mul_i32 {st1}, {sw}, {22*2048}
s_add_u32 {sdst}, {sdst}, {st1}
s_add_u32 {sdst}, {sdst}, {WS_W2}
""") + [It(f"s_cmp_lt_u32 s2, 176\ns_cselect_b32 {sdst}, {sdst}, {OOB}\ns_cselect_b32 {spsrc}, {spsrc}, {OOB}", cost=2)] + its(f"""
v_lshlrev_b32 {t0}, 10, {t3}
v_bfe_u32 {t1}, {lane}, 2, 2
v_lshl_add_u32 {t0}, {t1}, 7, {t0}
v_bfe_u32 {t1}, {lane}, 3, 1
v_lshlrev_b32 {t1}, 1, {t1}
v_bfe_u32 {t2}, {lane}, 4, 1
v_or_b32 {t1}, {t1}, {t2}
v_lshl_add_u32 {t0}, {t1}, 5, {t0}
v_and_b32 {t1}, 3, {lane}
v_lshl_add_u32 {t0}, {t1}, 3, {t0}
s_add_u32 {st1}, {sw11}, {PB}
v_add_u32 {pa[0]}, {st1}, {t0}
v_xor_b32 {pa[1]}, 64, {pa[0]}
v_lshrrev_b32 {t0}, 3, {lane}
v_lshlrev_b32 {t2}, 1, {t2}
v_bfe_u32 {t1}, {lane}, 1, 2
v_xor_b32 {t1}, {t1}, {t2}
v_lshlrev_b32 {t1}, 5, {t1}
v_and_b32 {t2}, 1, {lane}
v_lshl_add_u32 {t1}, {t2}, 4, {t1}
v_lshl_add_u32 {vp[0]}, {t0}, 10, {t1}
v_add_u32 {vp[1]}, 7168, {vp[0]}
s_lshr_b32 {st0}, {sw}, 1
s_lshl_b32 {st0}, {st0}, 5
v_xor_b32 {t1}, {st0}, {t1}
v_mul_u32_u24 {t0}, 2752, {t0}
v_add_u32 {vw1d}, {t0}, {t1}
s_lshl_b32 {sxr}, {srb}, 16
s_lshl_b32 {st0}, {sw}, 14
s_add_u32 {sxr}, {sxr}, {st0}
s_lshl_b32 {st0}, {sj}, 7
s_add_u32 {sxr}, {sxr}, {st0}""")
    PD = its(f"s_add_u32 m0, {sw11}, {PB}") + [k.vm(f"buffer_load_dwordx4 {vp[i]}, {srd['w2']}, {spsrc} offen offset:{i*1024} lds", 'p') for i in range(2)]
    XD = its(f"s_add_u32 m0, {sw11}, {XR}") + [k.vm(f"buffer_load_dwordx4 {vxd[i]}, {srd['x']}, {sxr} offen offset:{i*1024} lds", 'xr') for i in range(2)]
    xf = ag(0, 256)
    def xfrag(ks, tt): return xf[(ks*4+tt)*4:(ks*4+tt)*4+4]
    wf = v(48, 32)
    def wfrag(ks, p): b = ((ks // 2) & 1) * 16 + (ks & 1) * 8 + p * 4; return wf[b:b+4]
    def tr(dst, off):
        base = vwa[0] if off < 49152 else vwa[1]
        if off >= 49152: off -= 49152
        return [f"ds_read_b64_tr_b16 {dst[0:2]}, {base} offset:{off}", f"ds_read_b64_tr_b16 {dst[2:4]}, {base} offset:{off+512}"]
    def reads(c):
        o = []
        for ks in (2*c, 2*c+1):
            for p in (0, 1): o += tr(wfrag(ks, p), kv_lds(ks, p))
            for tt in range(4): o.append(f"ds_read_b128 {xfrag(ks, tt)}, {vxa[ks&1]} offset:{c*8192 + tt*2048}")
        return o
    sf = v(80, 16); acck = v(96, 16); accv = v(112, 16); accq = v(128, 16); csk = v(144, 4); csv = v(148, 4); csq = v(152, 4)
    rsum = v(156, 4); gram = v(160, 4); pf = v(164, 8); vsr = v(172, 4)
    nmv = v(184, 16); rlv = v(200, 16); rv = v(216, 16); qs = v(232, 8); tmp = v(240, 16)
    xres = v(24, 8)
    smA = S.alloc(2); smC = S.alloc(2)
    vpf = v(176); spf = S.alloc()
    later += its(f"""v_lshrrev_b32 {t0}, 5, {lane}
v_lshlrev_b32 {t0}, 30, {t0}
v_lshl_add_u32 {vpf}, {lane}, 7, {t0}
s_lshr_b32 {spf}, s2, 3
s_lshl_b32 {spf}, {spf}, 2
s_add_u32 {spf}, {spf}, {sw}
s_mov_b32 {smA[0]}, 0xaaaaaaaa
s_mov_b32 {smA[1]}, 0xaaaaaaaa
s_mov_b32 {smC[0]}, 0xcccccccc
s_mov_b32 {smC[1]}, 0xcccccccc
v_and_b32 {t0}, 15, {lane}
v_lshlrev_b32 {vsr[3]}, 3, {t0}
v_lshlrev_b32 {t0}, 2, {t0}
s_lshl_b32 {st0}, {sw}, 6
v_add_u32 {vsr[0]}, {st0}, {t0}
v_lshlrev_b32 {vsr[1]}, 1, {vsr[0]}
v_lshrrev_b32 {vsr[2]}, 4, {lane}
v_lshlrev_b32 {vsr[2]}, 4, {vsr[2]}""")
    a.wait(tok['w', 0]); a("s_barrier"); k.stamp('first')
    for r in reads(0): a(r)
    stats_at = {0: (0, 1), 2: (2, 3), 3: (4,), 4: (5, 6), 5: (7,)}
    rootld = f"buffer_load_dword {vroot}, {vrootA}, {srd['dbg']}, 0 offen sc1"
    for c in range(8):
        need_ = ([('w', c+1), ('x', c+1)] if c < 7 else []) + [('x', cc) for cc in stats_at.get(c, ())] + (['xr'] if c == 6 else [])
        for key in need_: a.wait(tok[key])
        a("s_waitcnt lgkmcnt(0)\ns_barrier")
        k.stamp('i%d' % c)
        if c == 1:
            a(f"s_cmp_ge_u32 s2, 8\ns_cbranch_scc1 L_noroot\ns_cmp_lg_u32 {sw}, 0\ns_cbranch_scc1 L_noroot")
            a.hidden(f"""s_lshl_b32 {ssoff}, s2, 5
v_lshlrev_b32 {vz[0]}, 24, {lane}
v_mov_b32 {vz[1]}, 1
buffer_store_dword {vz[1]}, {vz[0]}, {srd['dbg']}, {ssoff} offen sc1
L_noroot:""")
        mf = []
        for ks in (2*c, 2*c+1):
            for tt in range(4):
                for p, acc in ((0, acck), (1, accv)):
                    d = acc[tt*4:tt*4+4]
                    mf.append(f"v_mfma_f32_16x16x32_bf16 {d}, {xfrag(ks, tt)}, {wfrag(ks, p)}, {d if ks else 0}")
            for p, acc in ((0, csk), (1, csv)):
                mf.append(f"v_mfma_f32_16x16x32_bf16 {acc}, {ones}, {wfrag(ks, p)}, {acc if ks else 0}")
        rd = []
        for i, cc in enumerate(stats_at.get(c, ())):
            for p in range(2):
                s_ = sf[(2*i+p)*4:(2*i+p)*4+4]; first = (cc == 0 and p == 0)
                rd.append(f"ds_read_b128 {s_}, {vsa[p]} offset:{cc*8192}")
                mf.append(f"v_mfma_f32_16x16x32_bf16 {rsum}, {s_}, {ones}, {0 if first else rsum}")
                mf.append(f"v_mfma_f32_16x16x32_bf16 {gram}, {s_}, {s_}, {0 if first else gram}")
        if c < 7: rd += reads(c+1)
        if c == 6:
            rd += [f"ds_read_b64 {xres[4*H+2*e:4*H+2*e+2]}, {vxr[e]} offset:{H*4096}" for H in range(2) for e in range(2)]
        if c == 7:
            for tt in range(4):
                rd += [f"ds_read_b128 {nmv[tt*4:tt*4+4]}, {vsr[2]} offset:{SB + tt*64}", f"ds_read_b128 {rlv[tt*4:tt*4+4]}, {vsr[2]} offset:{SB + 512 + tt*64}"]
            for tt in range(4):
                rd += [f"ds_read_b128 {rv[tt*4:tt*4+4]}, {vsr[2]} offset:{SB + 256 + tt*64}", f"ds_read_b64 {qs[tt*2:tt*2+2]}, {vsr[3]} offset:{SB + 768 + tt*128}"]
            for n in range(2):
                rd += [f"ds_read_b64_tr_b16 {pf[n*4:n*4+2]}, {pa[n]}", f"ds_read_b64_tr_b16 {pf[n*4+2:n*4+4]}, {pa[n]} offset:512"]
        def touch(name, per, i):
            def f(): a(f"buffer_load_dword v0, {vpf}, {srd[name]}, {ssoff} offen").wr = set()
            return its(f"s_mul_i32 {ssoff}, {spf}, {per*128}\ns_add_u32 {ssoff}, {ssoff}, {i*4096}") + [It(f, kind='vmem')] if PF else []
        dm = {0: W(3) + X(3) + X(4), 1: W(4) + W(5), 2: W(6) + X(5) + X(6), 3: W(7) + X(7), 4: PD + XD + touch('wo', 32, 0),
              5: Q(0) + touch('w1', 86, 0), 6: [k.vm(rootld)] + Q(1) + touch('w1', 86, 1), 7: Q(2) + Q(3) + touch('w1', 86, 2)}[c]
        for x in dm:
            if x.kind == 'vmem': x.cost = 2
        vq = []
        if c == 6:
            vq = its(f"""v_cndmask_b32 {rsum[0]}, {rsum[0]}, {rsum[1]}, {smA}
v_cndmask_b32 {rsum[2]}, {rsum[2]}, {rsum[3]}, {smA}
v_cndmask_b32 {gram[0]}, {gram[0]}, {gram[1]}, {smA}
v_cndmask_b32 {gram[2]}, {gram[2]}, {gram[3]}, {smA}
v_cndmask_b32 {rsum[0]}, {rsum[0]}, {rsum[2]}, {smC}
v_cndmask_b32 {gram[0]}, {gram[0]}, {gram[2]}, {smC}
v_mul_f32 {rsum[0]}, {f32(-1/512)}, {rsum[0]}
v_mul_f32 {gram[0]}, {f32(1/512)}, {gram[0]}
v_fma_f32 {gram[0]}, -{rsum[0]}, {rsum[0]}, {gram[0]}
v_max_f32 {gram[0]}, 0, {gram[0]}
v_add_f32 {gram[0]}, {seps}, {gram[0]}
v_rsq_f32 {gram[0]}, {gram[0]}
v_mul_f32 {rsum[1]}, {f32(LOG2E)}, {gram[0]}""")
            vq.append(It(f"""s_mov_b32 exec_lo, 0x00f0000f
s_mov_b32 exec_hi, 0xf0000f00
ds_write_b32 {vsr[0]}, {rsum[0]} offset:{SB}
ds_write_b32 {vsr[0]}, {gram[0]} offset:{SB + 256}
ds_write_b32 {vsr[0]}, {rsum[1]} offset:{SB + 512}
ds_write_b64 {vsr[1]}, {rsum[0:2]} offset:{SB + 768}
s_mov_b64 exec, -1""", cost=1, kind='salu'))
        if c < 4:
            n = len(later) if c == 3 else 36
            vq = later[:n]; later = later[n:]
        k.pack(mf, [rd, dm, vq] if c < 4 else [rd, vq, dm], False, vgap=VG1 if len([x for x in dm if x.kind == 'vmem'])*VG1 <= len(mf) else 3)
    k.stamp('pass1')
    def pst():
        for n in range(2): tok['ps'] = a(f"buffer_store_dwordx4 {pf[n*4:n*4+4]}, {vl16}, {ws}, {sdst} offen offset:{n*1024} sc1")
    if PST == 1: pst()
    sdel = smA; sln2 = smC
    a(f"s_mov_b32 {sdel[0]}, {f32(1e-6/LN2)}\ns_mov_b32 {sdel[1]}, {f32(1e-6/LN2)}\ns_mov_b32 {sln2[0]}, {f32(LN2)}\ns_mov_b32 {sln2[1]}, {f32(LN2)}")
    def phi_tail(acc, n):
        for r in range(n): a(f"v_exp_f32 {tmp[r]}, {acc[r]} clamp")
        for r in range(n): a(f"v_max_f32 {acc[r]}, {sdel[0]}, {acc[r]}")
        for r in range(0, n, 2): a(f"v_pk_fma_f32 {acc[r:r+2]}, {acc[r:r+2]}, {sln2}, {tmp[r:r+2]}")
    pkf = v(48, 8); vf = v(56, 8)
    for r in range(0, 16, 2): a(f"v_pk_fma_f32 {acck[r:r+2]}, {nmv[r:r+2]}, {csk[0:2]}, {acck[r:r+2]}")
    for r in range(0, 16, 2): a(f"v_pk_fma_f32 {acck[r:r+2]}, {acck[r:r+2]}, {rlv[r:r+2]}, {sdel}")
    phi_tail(acck, 16)
    for r in range(8): a(f"v_cvt_pk_bf16_f32 {pkf[r]}, {acck[2*r]}, {acck[2*r+1]}")
    for r in range(0, 16, 2): a(f"v_pk_fma_f32 {accv[r:r+2]}, {nmv[r:r+2]}, {csv[0:2]}, {accv[r:r+2]}")
    for r in range(0, 16, 2): a(f"v_pk_mul_f32 {accv[r:r+2]}, {accv[r:r+2]}, {rv[r:r+2]}")
    for r in range(8): a(f"v_cvt_pk_bf16_f32 {vf[r]}, {accv[2*r]}, {accv[2*r+1]}")
    dkv = tmp[8:12]; dz = tmp[12:16]
    for h in range(2):
        a(f"v_mfma_f32_16x16x32_bf16 {dkv}, {pkf[h*4:h*4+4]}, {vf[h*4:h*4+4]}, {dkv if h else 0}")
        a(f"v_mfma_f32_16x16x32_bf16 {dz}, {pkf[h*4:h*4+4]}, {ones}, {dz if h else 0}")
    k.check(f"v_cmp_ne_u32 vcc, 0, {vroot}", 0xff, rootld, st1)
    a(f"ds_write_b128 {va[0]}, {dkv}\nds_write_b128 {va[1]}, {dz} offset:1024")
    for g in range(4): a(f"ds_read_b32 {tmp[g]}, {va[2]} offset:{g*256}")
    a(f"ds_read_b32 {tmp[4]}, {va[4]} offset:1024")
    swo = spsrc; sw14 = sxr; sc0 = sj1; sw1b = sxb; sinv = srd['wqkv'][2]; sw1o = srd['wqkv'][3]
    a(f"""s_lshl_b32 {swo}, {sw}, 17
s_lshl_b32 {st0}, {sj}, 7
s_add_u32 {swo}, {swo}, {st0}
s_lshl_b32 {sw14}, {sw}, 14
s_and_b32 {srot}, {srb}, {D2 - 1}
s_mul_i32 {srot}, {srot}, {4 // D2}
s_mul_i32 {sc0}, {sj}, 12
s_add_u32 {sc0}, {sc0}, {sw}
s_cmp_lt_u32 {sj}, 7
s_cselect_b32 {sinv}, 0, {OOB}
s_mul_i32 {sw1b}, {sw}, {8*2752}
s_mul_i32 {st0}, {sj}, 384
s_add_u32 {sw1b}, {sw1b}, {st0}""")
    for gg in range(4):
        a(f"buffer_atomic_add_f32 {tmp[gg]}, {va[3]}, {ws}, {skvb} offen offset:{(gg&1)*1024 + (gg>>1)*512}")
    a(f"buffer_atomic_add_f32 {tmp[4]}, {va[5]}, {ws}, {skvb} offen")
    k.stamp('atom')
    a.wait(tok['q', 3]); a("s_barrier")
    WOD = []
    for g4 in range(4):
        WOD += its(f"s_add_u32 {sc_x}, {srot}, {g4}\ns_and_b32 {sc_x}, {sc_x}, 3\ns_lshl_b32 {sc_w}, {sc_x}, 15\ns_add_u32 {sc_w}, {sc_w}, {swo}\ns_lshl_b32 {sc_x}, {sc_x}, 12\ns_add_u32 {sc_x}, {sc_x}, {sw14}\ns_mov_b32 m0, {sc_x}")
        WOD += [k.vm(f"buffer_load_dwordx4 {vp[i]}, {srd['wo']}, {sc_w} offen offset:{i*1024} lds", 'wo') for i in range(2)]
        WOD += its(f"s_add_u32 m0, {sc_x}, 2048\ns_add_u32 {sc_w}, {sc_w}, 16384")
        WOD += [k.vm(f"buffer_load_dwordx4 {vp[i]}, {srd['wo']}, {sc_w} offen offset:{i*1024} lds", 'wo') for i in range(2)]
    UPOS = [WB + p*12288 for p in (3, 7, 0, 1, 2, 4, 5, 6)]
    def U(ks):
        o = its(f"s_add_u32 {sc_w}, {srot}, {ks // 4}\ns_and_b32 {sc_w}, {sc_w}, 3\ns_mul_i32 {sc_w}, {sc_w}, {128*2752}\ns_add_u32 {sc_w}, {sc_w}, {sw1b}") if ks % 4 == 0 else its(f"s_add_u32 {sc_w}, {sc_w}, {32*2752}")
        o += its(f"s_add_u32 {sw1o}, {sc_w}, {sinv}")
        for s in range(3):
            o += its(f"s_add_u32 m0, {sw10}, {UPOS[ks & 7] + s*4096 - s*128}")
            o.append(k.vm(f"buffer_load_dwordx4 {vw1d}, {srd['w1']}, {sw1o if s else sc_w} offen offset:{s*128} lds", ('u', ks)))
        return o
    qf = v(72, 32)
    def qfrag(ks): b = (ks & 7) * 4; return qf[b:b+4]
    for ks in range(4):
        for r in tr(qfrag(ks), q_lds(ks)): a(r)
    if PST == 0: pst()
    mf = []; rd = []
    for ks in range(16):
        for tt in range(4):
            d = accq[tt*4:tt*4+4]
            mf.append(f"v_mfma_f32_16x16x32_bf16 {d}, {qfrag(ks)}, {xfrag(ks, tt)}, {d if ks else 0}")
        mf.append(f"v_mfma_f32_16x16x32_bf16 {csq}, {qfrag(ks)}, {ones}, {csq if ks else 0}")
        if ks + 4 < 16: rd += [It(x, after=5*ks) for x in tr(qfrag(ks+4), q_lds(ks+4))]
    k.pack(mf, [rd, WOD + (U(0) + U(1) if U01 else [])], False, reserve=lambda i: 1 if i % 5 == 4 else 0, vgap=3)
    k.stamp('pass2')
    for tt in range(4):
        for r in (0, 2):
            d = accq[tt*4+r:tt*4+r+2]
            a(f"v_pk_fma_f32 {d}, {qs[tt*2:tt*2+2]}, {csq[r:r+2]}, {d} op_sel_hi:[0,1,1]")
    for tt in range(4):
        for r in (0, 2):
            d = accq[tt*4+r:tt*4+r+2]
            a(f"v_pk_fma_f32 {d}, {d}, {qs[tt*2:tt*2+2]}, {sdel} op_sel:[0,1,0]")
    phi_tail(accq, 16)
    a(f"s_lshl_b32 {st0}, {srb1}, 16\ns_lshl_b32 {st1}, {shead1}, 10\ns_add_u32 {st0}, {st0}, {st1}\ns_add_u32 {st0}, {st0}, {WS_PQ}\ns_add_u32 {st1}, {st0}, 32768")
    for t32 in range(2):
        d = pkf[t32*4:t32*4+4]
        for s in range(2):
            for h in range(2):
                a(f"v_cvt_pk_bf16_f32 {d[2*s+h]}, {accq[(2*t32+s)*4+2*h]}, {accq[(2*t32+s)*4+2*h+1]}")
        for h in range(2): a(f"v_permlane16_swap_b32 {d[h]}, {d[2+h]}")
        tok['pq'] = a(f"buffer_store_dwordx4 {d}, {vl16}, {ws}, {(st0, st1)[t32]} offen sc1")
    k.stamp('pqst')
    a("s_barrier")
    UL = ([] if U01 else U(0) + U(1)) + U(2) + U(3) + U(4) + U(5) + U(6) + U(7)
    def take(lst, nv):
        o = []
        while lst and nv:
            x = lst.pop(0); o.append(x)
            if x.kind == 'vmem': nv -= 1
        return o
    k.run(take(UL, NU_ARR // 2))
    vw1r = v(8, 2); vwr = v(12, 2); vcA = v(14); vc = v(15); vrw = v(16, 3); vrr = v(19); vh = v(20); vst = v(21); vone = v(22); vlz = v(23)
    vfA = v(10); vfl = v(11)
    skv = srd['wqkv'][0]; spq = srd['wqkv'][1]; shb = srd['x'][0]; sstb = srd['x'][1]; se6 = sdst
    a(f"""v_bfe_u32 {t0}, {lane}, 4, 1
v_bfe_u32 {t1}, {lane}, 3, 1
v_lshl_or_b32 {t1}, {t1}, 1, {t0}
v_xor_b32 {t1}, {sw}, {t1}
v_lshlrev_b32 {t1}, 5, {t1}
v_and_b32 {t2}, 3, {lane}
v_lshl_add_u32 {t1}, {t2}, 3, {t1}
v_bfe_u32 {t2}, {lane}, 2, 2
v_lshl_add_u32 {t1}, {t2}, 7, {t1}
v_lshrrev_b32 {t3}, 5, {lane}
v_lshl_add_u32 {t1}, {t3}, 9, {t1}
v_add_u32 {vwr[0]}, {sw14}, {t1}
v_xor_b32 {vwr[1]}, 64, {vwr[0]}
v_lshl_add_u32 {t1}, {t0}, 11, {t1}
v_add_u32 {vw1r[0]}, {WB}, {t1}
v_add_u32 {vw1r[1]}, {WB + 49152}, {t1}
v_mov_b32 {vone}, 1
v_lshlrev_b32 {vlz}, 24, {lane}
v_lshlrev_b32 {t1}, 9, {lane}
v_lshl_add_u32 {vcA}, {t3}, 30, {t1}
v_lshlrev_b32 {vh}, 14, {t0}
v_lshl_add_u32 {vh}, {t3}, 9, {vh}
v_and_b32 {t1}, 15, {lane}
v_lshl_add_u32 {vh}, {t1}, 4, {vh}
v_and_b32 {t1}, 31, {lane}
v_lshlrev_b32 {t1}, 8, {t1}
v_lshl_add_u32 {vst}, {t3}, 30, {t1}
v_lshrrev_b32 {t0}, 3, {lane}
v_lshlrev_b32 {t0}, 26, {t0}
v_lshl_add_u32 {vfA}, {lane}, 7, {t0}""")
    k.run(take(UL, NU_ARR - NU_ARR // 2))
    for r in (1, 2, 3):
        a(f"s_xor_b32 {st0}, {sw}, {r}\ns_lshl_b32 {st0}, {st0}, 13\ns_add_u32 {st0}, {st0}, {r*2048}\nv_add_u32 {vrw[r-1]}, {st0}, {vl16}")
    a(f"""s_lshl_b32 {st0}, {sw}, 13
v_add_u32 {vrr}, {st0}, {vl16}
s_add_u32 {skv}, {sw14}, {WS_KV}
s_lshl_b32 {spq}, {srb}, 16
s_add_u32 {spq}, {spq}, {st0}
s_add_u32 {spq}, {spq}, {WS_PQ}
s_lshl_b32 {shb}, {srb}, 16
s_lshr_b32 {st0}, {shead}, 1
s_lshl_b32 {st0}, {st0}, 10
s_add_u32 {shb}, {shb}, {st0}
s_and_b32 {st0}, {sw}, 1
s_lshl_b32 {st0}, {st0}, 8
s_add_u32 {shb}, {shb}, {st0}
s_add_u32 {shb}, {shb}, {WS_H}
s_lshl_b32 {sstb}, {srb}, 14
s_lshl_b32 {st0}, {shead}, 3
s_add_u32 {sstb}, {sstb}, {st0}
s_add_u32 {sstb}, {sstb}, {WS_ST}
s_mov_b32 {se6}, {f32(1e-6)}
s_and_b32 {st0}, {srb1}, 3
s_lshl_b32 {st0}, {st0}, 9
s_add_u32 {st0}, {st0}, {skvb}""")
    a.wait(tok['pq'])
    a(f"buffer_atomic_add {vone}, {vlz}, {ws}, {st0} offen offset:384")
    k.stamp('arrive')
    WO = v(48, 64); KZ = v(112, 32); OF = v(144, 8); csa = v(40, 4)
    w1 = ag(0, 192)
    wor = []
    for hh in range(8):
        for t in range(2):
            d = WO[(hh*2+t)*4:(hh*2+t)*4+4]
            wor += [f"ds_read_b64_tr_b16 {d[0:2]}, {vwr[t]} offset:{hh*2048}", f"ds_read_b64_tr_b16 {d[2:4]}, {vwr[t]} offset:{hh*2048+1024}"]
    i = 0
    while UL:
        k.run(take(UL, 1)); k.run(wor[i:i+4]); i += 4
    k.run(wor[i:])
    def rd_w1(k0, k1):
        o = []
        for ks in range(k0, k1):
            for s in range(3):
                d = w1[(ks*3+s)*4:(ks*3+s)*4+4]; off = UPOS[ks & 7] - WB + s*4096
                b = vw1r[0] if off < 49152 else vw1r[1]; off %= 49152
                o += [f"ds_read_b64_tr_b16 {d[0:2]}, {b} offset:{off}", f"ds_read_b64_tr_b16 {d[2:4]}, {b} offset:{off + 1024}"]
        return o
    cload = f"buffer_load_dword {vc}, {vcA}, {ws}, {skv} offen offset:384 sc1"
    a(cload)
    a.wait(tok['u', 3]); a("s_waitcnt lgkmcnt(0)\ns_barrier")
    cst = [v(44, 4), v(152, 4), v(156, 4)]; cs = v(224, 12)
    def csm(k0, k1):
        o = []
        for ks in range(k0, k1):
            for s in range(3):
                d = cst[s] if ks < 4 else cs[s*4:s*4+4]
                o.append(f"v_mfma_f32_16x16x32_bf16 {d}, {w1[(ks*3+s)*4:(ks*3+s)*4+4]}, {csa}, {0 if ks == 0 else cst[s] if ks <= 4 else d}")
        return o
    k.run(rd_w1(0, 4)); k.run(csm(0, 4))
    k.stamp('w1a')
    k.check(f"v_cmp_eq_u32 vcc, 8, {vc}", -1, cload, st1)
    k.stamp('s1')
    PQ = ag(192, 64); ACC = v(160, 32); D = v(192, 32); KVR = v(224, 32)
    def ld(dst, sbase, off):
        o = []
        if off >= 4096: o = its(f"s_add_u32 {ssoff}, {sbase}, {off & ~4095}"); sbase = ssoff; off &= 4095
        return o + [k.vm(f"buffer_load_dwordx4 {dst}, {vl16}, {ws}, {sbase} offen offset:{off} sc1")]
    def kvr(hh): return KVR[(hh & 3)*8:(hh & 3)*8+8]
    def head_loads(hh): return ld(kvr(hh)[0:4], skv, hh*2048) + ld(kvr(hh)[4:8], skv, hh*2048 + 1024) + ld(PQ[hh*4:hh*4+4], spq, hh*1024)
    for hh in range(4): k.run(head_loads(hh))
    vxc = v(4, 2)
    a(f"s_barrier\nv_lshrrev_b32 {t2}, 5, {lane}\nv_lshlrev_b32 {t2}, 30, {t2}\nv_lshl_add_u32 {t2}, {lane}, 7, {t2}")
    a(f"buffer_load_dwordx2 {vxc}, {t2}, {ws}, {sflb} offen sc1")
    def store(text):
        if not LOCAL: return a("\n".join(l + " sc1" for l in text.split('\n')))
        k.nlab += 1; n = k.nlab
        a(f"s_cmp_eq_u32 {sxcc}, 0\ns_cbranch_scc1 L_far{n}")
        for l in text.split('\n'): t = a(l + " " + LST)
        a.hidden(f"s_branch L_st{n}\nL_far{n}:\n" + "\n".join(l + " sc1" for l in text.split('\n')) + f"\nL_st{n}:")
        return t
    def p2_half(H, side):
        def cvt_kv(hh): return [f"v_cvt_pk_bf16_f32 {KZ[hh*4+r]}, {kvr(hh)[2*r]}, {kvr(hh)[2*r+1]}" for r in range(4)]
        def om(n): return f"v_mfma_f32_32x32x16_bf16 {D[(n&1)*16:(n&1)*16+16]}, {KZ[n*4:n*4+4]}, {PQ[(H*8+n)*4:(H*8+n)*4+4]}, 0"
        def pm(n, t):
            d = ACC[t*16:t*16+16]
            return f"v_mfma_f32_32x32x16_bf16 {d}, {WO[(n*2+t)*4:(n*2+t)*4+4]}, {OF[(n&1)*4:(n&1)*4+4]}, {d if n else 0}"
        if H == 0: k.run(cvt_kv(0))
        a(om(0))
        if H == 0: k.run(cvt_kv(1))
        for n in range(8):
            d = D[(n&1)*16:(n&1)*16+16]; o = OF[(n&1)*4:(n&1)*4+4]
            ex = list(side(n)); per = -(-len(ex) // 3)
            cv = cvt_kv(n+2) if H == 0 and n + 2 < 8 else []
            if n + 1 < 8: a(om(n+1))
            k.run(ex[:per])
            a(f"v_add_f32 {d[8]}, {se6}, {d[8]}\nv_rcp_f32 {d[8]}, {d[8]}")
            k.run(cv[:2])
            if n > 0: a(pm(n-1, 0))
            k.run(ex[per:2*per])
            for r in range(5): a(f"v_mul_f32 {d[r]}, {d[r]}, {d[8]}")
            if n > 0: a(pm(n-1, 1))
            k.run(ex[2*per:])
            for r in range(5, 8): a(f"v_mul_f32 {d[r]}, {d[r]}, {d[8]}")
            for r in range(4): a(f"v_cvt_pk_bf16_f32 {o[r]}, {d[2*r]}, {d[2*r+1]}")
            k.run(cv[2:])
        a(pm(7, 0)); a(pm(7, 1))
    def red_w(acc, base): return [f"ds_write_b128 {vrw[r-1]}, {acc[r*8+q*4:r*8+q*4+4]} offset:{base + q*1024}" for r in (1, 2, 3) for q in range(2)]
    def red_r(tm, base): return [f"ds_read_b128 {tm[(r-1)*8+q*4:(r-1)*8+q*4+4]}, {vrr} offset:{base + r*2048 + q*1024}" for r in (1, 2, 3) for q in range(2)]
    def reduce(acc, tm, base):
        k.run(red_w(acc, base))
        a("s_waitcnt lgkmcnt(0)\ns_barrier")
        k.run(red_r(tm, base))
    def red_add(acc, tm):
        for r in range(3):
            for e in range(0, 8, 2): a(f"v_pk_add_f32 {acc[e:e+2]}, {acc[e:e+2]}, {tm[r*8+e:r*8+e+2]}")
    HBs = [v(32, 8), v(24, 8)]
    stt = D[8:12]
    def p2_epi(H):
        own = ACC[0:8]; h4 = OF[H*4:H*4+4]
        for r in range(4):
            a(f"v_lshlrev_b32 {D[2*r]}, 16, {xres[4*H+r]}\nv_and_b32 {D[2*r+1]}, 0xffff0000, {xres[4*H+r]}")
        for e in range(0, 8, 2): a(f"v_pk_add_f32 {own[e:e+2]}, {own[e:e+2]}, {D[e:e+2]}")
        red_add(ACC, KVR)
        for r in range(4): a(f"v_cvt_pk_bf16_f32 {h4[r]}, {own[2*r]}, {own[2*r+1]}")
        if H: a(f"s_add_u32 {shb}, {shb}, 32768\ns_add_u32 {sstb}, {sstb}, 8192")
        store(f"buffer_store_dwordx4 {h4}, {vh}, {ws}, {shb} offen")
        a(f"v_mov_b32 {stt[0]}, 0\nv_mov_b32 {stt[1]}, 0")
        for r in range(4):
            a(f"v_dot2_f32_bf16 {stt[0]}, {h4[r]}, {sones}, {stt[0]}\nv_dot2_f32_bf16 {stt[1]}, {h4[r]}, {h4[r]}, {stt[1]}")
        for r in range(2):
            a(f"v_lshlrev_b32 {HBs[H][2*r]}, 16, {h4[r]}\nv_and_b32 {HBs[H][2*r+1]}, 0xffff0000, {h4[r]}")
        a(f"v_mov_b32 {stt[2]}, {stt[0]}\nv_mov_b32 {stt[3]}, {stt[1]}")
        for r in range(2, 4):
            a(f"v_lshlrev_b32 {HBs[H][2*r]}, 16, {h4[r]}\nv_and_b32 {HBs[H][2*r+1]}, 0xffff0000, {h4[r]}")
        a(f"v_permlane32_swap_b32 {stt[2]}, {stt[0]}\nv_permlane32_swap_b32 {stt[3]}, {stt[1]}")
        a(f"v_pk_add_f32 {stt[0:2]}, {stt[0:2]}, {stt[2:4]}")
        tok['h', H] = store(f"buffer_store_dwordx2 {stt[0:2]}, {vst}, {ws}, {sstb} offen")
    def flag(sync):
        k.nlab += 1; n = k.nlab
        a(f"s_cmp_lg_u32 {sw}, 3\ns_cbranch_scc1 L_nf{n}")
        a.hidden(f"""s_lshl_b32 {st0}, {sj}, 7
s_add_u32 {st0}, {st0}, {sflb}
s_cmp_eq_u32 {sxcc}, {0 if LOCAL else sxcc}
s_cbranch_scc1 L_ff{n}
buffer_store_dword {vone}, {vlz}, {ws}, {st0} offen offset:{sync*1024}
s_branch L_nf{n}
L_ff{n}:
buffer_store_dword {vone}, {vlz}, {ws}, {st0} offen offset:{sync*1024} sc1
L_nf{n}:""")
    def fload(sync): return f"buffer_load_dword {vfl}, {vfA}, {ws}, {sflb} offen offset:{sync*1024} sc1"
    def fcheck(sync): k.check(f"v_cmp_ne_u32 vcc, 0, {vfl}", 0xff, fload(sync), st1)
    pqB = [ld(PQ[(8+hh)*4:(8+hh)*4+4], spq, 32768 + hh*1024) for hh in range(8)]
    p2_half(0, lambda n: head_loads(n+4) if n < 4 else pqB[(n-4)*2] + pqB[(n-4)*2+1])
    k.stamp('p2a')
    a.wait(tok['u', 7])
    a(f"v_cmp_eq_u32 vcc, {sxcc}, {vxc[1]}\ns_cmp_eq_u32 vcc_lo, -1\ns_cselect_b32 {sxcc}, 1, 0")
    reduce(ACC, KVR, 0)
    p2_epi(0)
    k.stamp('puba')
    UB = U(8) + U(9) + U(10) + U(11); UC = U(12) + U(13) + U(14) + U(15); R47 = rd_w1(4, 8)
    def sideB(n):
        o = take(UB, 2 if n < 4 else 1) + (R47[6*n:6*n+6] if n < 4 else [])
        if n == FA: o = [lambda: (a.wait(tok['h', 0]), a("s_barrier"), flag(0))] + o
        return o
    p2_half(1, sideB)
    k.stamp('p2b')
    reduce(ACC, KVR, 32768)
    p2_epi(1)
    k.stamp('pubb')
    b1r = v(248, 6); b2 = v(160, 4)
    a(f"v_lshrrev_b32 {t0}, 4, {lane}\nv_lshlrev_b32 {t0}, 3, {t0}\ns_lshl_b32 {st0}, {sc0}, 5\nv_lshrrev_b32 {t1}, 5, {lane}\nv_lshlrev_b32 {t1}, 3, {t1}\ns_lshl_b32 {st1}, {shead}, 5")
    for i in range(3): a(f"buffer_load_dwordx2 {b1r[2*i:2*i+2]}, {t0}, {srd['b1']}, {st0} offen offset:{i*128}")
    for e in range(2): a(f"buffer_load_dwordx2 {b2[2*e:2*e+2]}, {t1}, {srd['b2']}, {st1} offen offset:{e*16}")
    a(fload(0))
    shs = skv; sst = spq; sw2 = swo; send = sc_x; shh = [skvb, shead1]; so2 = swb; srot3 = srb1; sgab = smA
    vsl = v(12); vsw = v(13); vrn = v(0); vgb = v(20, 2); vw2 = v(14, 2)
    RB = 65536
    setup = its(f"""s_lshl_b32 {shs}, {srb}, 16
s_add_u32 {st0}, {sw}, {srot}
s_and_b32 {st0}, {st0}, 3
s_lshl_b32 {st0}, {st0}, 12
s_add_u32 {shs}, {shs}, {st0}
s_add_u32 {shs}, {shs}, {WS_H}
s_lshl_b32 {sst}, {srb}, 14
s_add_u32 {sst}, {sst}, {sw11}
s_add_u32 {sst}, {sst}, {WS_ST}
v_lshlrev_b32 {vsl}, 5, {lane}
v_and_b32 {t3}, 56, {lane}
s_lshl_b32 {st0}, {sw}, 6
s_add_u32 {st0}, {st0}, {RB}
v_add_u32 {vsw}, {st0}, {t3}
s_mul_i32 {st0}, {srb}, {2*88*1024}
s_mul_i32 {st1}, {sw}, {22*1024}
s_add_u32 {st0}, {st0}, {st1}
s_add_u32 {shb}, {st0}, {WS_HH}
s_mul_i32 {st1}, {sj}, 3072
s_add_u32 {shh[0]}, {shb}, {st1}
s_add_u32 {shh[1]}, {shh[0]}, {sinv}
s_mov_b32 {sgab[0]}, {f32(GA)}
s_mov_b32 {sgab[1]}, {f32(GA)}
v_mov_b32 {vgb[0]}, {f32(GB)}
v_mov_b32 {vgb[1]}, {f32(GB)}
v_and_b32 {t0}, 15, {lane}
v_lshlrev_b32 {t0}, 3, {t0}
v_add_u32 {vrn}, {RB}, {t0}
s_and_b32 {st0}, {sw}, 1
s_lshl_b32 {st0}, {st0}, 8
s_lshr_b32 {st1}, {sw}, 1
s_lshl_b32 {st1}, {st1}, 10
s_add_u32 {st0}, {st0}, {st1}
v_xor_b32 {vw2[0]}, {st0}, {vl16}
v_xor_b32 {vw2[1]}, 1024, {vw2[0]}
s_mul_i32 {sw2}, {shead}, {22*2048}
s_add_u32 {sw2}, {sw2}, {WS_W2}
s_and_b32 {srot3}, {srb}, {D3 - 1}
s_mul_i32 {srot3}, {srot3}, {(11 // D3) if D3 > 1 else 0}
s_lshl_b32 {so2}, {srot3}, 12
s_add_u32 {so2}, {so2}, {sw2}
s_add_u32 {send}, {sw2}, {11*4096}""")
    k.pack(csm(4, 8), [setup], False)
    fcheck(0)
    a("s_waitcnt vmcnt(0)\ns_barrier"); flag(1)
    k.stamp('s2')
    def dma_h(tt):
        return (its(f"s_add_u32 m0, {sw12}, {tt*16384}\ns_add_u32 {ssoff}, {shs}, {tt*16384}")
                + [k.vm(f"buffer_load_dwordx4 {vl16}, {ws}, {ssoff} offen offset:{i*1024} sc1 lds", ('ht', tt)) for i in range(4)])
    acc3 = v(160, 24); hf = v(184, 16); pk = v(200, 12); tm = v(212, 12); b1f = v(236, 12); rn = v(248, 8)
    sv = v(152, 8)
    def stat_loads(H):
        return (its(f"s_add_u32 {sst}, {sst}, 8192") if H else []) + [k.vm(f"buffer_load_dwordx4 {sv[q*4:q*4+4]}, {vsl}, {ws}, {sst} offen offset:{q*16} sc1") for q in range(2)]
    def stat_math(H):
        s = sv
        a(f"v_pk_add_f32 {s[0:2]}, {s[0:2]}, {s[2:4]}\nv_pk_add_f32 {s[4:6]}, {s[4:6]}, {s[6:8]}\nv_pk_add_f32 {s[0:2]}, {s[0:2]}, {s[4:6]}")
        for d in (DPP_X1, DPP_X2, DPP_HM): a(f"v_add_f32 {s[0]}, {s[0]}, {s[0]} {d}\nv_add_f32 {s[1]}, {s[1]}, {s[1]} {d}")
        a(f"""v_mul_f32 {s[0]}, {f32(1/512)}, {s[0]}
v_mul_f32 {s[1]}, {f32(1/512)}, {s[1]}
v_fma_f32 {s[1]}, -{s[0]}, {s[0]}, {s[1]}
v_max_f32 {s[1]}, 0, {s[1]}
v_add_f32 {s[2]}, {seps}, {s[1]}
v_rsq_f32 {s[2]}, {s[2]}
v_mul_f32 {s[3]}, {s[2]}, {s[2]}
v_fma_f32 {s[3]}, {s[3]}, {s[1]}, {seps}
v_rsq_f32 {s[3]}, {s[3]}
v_mul_f32 {s[2]}, {s[2]}, {s[3]}
v_mul_f32 {s[3]}, -{s[2]}, {s[0]}
ds_write_b64 {vsw}, {s[2:4]} offset:{H*256}""")
    k.run(dma_h(0) + stat_loads(0))
    R8 = rd_w1(8, 12)
    for i, lst in enumerate([dma_h(1), take(UC, 2), take(UC, 2), take(UC, 2)]):
        k.run(R8[6*i:6*i+6]); k.run(lst)
    k.pack(csm(8, 12), [UC], False, vgap=2)
    for H in range(2):
        for r in range(4):
            a(f"v_lshlrev_b32 {tm[0]}, 16, {b2[r]}\nv_and_b32 {tm[1]}, 0xffff0000, {b2[r]}\nv_pk_add_f32 {HBs[H][2*r:2*r+2]}, {HBs[H][2*r:2*r+2]}, {tm[0:2]}")
    for i in range(3):
        for h in range(2):
            a(f"v_lshlrev_b32 {b1f[i*4+2*h]}, 16, {b1r[2*i+h]}\nv_and_b32 {b1f[i*4+2*h+1]}, 0xffff0000, {b1r[2*i+h]}")
    W2A = ag(192, 64); W2V = v(48, 112)
    def w2frag(n, t): i = n*2 + t; return W2V[i*4:i*4+4] if i < 28 else W2A[(i-28)*4:(i-28)*4+4]
    W2L = []
    for n in range(22):
        W2L += [k.vm(f"buffer_load_dwordx4 {w2frag(n, t)}, {vw2[t]}, {ws}, {so2} offen offset:{(n & 1)*2048} sc1") for t in range(2)]
        if n & 1: W2L.append(It(f"s_add_u32 {so2}, {so2}, 4096" + (f"\ns_cmp_eq_u32 {so2}, {send}\ns_cselect_b32 {so2}, {sw2}, {so2}" if D3 > 1 else ""), cost=2 if D3 > 1 else 1))
    def epi1(tt):
        ac = acc3[(tt&1)*12:(tt&1)*12+12]; p = rn[tt*2:tt*2+2]
        for e in range(0, 12, 2): a(f"v_pk_fma_f32 {tm[e:e+2]}, {p}, {cs[e:e+2]}, {b1f[e:e+2]} op_sel:[1,0,0]")
        for e in range(0, 12, 2): a(f"v_pk_fma_f32 {ac[e:e+2]}, {p}, {ac[e:e+2]}, {tm[e:e+2]} op_sel_hi:[0,1,1]")
        for e in range(0, 12, 2): a(f"v_pk_mul_f32 {tm[e:e+2]}, {ac[e:e+2]}, {ac[e:e+2]}")
        for e in range(0, 12, 2): a(f"v_pk_fma_f32 {tm[e:e+2]}, {tm[e:e+2]}, {sgab}, {vgb}")
        for e in range(0, 12, 2): a(f"v_pk_mul_f32 {tm[e:e+2]}, {tm[e:e+2]}, {ac[e:e+2]}")
    def epi2(tt):
        return [f"v_exp_f32 {tm[e]}, {tm[e]}" for e in range(12)] + [f"v_add_f32 {tm[e]}, 1.0, {tm[e]}" for e in range(12)] + [f"v_rcp_f32 {tm[e]}, {tm[e]}" for e in range(12)]
    def epi3(tt):
        ac = acc3[(tt&1)*12:(tt&1)*12+12]
        for e in range(0, 12, 2): a(f"v_pk_mul_f32 {ac[e:e+2]}, {ac[e:e+2]}, {tm[e:e+2]}")
        for i in range(3):
            for h in range(2): a(f"v_cvt_pk_bf16_f32 {pk[i*4+(tt&1)*2+h]}, {ac[i*4+2*h]}, {ac[i*4+2*h+1]}")
        if tt & 1:
            for i in range(3):
                for h in range(2): a(f"v_permlane16_swap_b32 {pk[i*4+h]}, {pk[i*4+2+h]}")
            if tt == 3: a(f"s_add_u32 {shh[0]}, {shh[0]}, {88*1024}\ns_add_u32 {shh[1]}, {shh[1]}, {88*1024}")
            tok['hh', tt >> 1] = store("\n".join(f"buffer_store_dwordx4 {pk[i*4:i*4+4]}, {vl16}, {ws}, {shh[min(i, 1)]} offen offset:{i*1024}" for i in range(3)))
    def rd(n): return f"ds_read_b128 {hf[(n&3)*4:(n&3)*4+4]}, {vl16} offset:{n*1024}"
    def rnrd(tt): return f"ds_read_b64 {rn[tt*2:tt*2+2]}, {vrn} offset:{tt*128}"
    a.wait(tok['ht', 0]); a("s_barrier")
    for n in range(3): a(rd(n))
    stat_math(0)
    k.stamp('t0')
    def bar(*keys, more=None):
        def f():
            for key in keys: a.wait(tok[key])
            a("s_barrier")
            if more: more()
        return It(f, cost=2, kind='salu')
    for tt in range(4):
        mf = []; rq = []
        for ks in range(16):
            n = tt*16 + ks
            for i in range(3):
                d = acc3[(tt&1)*12+i*4:(tt&1)*12+i*4+4]
                mf.append(f"v_mfma_f32_16x16x32_bf16 {d}, {w1[(ks*3+i)*4:(ks*3+i)*4+4]}, {hf[(n&3)*4:(n&3)*4+4]}, {d if ks else 0}")
            if tt == 0 and ks == 8:
                x = bar(('u', 15)); x.after = 3*ks - 1; rq.append(x)
                rq2 = [It(y, after=3*ks, by=36 + 3*(i // 6)) for i, y in enumerate(rd_w1(12, 16))]
            if ks == 13 and tt < 3:
                x = bar(('ht', tt+1)); x.after = 3*ks - 2; rq.append(x)
            if n + 3 < 64: rq.append(It(rd(n + 3), after=3*ks, by=3*ks + 6))
        if tt == 0:
            rq += [It(rnrd(0), after=43), It(rnrd(1), after=44)]
            mf += csm(12, 16)
        if tt == 2: rq += [It(rnrd(2), after=43), It(rnrd(3), after=44)]
        vq = take(W2L, {0: 10, 1: 3, 2: 15, 3: 16}[tt])
        if tt == 0: vq.append(k.vm(fload(1)))
        if tt == 1: vq = [It(lambda: fcheck(1), cost=2, kind='salu')] + dma_h(2) + stat_loads(1) + dma_h(3) + vq
        fq = rq2 if tt == 0 else []
        if tt == 3:
            x = bar(('hh', 0), more=lambda: flag(2)); x.after = F3; fq = [x]
        k.pack(mf, [rq, fq, vq, epi2(tt-1) if tt else []], False, reserve=lambda i: 1 if i % 3 == 2 else 0, vgap=3)
        k.stamp('m%d' % tt)
        if tt: epi3(tt-1)
        if tt == 1: stat_math(1)
        epi1(tt)
        k.stamp('e%d' % tt)
    assert not W2L or all(x.kind != 'vmem' for x in W2L)
    k.run(epi2(3))
    epi3(3)
    k.stamp('p3e')
    HH = ag(0, 176); acc4 = v(160, 64); tm4 = v(224, 24); ob = v(248, 4)
    shv = shb; vo = v(12); sob = sw2
    a(fload(2))
    a(f"""v_and_b32 {t0}, 31, {lane}
v_lshlrev_b32 {vo}, 10, {t0}
v_lshrrev_b32 {t0}, 5, {lane}
v_lshl_add_u32 {vo}, {t0}, 4, {vo}
s_lshl_b32 {sob}, {srb}, 16
s_lshl_b32 {st0}, {shead}, 5
s_add_u32 {sob}, {sob}, {st0}""")
    fcheck(2)
    a("s_waitcnt vmcnt(0)\ns_barrier"); flag(3)
    k.stamp('s3')
    def ld_hh(H):
        o = its(f"s_add_u32 {shv}, {shv}, {88*1024}") if H else []
        o += its(f"s_lshl_b32 {so2}, {srot3}, 11\ns_add_u32 {so2}, {so2}, {shv}\ns_add_u32 {send}, {shv}, {22*1024}")
        for n in range(22):
            step = 2 if D3 > 1 else 4
            o.append(k.vm(f"buffer_load_dwordx4 {HH[(H*22+n)*4:(H*22+n)*4+4]}, {vl16}, {ws}, {so2} offen offset:{(n % step)*1024} sc1"))
            if n % step == step - 1: o.append(It(f"s_add_u32 {so2}, {so2}, {step*1024}" + (f"\ns_cmp_eq_u32 {so2}, {send}\ns_cselect_b32 {so2}, {shv}, {so2}" if D3 > 1 else ""), cost=3 if D3 > 1 else 1))
        return o
    def p4_mf(H):
        o = []
        for n in range(22):
            for t in range(2):
                d = acc4[H*32+t*16:H*32+t*16+16]
                o.append(f"v_mfma_f32_32x32x16_bf16 {d}, {w2frag(n, t)}, {HH[(H*22+n)*4:(H*22+n)*4+4]}, {d if n else 0}")
        return o
    def p4_epi(H, packed):
        own = acc4[H*32:H*32+8]; o = []
        if packed:
            o += [f"v_pk_add_f32 {own[e:e+2]}, {own[e:e+2]}, {HBs[H][e:e+2]}" for e in range(0, 8, 2)]
            o += [f"v_pk_add_f32 {own[e:e+2]}, {own[e:e+2]}, {tm4[r*8+e:r*8+e+2]}" for r in range(3) for e in range(0, 8, 2)]
        else:
            o += [f"v_add_f32 {own[e]}, {own[e]}, {HBs[H][e]}" for e in range(8)]
            o += [f"v_add_f32 {own[e]}, {own[e]}, {tm4[r*8+e]}" for r in range(3) for e in range(8)]
        o += [f"v_cvt_pk_bf16_f32 {ob[r]}, {own[2*r]}, {own[2*r+1]}" for r in range(4)]
        o += [f"v_permlane32_swap_b32 {ob[h]}, {ob[2+h]}" for h in range(2)]
        if H: o.append(f"s_add_u32 {sob}, {sob}, 32768")
        o.append(f"buffer_store_dwordx4 {ob}, {vo}, {srd['out']}, {sob} offen")
        return o
    LA = ld_hh(0); LB = ld_hh(1)
    k.run(take(LA, AH))
    x = It(lambda: fcheck(3), cost=4, kind='salu', after=34)
    k.pack(p4_mf(0), [LA + [k.vm(fload(3)), x] + take(LB, 4)], True, reserve=lambda i: 1, vgap=2)
    k.stamp('p4a')
    for x in red_w(acc4[0:32], 0):
        a(x); k.run(take(LB, 1))
    a("s_waitcnt lgkmcnt(0)\ns_barrier")
    k.pack(p4_mf(1), [LB, red_r(tm4, 0), [It(x, after=8) for x in p4_epi(0, False)]], True, reserve=lambda i: 1, vgap=2)
    k.stamp('p4b')
    reduce(acc4[32:64], tm4, 32768)
    k.run(p4_epi(1, True))
    if STAMPS:
        a("s_waitcnt vmcnt(0)"); STAMPS.append('end'); k.stamp('end')
        t = f"s_memrealtime {rt[2:4]}\ns_waitcnt lgkmcnt(0)\nv_mov_b32 {t0}, {sw}\nv_lshlrev_b32 {t0}, 28, {t0}\ns_lshl_b32 {st0}, s2, 6\ns_add_u32 {st0}, {st0}, {WS_DBG}\n"
        for i in range(1, len(k.stamped)):
            t += f"s_sub_u32 {st1}, {k.str_[2*i]}, {k.str_[0]}\nv_mov_b32 {t1}, {st1}\nbuffer_store_dword {t1}, {t0}, {ws}, {st0} offen offset:{4*i}\n"
        t += f"v_mov_b32 {t1}, {rt[0]}\nbuffer_store_dword {t1}, {t0}, {ws}, {st0} offen offset:56\n"
        t += f"v_mov_b32 {t1}, {rt[2]}\nbuffer_store_dword {t1}, {t0}, {ws}, {st0} offen offset:60\n"
        a.hidden(t)
        print('stamps:', k.stamped[1:], file=sys.stderr)
    a("L_end:\ns_endpgm")
    return a.finish(), S.peak

def assemble():
    hdr = open('cdna_kernels/' + NAME + '.s.ref').read().split('; Override')[0]
    body, sp = kernel()
    print('sgpr', sp, 'lines', body.count('\n'), 'nops', body.count('s_nop'), file=sys.stderr)
    n = NAME + '_kernel'
    return (hdr + "; @launch grid=(256,1,1) block=(256,1,1) lds=163840\n" + '.amdgcn_target "amdgcn-amd-amdhsa--gfx950"\n.text\n'
            + f".globl {n}\n.p2align 8\n.type {n},@function\n{n}:\n{body}" + '.section .rodata,"a"\n.p2align 6\n' + descriptor(n, 512, 256))

if __name__ == '__main__':
    for x in sys.argv[3:]: exec(x)
    if len(sys.argv) > 2 and sys.argv[2] != '-': STAMPS = sys.argv[2].split(',')
    open(sys.argv[1], 'w').write(assemble())
```

```python
from asmlib import *
import struct, sys
def f32(x): return '0x%08x' % struct.unpack('<I', struct.pack('<f', x))[0]
NAME = 'sequential_preLN__linear_attn_block__mixer_channel_mlp__prompt'
WS_PQ = 0
WS_W2 = WS_PQ + (2 << 20)
WS_KV = WS_W2 + 8 * 88 * 2048
WS_H  = WS_KV + 65536
WS_ST = WS_H + (2 << 20)
WS_HH = WS_ST + 32 * 16384
WS_FL = WS_HH + 32 * 2 * 88 * 1024
WS_END = WS_FL + 32 * 4096
WS_DBG = WS_END
OOB = 0x7ff00000
LOG2E = 1.4426950408889634; LN2 = 0.6931471805599453
GA = -2 * 0.7978845608028654 * 0.044715 * LOG2E
GB = -2 * 0.7978845608028654 * LOG2E
KA = dict(x=0, wqkv=8, wo=16, w1=32, b1=40, w2=48, b2=56, out=64, dbg=72, ws=80)
SZ = dict(x=2048*512*2, wqkv=512*1536*2, wo=512*512*2, w1=512*1376*2, b1=1376*2, w2=1376*512*2, b2=512*2,
          out=2048*512*2, dbg=256, ws=WS_END + 16384)
DPP_X1 = 'quad_perm:[1,0,3,2] row_mask:0xf bank_mask:0xf'
DPP_X2 = 'quad_perm:[2,3,0,1] row_mask:0xf bank_mask:0xf'
DPP_HM = 'row_half_mirror row_mask:0xf bank_mask:0xf'
SPIN = 0x40000
STAMPS = None
D1 = 8
D2 = 1
D3 = 1
AH = 10
VG1 = 4
FA = 6
F3 = 40
F4 = 24
EARLY = 1
UBA = 1
PACE = 1
FB0 = 3; FB1 = 40; FB2 = 3
NOW2 = 0; NOW1 = 0
red_w_last = None
NU_ARR = 0
PRE = 3
NS1 = 3
W2N = (3, 5, 4, 8, 8)
W2E = 2
VG3 = 6
HW = 7
T1 = ()
T2 = 0
LFLAG = 1

def v(b, n=1): return R('v', b, n)
def ag(b, n=1): return R('a', b, n)

class It:
    def __init__(self, x, cost=None, kind=None, after=0, by=None):
        self.x = x; self.after = after; self.by = by
        self.dw = 2 if isinstance(x, str) and 'b128' in x.split()[0] else 1
        if kind is None:
            mn = x.split()[0]
            kind = ('trans' if mn.startswith(TRANS) else 'valu' if mn.startswith('v_') else 'ds' if mn.startswith('ds_')
                    else 'vmem' if mn.startswith(('buffer', 'global')) else 'salu')
        self.kind = kind
        self.cost = cost if cost is not None else {'trans': 2, 'valu': 1, 'ds': 1, 'vmem': 3, 'salu': 1}.get(kind, 1)
def its(text, after=0): return [It(l.strip(), after=after) for l in text.split('\n') if l.strip()]

class K:
    def __init__(self):
        self.a = Asm(); self.S = Regs('s', 4, 102); self.nlab = 0
        self.stamped = []; self.tok = {}
    def emit(self, x):
        if isinstance(x, It): x = x.x
        if callable(x): return x()
        return self.a(x)
    def run(self, items):
        for x in items: self.emit(x)
    def vm(self, text, key=None, after=0):
        def f():
            t = self.a(text)
            if key is not None: self.tok[key] = t
        return It(f, kind='vmem', after=after)
    def pack(self, mf, queues, big, reserve=None, vgap=0):
        qs = [[x if isinstance(x, It) else It(x) for x in q] for q in queues]
        cap, vcap, dcap = (7, 6, 4) if big else (3, 2, 2)
        lastv = -99
        for i, m in enumerate(mf):
            for q in qs:
                late = [n for n, x in enumerate(q) if x.by is not None and x.by <= i]
                if late:
                    assert all(x.after < i for x in q[:late[-1] + 1])
                    self.run(q[:late[-1] + 1]); del q[:late[-1] + 1]
            self.emit(m)
            s = cap - (reserve(i) if reserve else 0); vs = vcap; d = dcap
            for q in qs:
                while q:
                    x = q[0]
                    if x.after > i or x.cost > s: break
                    if x.kind in ('valu', 'trans') and x.cost > vs: break
                    if x.kind == 'ds' and x.dw > d: break
                    if x.kind == 'vmem' and i - lastv < vgap: break
                    q.pop(0); self.emit(x); s -= x.cost
                    if x.kind in ('valu', 'trans'): vs -= x.cost
                    if x.kind == 'trans' and not big: s = 0
                    if x.kind == 'ds': d -= x.dw
                    if x.kind == 'vmem': lastv = i
        left = sum(len(q) for q in qs)
        for q in qs: self.run(q)
        return left
    def stamp(self, name):
        if STAMPS and name in STAMPS:
            n = len(self.stamped); self.stamped.append(name)
            self.a.hidden(f"s_memtime {self.str_[2*n:2*n+2]}")
    def check(self, cmp_, mask, reload, st1):
        a = self.a; self.nlab += 1; n = self.nlab
        a(cmp_)
        a(f"s_cmp_eq_u32 vcc_lo, {mask}\ns_cbranch_scc1 L_ok{n}")
        a.hidden(f"""s_mov_b32 {st1}, 0
L_spin{n}:
{reload}
s_add_u32 {st1}, {st1}, 1
s_waitcnt vmcnt(0)
{cmp_}
s_cmp_ge_u32 {st1}, {SPIN}
s_cbranch_scc1 L_ok{n}
s_nop 1
s_cmp_eq_u32 vcc_lo, {mask}
s_cbranch_scc0 L_spin{n}
L_ok{n}:""")

def kernel():
    k = K(); a = k.a; S = k.S; tok = k.tok
    a("s_cmp_ge_u32 s2, 256\ns_cbranch_scc1 L_end")
    if STAMPS:
        k.str_ = S.alloc(2*len(STAMPS) + 4, 4); rt = S.alloc(4, 4)
        a.hidden(f"s_memrealtime {rt[0:2]}")
        STAMPS.insert(0, 'start')
    k.stamp('start')
    srd = {}
    for n in ['x', 'wqkv', 'ws', 'dbg', 'wo', 'w1', 'w2', 'b1', 'b2', 'out']: srd[n] = S.alloc(4)
    for n in ['x', 'wqkv']: a(f"s_load_dwordx2 {srd[n][0:2]}, s[0:1], {KA[n]}")
    for n in ['x', 'wqkv']: a(f"s_mov_b32 {srd[n][2]}, {SZ[n]}\ns_mov_b32 {srd[n][3]}, 0x00020000")
    ws = srd['ws']
    st0, st1, ssoff, sw, sj, srb, shead, sj1, srb1, shead1 = [S.alloc() for _ in range(10)]
    sxb, swb, sw10, sw11, sw12, srot, sc_x, sc_w = [S.alloc() for _ in range(8)]
    lane, vl16, t0, t1, t2, t3 = v(1), v(2), v(4), v(5), v(6), v(7)
    vxd = v(8, 2); vwd = v(10, 2)
    a(f"""v_and_b32 {lane}, 63, v0
v_lshrrev_b32 {t0}, 6, v0
v_readfirstlane_b32 {sw}, {t0}
s_and_b32 {sj1}, s2, 1
s_lshl_b32 {sj1}, {sj1}, 2
s_bfe_u32 {st0}, s2, 0x20003
s_add_u32 {sj1}, {sj1}, {st0}
s_bfe_u32 {srb1}, s2, 0x20001
s_lshl_b32 {srb1}, {srb1}, 3
s_lshr_b32 {st0}, s2, 5
s_add_u32 {srb1}, {srb1}, {st0}
v_lshrrev_b32 {t0}, 3, {lane}
v_and_b32 {t1}, 7, {lane}
v_xor_b32 {t2}, {t0}, {t1}
v_lshlrev_b32 {t2}, 4, {t2}
v_lshl_add_u32 {vxd[0]}, {t0}, 10, {t2}
v_add_u32 {vxd[1]}, 7168, {vxd[0]}
v_bfe_u32 {t2}, {lane}, 4, 1
s_and_b32 {st0}, {sw}, 1
s_lshl_b32 {st0}, {st0}, 1
v_or_b32 {t2}, {st0}, {t2}
v_lshrrev_b32 {t3}, 1, {t1}
v_xor_b32 {t2}, {t2}, {t3}
v_lshlrev_b32 {t2}, 5, {t2}
v_and_b32 {t3}, 1, {lane}
v_lshl_add_u32 {t2}, {t3}, 4, {t2}
v_mul_u32_u24 {vwd[0]}, 3072, {t0}
v_add_u32 {vwd[0]}, {vwd[0]}, {t2}
v_add_u32 {vwd[1]}, {98304 - 2048}, {vwd[0]}
s_lshl_b32 {sxb}, {srb1}, 16
s_lshl_b32 {st0}, {sw}, 14
s_add_u32 {sxb}, {sxb}, {st0}
s_mul_i32 {swb}, {sw}, {8*3072}
s_lshl_b32 {st0}, {sj1}, 7
s_add_u32 {swb}, {swb}, {st0}
s_lshl_b32 {sw10}, {sw}, 10
s_lshl_b32 {sw11}, {sw}, 11
s_lshl_b32 {sw12}, {sw}, 12
s_add_u32 {srot}, {srb1}, {sj1}
s_and_b32 {srot}, {srot}, {D1 - 1}
s_mul_i32 {srot}, {srot}, {8 // D1}""")
    WB = 65536; PB = WB + 5 * 16384; XR = PB + 8192
    def X(c):
        return (its(f"s_add_u32 {sc_x}, {srot}, {c}\ns_and_b32 {sc_x}, {sc_x}, 7\ns_lshl_b32 {sc_x}, {sc_x}, 7\ns_add_u32 {sc_x}, {sc_x}, {sxb}\ns_add_u32 m0, {sw11}, {c*8192}")
                + [k.vm(f"buffer_load_dwordx4 {vxd[o]}, {srd['x']}, {sc_x} offen offset:{o*1024} lds", ('x', c)) for o in range(2)])
    def wrot(c, add): return f"s_add_u32 {sc_w}, {srot}, {c}\ns_and_b32 {sc_w}, {sc_w}, 7\ns_mul_i32 {sc_w}, {sc_w}, {64*3072}\ns_add_u32 {sc_w}, {sc_w}, {swb}\n" + (f"s_add_u32 {sc_w}, {sc_w}, {add}\n" if add else "")
    def W(c):
        return (its(wrot(c, 1024) + f"s_add_u32 m0, {sw12}, {WB + (c % 5)*16384}")
                + [k.vm(f"buffer_load_dwordx4 {vwd[i >> 1]}, {srd['wqkv']}, {sc_w} offen offset:{i*1024} lds", ('w', c)) for i in range(4)])
    QSLOT = [3, 4, 0, 1]; QPOS = [0, 2048, 1024, 3072]
    def Q(n):
        o = []
        for h in range(2):
            o += its(wrot(2*n + h, 0) + f"s_add_u32 m0, {sw12}, {WB + QSLOT[n]*16384 + h*1024}")
            o += [k.vm(f"buffer_load_dwordx4 {vwd[i]}, {srd['wqkv']}, {sc_w} offen offset:{i*2048} lds", ('q', n)) for i in range(2)]
        return o
    def kv_lds(ks, p): return ((ks // 2) % 5) * 16384 + (ks & 1) * 2048 + p * 1024
    def q_lds(ks): return QSLOT[ks // 4] * 16384 + QPOS[ks & 3]
    a("s_waitcnt lgkmcnt(0)"); k.stamp('karg')
    k.run(X(0) + W(0))
    for n in srd:
        if n not in ('x', 'wqkv'): a(f"s_load_dwordx2 {srd[n][0:2]}, s[0:1], {KA[n]}")
    k.run(X(1) + W(1))
    for n in srd:
        if n not in ('x', 'wqkv'): a(f"s_mov_b32 {srd[n][2]}, {SZ[n]}\ns_mov_b32 {srd[n][3]}, 0x00020000")
    skvb, sflb, spsrc, sxr, sdst, sones, seps = [S.alloc() for _ in range(7)]
    vz = v(44, 4); ones = v(40, 4); sxcc = S.alloc()
    a(f"s_getreg_b32 {sxcc}, hwreg(HW_REG_XCC_ID)\ns_and_b32 {sxcc}, {sxcc}, 15\ns_add_u32 {sxcc}, {sxcc}, 1")
    a(f"""s_bfe_u32 {sj}, s2, 0x30003
s_and_b32 {srb}, s2, 7
s_lshl_b32 {srb}, {srb}, 2
s_lshr_b32 {st0}, s2, 6
s_add_u32 {srb}, {srb}, {st0}
s_lshl_b32 {shead}, {sj}, 2
s_add_u32 {shead}, {shead}, {sw}
s_lshl_b32 {shead1}, {sj1}, 2
s_add_u32 {shead1}, {shead1}, {sw}
s_lshl_b32 {skvb}, {shead1}, 11
s_add_u32 {skvb}, {skvb}, {WS_KV}
s_lshl_b32 {sflb}, {srb}, 12
s_add_u32 {sflb}, {sflb}, {WS_FL}
v_lshlrev_b32 {vl16}, 4, {lane}""")
    for r in range(4): a(f"v_mov_b32 {vz[r]}, 0")
    a("s_waitcnt lgkmcnt(0)")
    a(f"s_cmp_ge_u32 s2, 8\ns_cbranch_scc1 L_nozero")
    a.hidden(f"""s_lshl_b32 {st0}, s2, 2
s_add_u32 {st0}, {st0}, {sw}
s_lshl_b32 {st0}, {st0}, 11
s_add_u32 {st0}, {st0}, {WS_KV}
buffer_store_dwordx4 {vz}, {vl16}, {ws}, {st0} offen sc1
buffer_store_dwordx4 {vz}, {vl16}, {ws}, {st0} offen offset:1024 sc1
L_nozero:""")
    a(f"s_cmp_lg_u32 {sw}, 1\ns_cbranch_scc1 L_nofl")
    a.hidden(f"""s_lshl_b32 {st0}, {sj}, 7
s_add_u32 {st0}, {st0}, {sflb}
v_lshrrev_b32 {t0}, 2, {lane}
v_lshlrev_b32 {t0}, 26, {t0}
v_lshl_add_u32 {t0}, {lane}, 10, {t0}
v_mov_b32 {vz[1]}, {sxcc}
buffer_store_dwordx2 {vz[0:2]}, {t0}, {ws}, {st0} offen sc1
L_nofl:""")
    k.run(X(2) + W(2))
    if PRE > 3: k.run(X(3) + W(3))
    if PRE > 4: k.run(X(4) + W(4))
    k.stamp('issued')
    vxa = v(12, 2); vsa = v(14, 2); vwa = v(16, 2); vxr = v(18, 2); vroot = v(20); vrootA = v(21); vp = v(22, 2); vw1d = v(3)
    pa = v(32, 2); va = v(34, 6)
    SB = 0
    KS = 8192
    a(f"""v_lshrrev_b32 {t0}, 4, {lane}
v_and_b32 {t1}, 7, {lane}
v_xor_b32 {t2}, {t0}, {t1}
v_lshlrev_b32 {t2}, 4, {t2}
v_lshl_add_u32 {t2}, {t1}, 7, {t2}
v_bfe_u32 {t3}, {lane}, 3, 1
v_lshl_add_u32 {vxa[0]}, {t3}, 10, {t2}
v_xor_b32 {vxa[1]}, 64, {vxa[0]}
v_add_u32 {vsa[0]}, {sw11}, {vxa[0]}
v_add_u32 {vsa[1]}, {sw11}, {vxa[1]}
v_and_b32 {t2}, 1, {t0}
v_lshl_or_b32 {t2}, {t2}, 1, {t3}
v_xor_b32 {t2}, {sw}, {t2}
v_lshlrev_b32 {t2}, 5, {t2}
v_and_b32 {t3}, 3, {lane}
v_lshl_add_u32 {t2}, {t3}, 3, {t2}
v_bfe_u32 {t3}, {lane}, 2, 2
v_lshl_add_u32 {t2}, {t3}, 7, {t2}
v_lshl_add_u32 {t2}, {t0}, 12, {t2}
v_add_u32 {vwa[0]}, {WB}, {t2}
v_add_u32 {vwa[1]}, {WB + 49152}, {t2}
s_mov_b32 {sones}, 0x3f803f80
v_mov_b32 {ones[0]}, {sones}
v_mov_b32 {ones[1]}, {sones}
v_mov_b32 {ones[2]}, {sones}
v_mov_b32 {ones[3]}, {sones}""")
    later = its(f"""s_lshl_b32 {st0}, {sw}, 1
v_xor_b32 {t2}, {st0}, {t1}
v_lshlrev_b32 {t2}, 4, {t2}
v_lshl_add_u32 {t2}, {t1}, 7, {t2}
v_bfe_u32 {t3}, {lane}, 3, 2
v_lshl_add_u32 {t2}, {t3}, 10, {t2}
v_lshrrev_b32 {t3}, 5, {lane}
v_lshl_add_u32 {t2}, {t3}, 3, {t2}
v_add_u32 {vxr[0]}, {XR}, {t2}
v_xor_b32 {vxr[1]}, 16, {vxr[0]}
s_mov_b32 {seps}, {f32(1e-5)}
v_lshlrev_b32 {vrootA}, 5, {lane}
s_add_u32 {st0}, {sw11}, {KS}
v_add_u32 {va[0]}, {st0}, {vl16}
v_lshl_add_u32 {va[1]}, {t0}, 4, {st0}
v_lshlrev_b32 {va[3]}, 2, {lane}
v_add_u32 {va[2]}, {st0}, {va[3]}
v_and_b32 {t1}, 15, {lane}
v_lshl_add_u32 {va[4]}, {t1}, 2, {st0}
v_bfe_u32 {t2}, {lane}, 2, 1
v_lshlrev_b32 {t2}, 10, {t2}
v_bfe_u32 {t1}, {lane}, 3, 1
v_lshl_add_u32 {t2}, {t1}, 9, {t2}
v_bfe_u32 {t1}, {lane}, 4, 1
v_lshl_add_u32 {t2}, {t1}, 6, {t2}
v_and_b32 {t1}, 3, {lane}
v_lshl_add_u32 {t2}, {t1}, 2, {t2}
v_add_u32 {t2}, 256, {t2}
v_lshl_add_u32 {va[5]}, {t3}, 30, {t2}""")
    later += its(f"""s_lshr_b32 {st1}, s2, 3
s_and_b32 {st0}, s2, 7
s_lshl_b32 {spsrc}, {st1}, 16
s_lshl_b32 {sdst}, {st0}, 7
s_add_u32 {spsrc}, {spsrc}, {sdst}
s_lshl_b32 {sdst}, {sw}, 14
s_add_u32 {spsrc}, {spsrc}, {sdst}
s_mul_i32 {sdst}, {st0}, {88*2048}
s_lshl_b32 {st1}, {st1}, 11
s_add_u32 {sdst}, {sdst}, {st1}
s_mul_i32 {st1}, {sw}, {22*2048}
s_add_u32 {sdst}, {sdst}, {st1}
s_add_u32 {sdst}, {sdst}, {WS_W2}
""") + [It(f"s_cmp_lt_u32 s2, 176\ns_cselect_b32 {sdst}, {sdst}, {OOB}\ns_cselect_b32 {spsrc}, {spsrc}, {OOB}", cost=2)] + its(f"""
v_lshlrev_b32 {t0}, 10, {t3}
v_bfe_u32 {t1}, {lane}, 2, 2
v_lshl_add_u32 {t0}, {t1}, 7, {t0}
v_bfe_u32 {t1}, {lane}, 3, 1
v_lshlrev_b32 {t1}, 1, {t1}
v_bfe_u32 {t2}, {lane}, 4, 1
v_or_b32 {t1}, {t1}, {t2}
v_lshl_add_u32 {t0}, {t1}, 5, {t0}
v_and_b32 {t1}, 3, {lane}
v_lshl_add_u32 {t0}, {t1}, 3, {t0}
s_add_u32 {st1}, {sw11}, {PB}
v_add_u32 {pa[0]}, {st1}, {t0}
v_xor_b32 {pa[1]}, 64, {pa[0]}
v_lshrrev_b32 {t0}, 3, {lane}
v_lshlrev_b32 {t2}, 1, {t2}
v_bfe_u32 {t1}, {lane}, 1, 2
v_xor_b32 {t1}, {t1}, {t2}
v_lshlrev_b32 {t1}, 5, {t1}
v_and_b32 {t2}, 1, {lane}
v_lshl_add_u32 {t1}, {t2}, 4, {t1}
v_lshl_add_u32 {vp[0]}, {t0}, 10, {t1}
v_add_u32 {vp[1]}, 7168, {vp[0]}
s_lshr_b32 {st0}, {sw}, 1
s_lshl_b32 {st0}, {st0}, 5
v_xor_b32 {t1}, {st0}, {t1}
v_mul_u32_u24 {t0}, 2752, {t0}
v_add_u32 {vw1d}, {t0}, {t1}
s_lshl_b32 {sxr}, {srb}, 16
s_lshl_b32 {st0}, {sw}, 14
s_add_u32 {sxr}, {sxr}, {st0}
s_lshl_b32 {st0}, {sj}, 7
s_add_u32 {sxr}, {sxr}, {st0}""")
    PD = its(f"s_add_u32 m0, {sw11}, {PB}") + [k.vm(f"buffer_load_dwordx4 {vp[i]}, {srd['w2']}, {spsrc} offen offset:{i*1024} lds", 'p') for i in range(2)]
    XD = its(f"s_add_u32 m0, {sw11}, {XR}") + [k.vm(f"buffer_load_dwordx4 {vxd[i]}, {srd['x']}, {sxr} offen offset:{i*1024} lds", 'xr') for i in range(2)]
    xf = ag(0, 256)
    def xfrag(ks, tt): return xf[(ks*4+tt)*4:(ks*4+tt)*4+4]
    wf = v(48, 32)
    def wfrag(ks, p): b = ((ks // 2) & 1) * 16 + (ks & 1) * 8 + p * 4; return wf[b:b+4]
    def tr(dst, off):
        base = vwa[0] if off < 49152 else vwa[1]
        if off >= 49152: off -= 49152
        return [f"ds_read_b64_tr_b16 {dst[0:2]}, {base} offset:{off}", f"ds_read_b64_tr_b16 {dst[2:4]}, {base} offset:{off+512}"]
    def reads(c):
        o = []
        for ks in (2*c, 2*c+1):
            for p in (0, 1): o += tr(wfrag(ks, p), kv_lds(ks, p))
            for tt in range(4): o.append(f"ds_read_b128 {xfrag(ks, tt)}, {vxa[ks&1]} offset:{c*8192 + tt*2048}")
        return o
    sf = v(80, 16); acck = v(96, 16); accv = v(112, 16); accq = v(128, 16); csk = v(144, 4); csv = v(148, 4); csq = v(152, 4)
    rsum = v(156, 4); gram = v(160, 4); pf = v(164, 8); vsr = v(172, 4)
    nmv = v(184, 16); rlv = v(200, 16); rv = v(216, 16); qs = v(232, 8); tmp = v(240, 16)
    xres = v(24, 8)
    smA = S.alloc(2); smC = S.alloc(2)
    spf = S.alloc(); vt11 = v(176); vt4 = v(177)
    later = its(f"""s_lshr_b32 {spf}, s2, 3
s_lshl_b32 {spf}, {spf}, 2
s_add_u32 {spf}, {spf}, {sw}
s_mul_i32 {spf}, {spf}, {88*128}
v_lshlrev_b32 {vt4}, 7, {lane}
v_max_u32 {vt11}, 10, {lane}
v_subrev_u32 {vt11}, 10, {vt11}
v_lshl_add_u32 {vt11}, {vt11}, 24, {vt4}
v_lshrrev_b32 {vz[3]}, 2, {lane}
v_lshl_add_u32 {vt4}, {vz[3]}, 24, {vt4}""") + later
    def touch(srd_, vaddr, pre):
        def f(): a(f"buffer_load_dword v0, {vaddr}, {srd_}, {ssoff} offen").wr = set()
        return [It(pre, cost=2), It(f, kind='vmem')]
    def tw1(slot):
        return touch(srd['w1'], vt11, f"s_add_u32 {ssoff}, {spf}, {T1.index(slot)*11*128}") if slot in T1 else []
    later += its(f"""s_mov_b32 {smA[0]}, 0xaaaaaaaa
s_mov_b32 {smA[1]}, 0xaaaaaaaa
s_mov_b32 {smC[0]}, 0xcccccccc
s_mov_b32 {smC[1]}, 0xcccccccc
v_and_b32 {t0}, 15, {lane}
v_lshlrev_b32 {vsr[3]}, 3, {t0}
v_lshlrev_b32 {t0}, 2, {t0}
s_lshl_b32 {st0}, {sw}, 6
v_add_u32 {vsr[0]}, {st0}, {t0}
v_lshlrev_b32 {vsr[1]}, 1, {vsr[0]}
v_lshrrev_b32 {vsr[2]}, 4, {lane}
v_lshlrev_b32 {vsr[2]}, 4, {vsr[2]}""")
    a.wait(tok['w', 0]); a("s_barrier"); k.stamp('first')
    for r in reads(0): a(r)
    stats_at = {0: (0, 1), 2: (2, 3), 3: (4,), 4: (5, 6), 5: (7,)}
    rootld = f"buffer_load_dword {vroot}, {vrootA}, {srd['dbg']}, 0 offen sc1"
    for c in range(8):
        need_ = ([('w', c+1), ('x', c+1)] if c < 7 else []) + [('x', cc) for cc in stats_at.get(c, ())]
        for key in need_: a.wait(tok[key])
        a("s_waitcnt lgkmcnt(0)\ns_barrier")
        k.stamp('i%d' % c)
        if c == 1:
            a(f"s_cmp_ge_u32 s2, 8\ns_cbranch_scc1 L_noroot\ns_cmp_lg_u32 {sw}, 0\ns_cbranch_scc1 L_noroot")
            a.hidden(f"""s_lshl_b32 {ssoff}, s2, 5
v_lshlrev_b32 {vz[0]}, 24, {lane}
v_mov_b32 {vz[1]}, 1
buffer_store_dword {vz[1]}, {vz[0]}, {srd['dbg']}, {ssoff} offen sc1
L_noroot:""")
        mf = []
        for ks in (2*c, 2*c+1):
            for tt in range(4):
                for p, acc in ((0, acck), (1, accv)):
                    d = acc[tt*4:tt*4+4]
                    mf.append(f"v_mfma_f32_16x16x32_bf16 {d}, {xfrag(ks, tt)}, {wfrag(ks, p)}, {d if ks else 0}")
            for p, acc in ((0, csk), (1, csv)):
                mf.append(f"v_mfma_f32_16x16x32_bf16 {acc}, {ones}, {wfrag(ks, p)}, {acc if ks else 0}")
        rd = []
        for i, cc in enumerate(stats_at.get(c, ())):
            for p in range(2):
                s_ = sf[(2*i+p)*4:(2*i+p)*4+4]; first = (cc == 0 and p == 0)
                rd.append(f"ds_read_b128 {s_}, {vsa[p]} offset:{cc*8192}")
                mf.append(f"v_mfma_f32_16x16x32_bf16 {rsum}, {s_}, {ones}, {0 if first else rsum}")
                mf.append(f"v_mfma_f32_16x16x32_bf16 {gram}, {s_}, {s_}, {0 if first else gram}")
        if c < 7: rd += reads(c+1)
        if c == 7:
            for tt in range(4):
                rd += [f"ds_read_b128 {nmv[tt*4:tt*4+4]}, {vsr[2]} offset:{SB + tt*64}", f"ds_read_b128 {rlv[tt*4:tt*4+4]}, {vsr[2]} offset:{SB + 512 + tt*64}"]
            for tt in range(4):
                rd += [f"ds_read_b128 {rv[tt*4:tt*4+4]}, {vsr[2]} offset:{SB + 256 + tt*64}", f"ds_read_b64 {qs[tt*2:tt*2+2]}, {vsr[3]} offset:{SB + 768 + tt*128}"]
        dm = {0: {3: W(3) + X(3) + X(4), 4: W(4) + X(4), 5: X(5) + X(6)}[PRE], 1: {3: W(4) + W(5), 4: W(5) + X(5), 5: W(5) + X(7)}[PRE],
              2: W(6) + {3: X(5) + X(6), 4: X(6), 5: []}[PRE], 3: W(7) + (X(7) if PRE < 5 else []), 4: PD + XD,
              5: Q(0), 6: [k.vm(rootld)] + Q(1), 7: Q(2) + Q(3)}[c]
        if c == HW:
            def f5():
                a(f"s_cmp_lg_u32 {sw}, 0\ns_cbranch_scc1 L_nob")
                a.hidden(f"s_mul_i32 {ssoff}, {sj}, 384\nbuffer_load_dword v0, {vt4}, {srd['b1']}, {ssoff} offen\ns_lshl_b32 {ssoff}, {sj}, 7\nbuffer_load_dword v0, {vt4}, {srd['b2']}, {ssoff} offen\nL_nob:")
            dm = (dm + touch(srd['w1'], vt11, f"s_lshl_b32 {ssoff}, s2, 2\ns_add_u32 {ssoff}, {ssoff}, {sw}\ns_mul_i32 {ssoff}, {ssoff}, {11*128}")
                  + touch(srd['wo'], vt4, f"s_lshl_b32 {ssoff}, s2, 2\ns_add_u32 {ssoff}, {ssoff}, {sw}\ns_lshl_b32 {ssoff}, {ssoff}, 9") + [It(f5, kind='vmem')])
        dm = dm + tw1(c)
        for x in dm:
            if x.kind == 'vmem': x.cost = 2
        vq = []
        if c == 6:
            vq = its(f"""v_cndmask_b32 {rsum[0]}, {rsum[0]}, {rsum[1]}, {smA}
v_cndmask_b32 {rsum[2]}, {rsum[2]}, {rsum[3]}, {smA}
v_cndmask_b32 {gram[0]}, {gram[0]}, {gram[1]}, {smA}
v_cndmask_b32 {gram[2]}, {gram[2]}, {gram[3]}, {smA}
v_cndmask_b32 {rsum[0]}, {rsum[0]}, {rsum[2]}, {smC}
v_cndmask_b32 {gram[0]}, {gram[0]}, {gram[2]}, {smC}
v_mul_f32 {rsum[0]}, {f32(-1/512)}, {rsum[0]}
v_mul_f32 {gram[0]}, {f32(1/512)}, {gram[0]}
v_fma_f32 {gram[0]}, -{rsum[0]}, {rsum[0]}, {gram[0]}
v_max_f32 {gram[0]}, 0, {gram[0]}
v_add_f32 {gram[0]}, {seps}, {gram[0]}
v_rsq_f32 {gram[0]}, {gram[0]}
v_mul_f32 {rsum[1]}, {f32(LOG2E)}, {gram[0]}""")
            vq.append(It(f"""s_mov_b32 exec_lo, 0x00f0000f
s_mov_b32 exec_hi, 0xf0000f00
ds_write_b32 {vsr[0]}, {rsum[0]} offset:{SB}
ds_write_b32 {vsr[0]}, {gram[0]} offset:{SB + 256}
ds_write_b32 {vsr[0]}, {rsum[1]} offset:{SB + 512}
ds_write_b64 {vsr[1]}, {rsum[0:2]} offset:{SB + 768}
s_mov_b64 exec, -1""", cost=1, kind='salu'))
        if c < 4:
            n = len(later) if c == 3 else 36
            vq = later[:n]; later = later[n:]
        k.pack(mf, [rd, dm, vq] if c < 4 else [rd, vq, dm], False, vgap=VG1 if len([x for x in dm if x.kind == 'vmem'])*VG1 <= len(mf) else 3)
    k.stamp('pass1')
    sdel = smA; sln2 = smC
    a(f"s_mov_b32 {sdel[0]}, {f32(1e-6/LN2)}\ns_mov_b32 {sdel[1]}, {f32(1e-6/LN2)}\ns_mov_b32 {sln2[0]}, {f32(LN2)}\ns_mov_b32 {sln2[1]}, {f32(LN2)}")
    def phi_tail(acc, n):
        for r in range(n): a(f"v_exp_f32 {tmp[r]}, {acc[r]} clamp")
        for r in range(n): a(f"v_max_f32 {acc[r]}, {sdel[0]}, {acc[r]}")
        for r in range(0, n, 2): a(f"v_pk_fma_f32 {acc[r:r+2]}, {acc[r:r+2]}, {sln2}, {tmp[r:r+2]}")
    pkf = v(48, 8); vf = v(56, 8)
    for r in range(0, 16, 2): a(f"v_pk_fma_f32 {acck[r:r+2]}, {nmv[r:r+2]}, {csk[0:2]}, {acck[r:r+2]}")
    for r in range(0, 16, 2): a(f"v_pk_fma_f32 {acck[r:r+2]}, {acck[r:r+2]}, {rlv[r:r+2]}, {sdel}")
    phi_tail(acck, 16)
    for r in range(8): a(f"v_cvt_pk_bf16_f32 {pkf[r]}, {acck[2*r]}, {acck[2*r+1]}")
    for r in range(0, 16, 2): a(f"v_pk_fma_f32 {accv[r:r+2]}, {nmv[r:r+2]}, {csv[0:2]}, {accv[r:r+2]}")
    for r in range(0, 16, 2): a(f"v_pk_mul_f32 {accv[r:r+2]}, {accv[r:r+2]}, {rv[r:r+2]}")
    for r in range(8): a(f"v_cvt_pk_bf16_f32 {vf[r]}, {accv[2*r]}, {accv[2*r+1]}")
    dkv = tmp[8:12]; dz = tmp[12:16]
    for h in range(2):
        a(f"v_mfma_f32_16x16x32_bf16 {dkv}, {pkf[h*4:h*4+4]}, {vf[h*4:h*4+4]}, {dkv if h else 0}")
        a(f"v_mfma_f32_16x16x32_bf16 {dz}, {pkf[h*4:h*4+4]}, {ones}, {dz if h else 0}")
    k.check(f"v_cmp_ne_u32 vcc, 0, {vroot}", 0xff, rootld, st1)
    a(f"ds_write_b128 {va[0]}, {dkv}\nds_write_b128 {va[1]}, {dz} offset:1024")
    for g in range(4): a(f"ds_read_b32 {tmp[g]}, {va[2]} offset:{g*256}")
    a(f"ds_read_b32 {tmp[4]}, {va[4]} offset:1024")
    swo = spsrc; sw14 = sxr; sc0 = sj1; sw1b = sxb; sinv = srd['wqkv'][2]; sw1o = srd['wqkv'][3]
    a(f"""s_lshl_b32 {swo}, {sw}, 17
s_lshl_b32 {st0}, {sj}, 7
s_add_u32 {swo}, {swo}, {st0}
s_lshl_b32 {sw14}, {sw}, 14
s_and_b32 {srot}, {srb}, {D2 - 1}
s_mul_i32 {srot}, {srot}, {4 // D2}
s_mul_i32 {sc0}, {sj}, 12
s_add_u32 {sc0}, {sc0}, {sw}
s_cmp_lt_u32 {sj}, 7
s_cselect_b32 {sinv}, 0, {OOB}
s_mul_i32 {sw1b}, {sw}, {8*2752}
s_mul_i32 {st0}, {sj}, 384
s_add_u32 {sw1b}, {sw1b}, {st0}""")
    if NOW1: a(f"s_mov_b32 {sw1b}, {OOB}")
    for gg in range(4):
        a(f"buffer_atomic_add_f32 {tmp[gg]}, {va[3]}, {ws}, {skvb} offen offset:{(gg&1)*1024 + (gg>>1)*512}")
    a(f"buffer_atomic_add_f32 {tmp[4]}, {va[5]}, {ws}, {skvb} offen")
    k.stamp('atom')
    k.run(tw1(8))
    a.wait(tok['q', 3]); a("s_barrier")
    WOD = []
    for g4 in range(4):
        WOD += its(f"s_add_u32 {sc_x}, {srot}, {g4}\ns_and_b32 {sc_x}, {sc_x}, 3\ns_lshl_b32 {sc_w}, {sc_x}, 15\ns_add_u32 {sc_w}, {sc_w}, {swo}\ns_lshl_b32 {sc_x}, {sc_x}, 12\ns_add_u32 {sc_x}, {sc_x}, {sw14}\ns_mov_b32 m0, {sc_x}")
        WOD += [k.vm(f"buffer_load_dwordx4 {vp[i]}, {srd['wo']}, {sc_w} offen offset:{i*1024} lds", 'wo') for i in range(2)]
        WOD += its(f"s_add_u32 m0, {sc_x}, 2048\ns_add_u32 {sc_w}, {sc_w}, 16384")
        WOD += [k.vm(f"buffer_load_dwordx4 {vp[i]}, {srd['wo']}, {sc_w} offen offset:{i*1024} lds", 'wo') for i in range(2)]
    UPOS = [WB + p*12288 for p in (3, 7, 0, 1, 2, 4, 5, 6)]
    def U(ks):
        o = its(f"s_add_u32 {sc_w}, {srot}, {ks // 4}\ns_and_b32 {sc_w}, {sc_w}, 3\ns_mul_i32 {sc_w}, {sc_w}, {128*2752}\ns_add_u32 {sc_w}, {sc_w}, {sw1b}") if ks % 4 == 0 else its(f"s_add_u32 {sc_w}, {sc_w}, {32*2752}")
        o += its(f"s_add_u32 {sw1o}, {sc_w}, {sinv}")
        for s in range(3):
            o += its(f"s_add_u32 m0, {sw10}, {UPOS[ks & 7] + s*4096 - s*128}")
            o.append(k.vm(f"buffer_load_dwordx4 {vw1d}, {srd['w1']}, {sw1o if s else sc_w} offen offset:{s*128} lds", ('u', ks)))
        return o
    qf = v(72, 32)
    def qfrag(ks): b = (ks & 7) * 4; return qf[b:b+4]
    for ks in range(4):
        for r in tr(qfrag(ks), q_lds(ks)): a(r)
    mf = []; rd = []
    for ks in range(16):
        for tt in range(4):
            d = accq[tt*4:tt*4+4]
            mf.append(f"v_mfma_f32_16x16x32_bf16 {d}, {qfrag(ks)}, {xfrag(ks, tt)}, {d if ks else 0}")
        mf.append(f"v_mfma_f32_16x16x32_bf16 {csq}, {qfrag(ks)}, {ones}, {csq if ks else 0}")
        if ks + 4 < 16: rd += [It(x, after=5*ks) for x in tr(qfrag(ks+4), q_lds(ks+4))]
    xq = [f"ds_read_b64 {xres[4*H+2*e:4*H+2*e+2]}, {vxr[e]} offset:{H*4096}" for H in range(2) for e in range(2)]
    for n in range(2): xq += [f"ds_read_b64_tr_b16 {pf[n*4:n*4+2]}, {pa[n]}", f"ds_read_b64_tr_b16 {pf[n*4+2:n*4+4]}, {pa[n]} offset:512"]
    pq_ = [k.vm(f"buffer_store_dwordx4 {pf[n*4:n*4+4]}, {vl16}, {ws}, {sdst} offen offset:{n*1024} sc1", after=16) for n in range(2)]
    for s_, at in ((9, 20), (10, 44), (11, 68)):
        for x in tw1(s_): x.after = at; pq_.append(x)
    k.pack(mf, [rd, xq, pq_, WOD], False, reserve=lambda i: 1 if i % 5 == 4 else 0, vgap=4)
    k.stamp('pass2')
    for tt in range(4):
        for r in (0, 2):
            d = accq[tt*4+r:tt*4+r+2]
            a(f"v_pk_fma_f32 {d}, {qs[tt*2:tt*2+2]}, {csq[r:r+2]}, {d} op_sel_hi:[0,1,1]")
    for tt in range(4):
        for r in (0, 2):
            d = accq[tt*4+r:tt*4+r+2]
            a(f"v_pk_fma_f32 {d}, {d}, {qs[tt*2:tt*2+2]}, {sdel} op_sel:[0,1,0]")
    phi_tail(accq, 16)
    a(f"s_lshl_b32 {st0}, {srb1}, 16\ns_lshl_b32 {st1}, {shead1}, 10\ns_add_u32 {st0}, {st0}, {st1}\ns_add_u32 {st0}, {st0}, {WS_PQ}\ns_add_u32 {st1}, {st0}, 32768")
    for t32 in range(2):
        d = pkf[t32*4:t32*4+4]
        for s in range(2):
            for h in range(2):
                a(f"v_cvt_pk_bf16_f32 {d[2*s+h]}, {accq[(2*t32+s)*4+2*h]}, {accq[(2*t32+s)*4+2*h+1]}")
        for h in range(2): a(f"v_permlane16_swap_b32 {d[h]}, {d[2+h]}")
        tok['pq'] = a(f"buffer_store_dwordx4 {d}, {vl16}, {ws}, {(st0, st1)[t32]} offen sc1")
    k.stamp('pqst')
    a("s_barrier")
    UL = U(0) + U(1) + U(2) + U(3) + U(4) + U(5) + U(6) + U(7)
    def take(lst, nv):
        o = []
        while lst and nv:
            x = lst.pop(0); o.append(x)
            if x.kind == 'vmem': nv -= 1
        return o
    k.run(take(UL, NU_ARR // 2))
    vw1r = v(8, 2); vwr = v(12, 2); vcA = v(14); vc = v(15); vrw = v(16, 3); vrr = v(19); vh = v(20); vst = v(21); vone = v(22); vlz = v(23)
    vfA = v(10); vfl = v(11)
    skv = srd['wqkv'][0]; spq = srd['wqkv'][1]; shb = srd['x'][0]; sstb = srd['x'][1]; se6 = sdst
    a(f"""v_bfe_u32 {t0}, {lane}, 4, 1
v_bfe_u32 {t1}, {lane}, 3, 1
v_lshl_or_b32 {t1}, {t1}, 1, {t0}
v_xor_b32 {t1}, {sw}, {t1}
v_lshlrev_b32 {t1}, 5, {t1}
v_and_b32 {t2}, 3, {lane}
v_lshl_add_u32 {t1}, {t2}, 3, {t1}
v_bfe_u32 {t2}, {lane}, 2, 2
v_lshl_add_u32 {t1}, {t2}, 7, {t1}
v_lshrrev_b32 {t3}, 5, {lane}
v_lshl_add_u32 {t1}, {t3}, 9, {t1}
v_add_u32 {vwr[0]}, {sw14}, {t1}
v_xor_b32 {vwr[1]}, 64, {vwr[0]}
v_lshl_add_u32 {t1}, {t0}, 11, {t1}
v_add_u32 {vw1r[0]}, {WB}, {t1}
v_add_u32 {vw1r[1]}, {WB + 49152}, {t1}
v_mov_b32 {vone}, 1
v_lshlrev_b32 {vlz}, 24, {lane}
v_lshlrev_b32 {t1}, 9, {lane}
v_lshl_add_u32 {vcA}, {t3}, 30, {t1}
v_lshlrev_b32 {vh}, 14, {t0}
v_lshl_add_u32 {vh}, {t3}, 9, {vh}
v_and_b32 {t1}, 15, {lane}
v_lshl_add_u32 {vh}, {t1}, 4, {vh}
v_and_b32 {t1}, 31, {lane}
v_lshlrev_b32 {t1}, 3, {t1}
v_lshl_add_u32 {vst}, {t3}, 30, {t1}
v_lshrrev_b32 {t0}, 3, {lane}
v_lshlrev_b32 {t0}, 26, {t0}
v_lshl_add_u32 {vfA}, {lane}, 7, {t0}""")
    k.run(take(UL, NU_ARR - NU_ARR // 2))
    for r in (1, 2, 3):
        a(f"s_xor_b32 {st0}, {sw}, {r}\ns_lshl_b32 {st0}, {st0}, 13\ns_add_u32 {st0}, {st0}, {r*2048}\nv_add_u32 {vrw[r-1]}, {st0}, {vl16}")
    a(f"""s_lshl_b32 {st0}, {sw}, 13
v_add_u32 {vrr}, {st0}, {vl16}
s_add_u32 {skv}, {sw14}, {WS_KV}
s_lshl_b32 {spq}, {srb}, 16
s_add_u32 {spq}, {spq}, {st0}
s_add_u32 {spq}, {spq}, {WS_PQ}
s_lshl_b32 {shb}, {srb}, 16
s_lshr_b32 {st0}, {shead}, 1
s_lshl_b32 {st0}, {st0}, 10
s_add_u32 {shb}, {shb}, {st0}
s_and_b32 {st0}, {sw}, 1
s_lshl_b32 {st0}, {st0}, 8
s_add_u32 {shb}, {shb}, {st0}
s_add_u32 {shb}, {shb}, {WS_H}
s_lshl_b32 {sstb}, {srb}, 14
s_lshl_b32 {st0}, {shead}, 8
s_add_u32 {sstb}, {sstb}, {st0}
s_add_u32 {sstb}, {sstb}, {WS_ST}
s_mov_b32 {se6}, {f32(1e-6)}
s_and_b32 {st0}, {srb1}, 3
s_lshl_b32 {st0}, {st0}, 9
s_add_u32 {st0}, {st0}, {skvb}""")
    a.wait(tok['pq'])
    a(f"buffer_atomic_add {vone}, {vlz}, {ws}, {st0} offen offset:384")
    k.stamp('arrive')
    sw2 = swo; send = sc_x; shh = [skvb, shead1]; so2 = swb; srot3 = srb1; sgab = smA; shv = srd['x'][2]
    RB = 65536; SL = RB + 4096
    a(f"""s_mul_i32 {st0}, {srb}, {2*88*1024}
s_mul_i32 {st1}, {sw}, {22*1024}
s_add_u32 {st0}, {st0}, {st1}
s_add_u32 {shv}, {st0}, {WS_HH}
s_mul_i32 {st1}, {sj}, 3072
s_add_u32 {shh[0]}, {shv}, {st1}
s_add_u32 {shh[1]}, {shh[0]}, {sinv}
s_mov_b32 {sgab[0]}, {f32(GA)}
s_mov_b32 {sgab[1]}, {f32(GA)}
s_mul_i32 {sw2}, {shead}, {22*2048}
s_add_u32 {sw2}, {sw2}, {WS_W2 if not NOW2 else OOB}
s_and_b32 {srot3}, {srb}, {D3 - 1}
s_mul_i32 {srot3}, {srot3}, {(11 // D3) if D3 > 1 else 0}
s_lshl_b32 {so2}, {srot3}, 12
s_add_u32 {so2}, {so2}, {sw2}
s_add_u32 {send}, {sw2}, {11*4096}""")
    WO = v(48, 64); KZ = v(112, 32); OF = v(144, 8); csa = v(40, 4)
    w1 = ag(0, 192)
    wor = []
    for hh in range(8):
        for t in range(2):
            d = WO[(hh*2+t)*4:(hh*2+t)*4+4]
            wor += [f"ds_read_b64_tr_b16 {d[0:2]}, {vwr[t]} offset:{hh*2048}", f"ds_read_b64_tr_b16 {d[2:4]}, {vwr[t]} offset:{hh*2048+1024}"]
    i = 0
    while UL:
        k.run(take(UL, 1)); k.run(wor[i:i+4]); i += 4
    k.run(wor[i:])
    def rd_w1(k0, k1):
        o = []
        for ks in range(k0, k1):
            for s in range(3):
                d = w1[(ks*3+s)*4:(ks*3+s)*4+4]; off = UPOS[ks & 7] - WB + s*4096
                b = vw1r[0] if off < 49152 else vw1r[1]; off %= 49152
                o += [f"ds_read_b64_tr_b16 {d[0:2]}, {b} offset:{off}", f"ds_read_b64_tr_b16 {d[2:4]}, {b} offset:{off + 1024}"]
        return o
    cload = f"buffer_load_dword {vc}, {vcA}, {ws}, {skv} offen offset:384 sc1"
    if NS1 == 2:
        a(cload)
        a.wait(tok['u', 3]); a("s_waitcnt lgkmcnt(0)\ns_barrier")
    cst = [v(44, 4), v(152, 4), v(156, 4)]; cs = v(224, 12)
    KC = 4 if NS1 == 2 else 8
    def csm(k0, k1):
        o = []
        for ks in range(k0, k1):
            for s in range(3):
                d = cst[s] if ks < KC else cs[s*4:s*4+4]
                o.append(f"v_mfma_f32_16x16x32_bf16 {d}, {w1[(ks*3+s)*4:(ks*3+s)*4+4]}, {csa}, {0 if ks == 0 else cst[s] if ks <= KC else d}")
        return o
    UB = U(8) + U(9) + U(10) + U(11); UC = U(12) + U(13) + U(14) + U(15); R47 = rd_w1(4, 8); R8 = rd_w1(8, 12); R12 = rd_w1(12, 16)
    if NS1 == 2: k.run(rd_w1(0, 4) + csm(0, 4))
    else:
        a.wait(tok['u', 1]); a("s_barrier"); k.run(rd_w1(0, 2))
        UU = UB + (UC if NS1 == 4 else [])
        for p in range(1, 2*NS1 - 3):
            if p < 4: a.wait(tok['u', 2*p + 1])
            a("s_waitcnt lgkmcnt(0)\ns_barrier")
            rr = rd_w1(2*p, 2*p + 2) if p < 4 else []; cc = csm(2*p - 2, 2*p) if p < 3 else []
            for i in range(6): k.run(take(UU, 1) + rr[2*i:2*i+2] + cc[i:i+1])
        if NS1 == 3:
            a.wait(tok['u', 7]); a("s_barrier"); k.run(rd_w1(6, 8))
        assert not UU
        UB = []; R47 = []
        if NS1 == 4: UC = []
        a(cload)
        k.run(csm(4, 8))
    k.stamp('w1a')
    k.check(f"v_cmp_eq_u32 vcc, 8, {vc}", -1, cload, st1)
    k.stamp('s1')
    PQ = ag(192, 64); ACC = v(160, 32); D = v(192, 32); KVR = v(224, 32)
    def ld(dst, sbase, off):
        o = []
        if off >= 4096: o = its(f"s_add_u32 {ssoff}, {sbase}, {off & ~4095}"); sbase = ssoff; off &= 4095
        return o + [k.vm(f"buffer_load_dwordx4 {dst}, {vl16}, {ws}, {sbase} offen offset:{off} sc1")]
    def kvr(hh): return KVR[(hh & 3)*8:(hh & 3)*8+8]
    def head_loads(hh): return ld(kvr(hh)[0:4], skv, hh*2048) + ld(kvr(hh)[4:8], skv, hh*2048 + 1024) + ld(PQ[hh*4:hh*4+4], spq, hh*1024)
    for hh in range(4): k.run(head_loads(hh))
    vxc = v(4, 2)
    a.wait(tok['u', 4*NS1 - 1])
    a(f"s_waitcnt lgkmcnt(0)\ns_barrier\nv_lshrrev_b32 {t2}, 5, {lane}\nv_lshlrev_b32 {t2}, 30, {t2}\nv_lshl_add_u32 {t2}, {lane}, 7, {t2}")
    a(f"buffer_load_dwordx2 {vxc}, {t2}, {ws}, {sflb} offen sc1")
    def store(text): return a("\n".join(l + " sc1" for l in text.split('\n')))
    def p2_half(H, side):
        def cvt_kv(hh): return [f"v_cvt_pk_bf16_f32 {KZ[hh*4+r]}, {kvr(hh)[2*r]}, {kvr(hh)[2*r+1]}" for r in range(4)]
        def om(n): return f"v_mfma_f32_32x32x16_bf16 {D[(n&1)*16:(n&1)*16+16]}, {KZ[n*4:n*4+4]}, {PQ[(H*8+n)*4:(H*8+n)*4+4]}, 0"
        def pm(n, t):
            d = ACC[t*16:t*16+16]
            return f"v_mfma_f32_32x32x16_bf16 {d}, {WO[(n*2+t)*4:(n*2+t)*4+4]}, {OF[(n&1)*4:(n&1)*4+4]}, {d if n else 0}"
        if H == 0: k.run(cvt_kv(0))
        a(om(0))
        if H == 0: k.run(cvt_kv(1))
        for n in range(8):
            d = D[(n&1)*16:(n&1)*16+16]; o = OF[(n&1)*4:(n&1)*4+4]
            ex = list(side(n)); per = -(-len(ex) // 3)
            cv = cvt_kv(n+2) if H == 0 and n + 2 < 8 else []
            if n + 1 < 8: a(om(n+1))
            k.run(ex[:per])
            a(f"v_add_f32 {d[8]}, {se6}, {d[8]}\nv_rcp_f32 {d[8]}, {d[8]}")
            k.run(cv[:2])
            if n > 0: a(pm(n-1, 0))
            k.run(ex[per:2*per])
            for r in range(5): a(f"v_mul_f32 {d[r]}, {d[r]}, {d[8]}")
            if n > 0: a(pm(n-1, 1))
            k.run(ex[2*per:])
            for r in range(5, 8): a(f"v_mul_f32 {d[r]}, {d[r]}, {d[8]}")
            for r in range(4): a(f"v_cvt_pk_bf16_f32 {o[r]}, {d[2*r]}, {d[2*r+1]}")
            k.run(cv[2:])
        a(pm(7, 0)); a(pm(7, 1))
    def red_w(acc, base): return [f"ds_write_b128 {vrw[r-1]}, {acc[r*8+q*4:r*8+q*4+4]} offset:{base + q*1024}" for r in (1, 2, 3) for q in range(2)]
    def red_r(tm, base): return [f"ds_read_b128 {tm[(r-1)*8+q*4:(r-1)*8+q*4+4]}, {vrr} offset:{base + r*2048 + q*1024}" for r in (1, 2, 3) for q in range(2)]
    def reduce(acc, tm, base, side=None, pre=None):
        for x in red_w(acc, base):
            a(x)
            if side and (not PACE or x is red_w_last or 'offset:%d' % (base + 1024) in x): k.run(take(side, 1))
        if pre: a.wait(tok[pre])
        a("s_waitcnt lgkmcnt(0)\ns_barrier")
        k.run(red_r(tm, base))
    def red_add(acc, tm):
        for r in range(3):
            for e in range(0, 8, 2): a(f"v_pk_add_f32 {acc[e:e+2]}, {acc[e:e+2]}, {tm[r*8+e:r*8+e+2]}")
    HBs = [v(32, 8), v(24, 8)]
    stt = D[8:12]
    def p2_epi(H):
        own = ACC[0:8]; h4 = OF[H*4:H*4+4]
        for r in range(4):
            a(f"v_lshlrev_b32 {D[2*r]}, 16, {xres[4*H+r]}\nv_and_b32 {D[2*r+1]}, 0xffff0000, {xres[4*H+r]}")
        for e in range(0, 8, 2): a(f"v_pk_add_f32 {own[e:e+2]}, {own[e:e+2]}, {D[e:e+2]}")
        red_add(ACC, KVR)
        for r in range(4): a(f"v_cvt_pk_bf16_f32 {h4[r]}, {own[2*r]}, {own[2*r+1]}")
        if H: a(f"s_add_u32 {shb}, {shb}, 32768\ns_add_u32 {sstb}, {sstb}, 8192")
        store(f"buffer_store_dwordx4 {h4}, {vh}, {ws}, {shb} offen")
        a(f"v_mov_b32 {stt[0]}, 0\nv_mov_b32 {stt[1]}, 0")
        for r in range(4):
            a(f"v_dot2_f32_bf16 {stt[0]}, {h4[r]}, {sones}, {stt[0]}\nv_dot2_f32_bf16 {stt[1]}, {h4[r]}, {h4[r]}, {stt[1]}")
        for r in range(2):
            a(f"v_lshlrev_b32 {HBs[H][2*r]}, 16, {h4[r]}\nv_and_b32 {HBs[H][2*r+1]}, 0xffff0000, {h4[r]}")
        a(f"v_mov_b32 {stt[2]}, {stt[0]}\nv_mov_b32 {stt[3]}, {stt[1]}")
        for r in range(2, 4):
            a(f"v_lshlrev_b32 {HBs[H][2*r]}, 16, {h4[r]}\nv_and_b32 {HBs[H][2*r+1]}, 0xffff0000, {h4[r]}")
        a(f"v_permlane32_swap_b32 {stt[2]}, {stt[0]}\nv_permlane32_swap_b32 {stt[3]}, {stt[1]}")
        a(f"v_pk_add_f32 {stt[0:2]}, {stt[0:2]}, {stt[2:4]}")
        tok['h', H] = store(f"buffer_store_dwordx2 {stt[0:2]}, {vst}, {ws}, {sstb} offen")
    def flag(sync):
        k.nlab += 1; n = k.nlab
        a(f"s_cmp_lg_u32 {sw}, 3\ns_cbranch_scc1 L_nf{n}")
        a.hidden(f"""s_lshl_b32 {st0}, {sj}, 7
s_add_u32 {st0}, {st0}, {sflb}
s_cmp_eq_u32 {sxcc}, {0 if LFLAG else sxcc}
s_cbranch_scc1 L_ff{n}
buffer_store_dword {vone}, {vlz}, {ws}, {st0} offen offset:{sync*1024}
s_branch L_nf{n}
L_ff{n}:
buffer_store_dword {vone}, {vlz}, {ws}, {st0} offen offset:{sync*1024} sc1
L_nf{n}:""")
    def fload(sync): return f"buffer_load_dword {vfl}, {vfA}, {ws}, {sflb} offen offset:{sync*1024} sc1"
    def fcheck(sync): k.check(f"v_cmp_ne_u32 vcc, 0, {vfl}", 0xff, fload(sync), st1)
    pqB = [ld(PQ[(8+hh)*4:(8+hh)*4+4], spq, 32768 + hh*1024) for hh in range(8)]
    RA = R47 if NS1 == 2 else R8
    vt22 = v(6)
    a(f"v_max_u32 {vt22}, 21, {lane}\nv_subrev_u32 {vt22}, 21, {vt22}\nv_lshlrev_b32 {vt22}, 24, {vt22}\nv_lshl_add_u32 {vt22}, {lane}, 7, {vt22}")
    def tw2(i): return touch(ws, vt22, f"s_add_u32 {ssoff}, {spf}, {WS_W2 + i*22*128}") if T2 else []
    p2_half(0, lambda n: (head_loads(n+4) if n < 4 else pqB[(n-4)*2] + pqB[(n-4)*2+1]) + RA[3*n:3*n+3] + (tw2(0) if n == 7 else []))
    k.stamp('p2a')
    a(f"v_cmp_eq_u32 vcc, {sxcc}, {vxc[1]}\ns_cmp_eq_u32 vcc_lo, -1\ns_cselect_b32 {sxcc}, 1, 0")
    reduce(ACC, KVR, 0, (UB or UC) if UBA else None)
    p2_epi(0)
    k.stamp('puba')
    shs = skv; sst = spq; vsl = v(12)
    k.run(tw2(1))
    b1r = v(248, 6); b2 = v(4, 4); vb = v(254, 2)
    def sideB(n):
        o = take(UB, 2) if UB else take(UC, (2 if n == 0 else 1) if PACE else 2)
        if n == 2: o += its(f"v_lshrrev_b32 {vb[0]}, 4, {lane}\nv_lshlrev_b32 {vb[0]}, 3, {vb[0]}\nv_lshrrev_b32 {vb[1]}, 5, {lane}\nv_lshlrev_b32 {vb[1]}, 3, {vb[1]}\ns_lshl_b32 {srd['x'][3]}, {sc0}, 5")
        if n == 3: o += [f"buffer_load_dwordx2 {b1r[2*i:2*i+2]}, {vb[0]}, {srd['b1']}, {srd['x'][3]} offen offset:{i*128}" for i in range(3)] + [f"s_lshl_b32 {srd['x'][3]}, {shead}, 5"]
        if n == 4: o += [f"buffer_load_dwordx2 {b2[2*e:2*e+2]}, {vb[1]}, {srd['b2']}, {srd['x'][3]} offen offset:{e*16}" for e in range(2)]
        if n == 1: o += its(f"""s_lshl_b32 {shs}, {srb}, 16
s_add_u32 {st0}, {sw}, {srot}
s_and_b32 {st0}, {st0}, 3
s_lshl_b32 {st0}, {st0}, 12
s_add_u32 {shs}, {shs}, {st0}
s_add_u32 {shs}, {shs}, {WS_H}
s_lshl_b32 {sst}, {srb}, 14
s_add_u32 {sst}, {sst}, {sw11}
s_add_u32 {sst}, {sst}, {WS_ST}
v_and_b32 {vsl}, 7, {lane}
v_lshlrev_b32 {vsl}, 10, {vsl}
v_and_b32 {vb[0]}, 56, {lane}
v_add_u32 {vsl}, {vsl}, {vb[0]}
s_lshl_b32 {st0}, {sw}, 6
s_add_u32 {st0}, {st0}, {SL}
v_add_u32 {vsl}, {st0}, {vsl}""")
        if n == FA: o = [lambda: (a.wait(tok['h', 0]), a.wait(tok['u', 11]), a("s_barrier"), flag(0))] + o + tw2(2)
        if n >= FA and NS1 == 2: o += R8[24//(8-FA)*(n-FA):24//(8-FA)*(n-FA+1)]
        if NS1 == 4: o += R12[3*n:3*n+3]
        return o
    p2_half(1, sideB)
    k.stamp('p2b')
    reduce(ACC, KVR, 32768, UC)
    assert not UC
    a(fload(0))
    p2_epi(1)
    k.stamp('pubb')
    def dma_h(tt):
        return (its(f"s_add_u32 m0, {sw12}, {tt*16384}\ns_add_u32 {ssoff}, {shs}, {tt*16384}")
                + [k.vm(f"buffer_load_dwordx4 {vl16}, {ws}, {ssoff} offen offset:{i*1024} sc1 lds", ('ht', tt)) for i in range(4)])
    svs = [v(200, 8), v(152, 8)]
    def stat_loads(H):
        return (its(f"s_add_u32 {sst}, {sst}, 8192") if H else []) + its(f"s_add_u32 m0, {sw11}, {SL + H*8192}") + [k.vm(f"buffer_load_dwordx4 {vl16}, {ws}, {sst} offen offset:{q*1024} sc1 lds", ('st', H)) for q in range(2)]
    def stat_reads(H): return [f"ds_read_b64 {svs[H][2*q:2*q+2]}, {vsl} offset:{H*8192 + q*256}" for q in range(4)]
    fcheck(0)
    k.stamp('s2')
    k.run(dma_h(0) + stat_loads(0) + dma_h(1))
    k.run(tw2(3))
    vsw = v(13); vrn = v(3); vgb = v(20, 2); vw2 = v(14, 2); tm = v(212, 12); b1f = v(236, 12)
    setup = its(f"""s_and_b32 {st0}, {sw}, 1
s_lshl_b32 {st0}, {st0}, 8
s_lshr_b32 {st1}, {sw}, 1
s_lshl_b32 {st1}, {st1}, 10
s_add_u32 {st0}, {st0}, {st1}
v_xor_b32 {vw2[0]}, {st0}, {vl16}
v_xor_b32 {vw2[1]}, 1024, {vw2[0]}
v_and_b32 {vsw}, 56, {lane}
s_lshl_b32 {st0}, {sw}, 6
s_add_u32 {st0}, {st0}, {RB}
v_add_u32 {vsw}, {st0}, {vsw}
v_mov_b32 {vgb[0]}, {f32(GB)}
v_mov_b32 {vgb[1]}, {f32(GB)}
v_and_b32 {vrn}, 15, {lane}
v_lshlrev_b32 {vrn}, 3, {vrn}
v_add_u32 {vrn}, {RB}, {vrn}""")
    consts = []
    for r in range(4): consts += [f"v_lshlrev_b32 {tm[2*r]}, 16, {b2[r]}", f"v_and_b32 {tm[2*r+1]}, 0xffff0000, {b2[r]}"]
    for H in range(2): consts += [f"v_add_f32 {HBs[H][e]}, {HBs[H][e]}, {tm[e]}" for e in range(8)]
    for i in range(3):
        for h in range(2): consts += [f"v_lshlrev_b32 {b1f[i*4+2*h]}, 16, {b1r[2*i+h]}", f"v_and_b32 {b1f[i*4+2*h+1]}, 0xffff0000, {b1r[2*i+h]}"]
    consts = [It(x, by=40) for x in consts]
    k.pack(csm(KC, 16 if NS1 == 4 else 12), [setup], False)
    acc3 = v(160, 24); hf = v(184, 16); pk = v(200, 12); rn = v(248, 8)
    def stat_math(H):
        s = svs[H]
        a(f"v_pk_add_f32 {s[0:2]}, {s[0:2]}, {s[2:4]}\nv_pk_add_f32 {s[4:6]}, {s[4:6]}, {s[6:8]}\nv_pk_add_f32 {s[0:2]}, {s[0:2]}, {s[4:6]}")
        for d in (DPP_X1, DPP_X2, DPP_HM): a(f"v_add_f32 {s[0]}, {s[0]}, {s[0]} {d}\nv_add_f32 {s[1]}, {s[1]}, {s[1]} {d}")
        a(f"""v_mul_f32 {s[0]}, {f32(1/512)}, {s[0]}
v_mul_f32 {s[1]}, {f32(1/512)}, {s[1]}
v_fma_f32 {s[1]}, -{s[0]}, {s[0]}, {s[1]}
v_max_f32 {s[1]}, 0, {s[1]}
v_add_f32 {s[2]}, {seps}, {s[1]}
v_rsq_f32 {s[2]}, {s[2]}
v_mul_f32 {s[3]}, {s[2]}, {s[2]}
v_fma_f32 {s[3]}, {s[3]}, {s[1]}, {seps}
v_rsq_f32 {s[3]}, {s[3]}
v_mul_f32 {s[2]}, {s[2]}, {s[3]}
v_mul_f32 {s[3]}, -{s[2]}, {s[0]}
ds_write_b64 {vsw}, {s[2:4]} offset:{H*256}""")
    W2A = ag(192, 64); W2V = v(48, 112)
    def w2frag(n, t): i = n*2 + t; return W2V[i*4:i*4+4] if i < 28 else W2A[(i-28)*4:(i-28)*4+4]
    W2L = []
    for n in range(22):
        W2L += [k.vm(f"buffer_load_dwordx4 {w2frag(n, t)}, {vw2[t]}, {ws}, {so2} offen offset:{(n & 1)*2048} sc1") for t in range(2)]
        if n & 1: W2L.append(It(f"s_add_u32 {so2}, {so2}, 4096" + (f"\ns_cmp_eq_u32 {so2}, {send}\ns_cselect_b32 {so2}, {sw2}, {so2}" if D3 > 1 else ""), cost=2 if D3 > 1 else 1))
    a.wait(tok['h', 1]); a("s_barrier"); flag(1)
    k.run(take(W2L, W2N[0]))
    def epi1(tt):
        ac = acc3[(tt&1)*12:(tt&1)*12+12]; p = rn[tt*2:tt*2+2]
        for e in range(0, 12, 2): a(f"v_pk_fma_f32 {tm[e:e+2]}, {p}, {cs[e:e+2]}, {b1f[e:e+2]} op_sel:[1,0,0]")
        for e in range(0, 12, 2): a(f"v_pk_fma_f32 {ac[e:e+2]}, {p}, {ac[e:e+2]}, {tm[e:e+2]} op_sel_hi:[0,1,1]")
        for e in range(0, 12, 2): a(f"v_pk_mul_f32 {tm[e:e+2]}, {ac[e:e+2]}, {ac[e:e+2]}")
        for e in range(0, 12, 2): a(f"v_pk_fma_f32 {tm[e:e+2]}, {tm[e:e+2]}, {sgab}, {vgb}")
        for e in range(0, 12, 2): a(f"v_pk_mul_f32 {tm[e:e+2]}, {tm[e:e+2]}, {ac[e:e+2]}")
    def epi2(tt):
        return [f"v_exp_f32 {tm[e]}, {tm[e]}" for e in range(12)] + [f"v_add_f32 {tm[e]}, 1.0, {tm[e]}" for e in range(12)] + [f"v_rcp_f32 {tm[e]}, {tm[e]}" for e in range(12)]
    def epi3(tt):
        ac = acc3[(tt&1)*12:(tt&1)*12+12]
        for e in range(0, 12, 2): a(f"v_pk_mul_f32 {ac[e:e+2]}, {ac[e:e+2]}, {tm[e:e+2]}")
        for i in range(3):
            for h in range(2): a(f"v_cvt_pk_bf16_f32 {pk[i*4+(tt&1)*2+h]}, {ac[i*4+2*h]}, {ac[i*4+2*h+1]}")
        if tt & 1:
            for i in range(3):
                for h in range(2): a(f"v_permlane16_swap_b32 {pk[i*4+h]}, {pk[i*4+2+h]}")
            if tt == 3: a(f"s_add_u32 {shh[0]}, {shh[0]}, {88*1024}\ns_add_u32 {shh[1]}, {shh[1]}, {88*1024}")
            tok['hh', tt >> 1] = store("\n".join(f"buffer_store_dwordx4 {pk[i*4:i*4+4]}, {vl16}, {ws}, {shh[min(i, 1)]} offen offset:{i*1024}" for i in range(3)))
    def rd(n): return f"ds_read_b128 {hf[(n&3)*4:(n&3)*4+4]}, {vl16} offset:{n*1024}"
    def rnrd(tt): return f"ds_read_b64 {rn[tt*2:tt*2+2]}, {vrn} offset:{tt*128}"
    a.wait(tok['st', 0]); a("s_barrier")
    k.run(stat_reads(0))
    for n in range(3): a(rd(n))
    stat_math(0)
    k.stamp('t0')
    def bar(*keys, more=None):
        def f():
            k.stamp('x%s%s' % keys[0])
            for key in keys: a.wait(tok[key])
            k.stamp('y%s%s' % keys[0])
            a("s_barrier")
            k.stamp('z%s%s' % keys[0])
            if more: more()
        return It(f, cost=2, kind='salu')
    for tt in range(4):
        mf = []; rq = []
        for ks in range(16):
            n = tt*16 + ks
            for i in range(3):
                d = acc3[(tt&1)*12+i*4:(tt&1)*12+i*4+4]
                mf.append(f"v_mfma_f32_16x16x32_bf16 {d}, {w1[(ks*3+i)*4:(ks*3+i)*4+4]}, {hf[(n&3)*4:(n&3)*4+4]}, {d if ks else 0}")
            if ks == 13 and tt < 3:
                x = bar(('ht', tt+1) if tt != 1 else ('st', 1)); x.after = 3*ks - 2; rq.append(x)
            if n + 3 < 64: rq.append(It(rd(n + 3), after=3*ks, by=3*ks + 6))
        if tt == 0:
            rq += [It(rnrd(0), after=43), It(rnrd(1), after=44)]
        if tt == 1: rq += [It(x, after=43) for x in stat_reads(1)]
        if tt == 2: rq += [It(rnrd(2), after=43), It(rnrd(3), after=44)]
        vq = take(W2L, W2N[tt+1])
        if tt == 0:
            HBL = dma_h(2) + stat_loads(1) + dma_h(3)
            v1 = take(vq, FB0)
            vq = v1 + [k.vm(fload(1))] + vq + [It(lambda: fcheck(1), cost=2, kind='salu', after=FB1)] + take(HBL, FB2)
        if tt == 1: vq = HBL + vq
        fq = []
        if tt == 0 and NS1 < 4:
            fq = [It(y, by=36 + 3*(i // 6)) for i, y in enumerate(R12)]; mf += csm(12, 16)
        if tt == 3:
            x = bar(('hh', 0), more=lambda: flag(2)); x.after = F3; fq = [x]
        k.pack(mf, [rq, fq, vq, epi2(tt-1) if tt else consts], False, reserve=lambda i: 1 if i % 3 == 2 else 0, vgap=VG3 if tt != 1 else 4)
        k.stamp('m%d' % tt)
        if tt == 3 and EARLY: a(fload(2))
        if tt: epi3(tt-1)
        if tt == 1: stat_math(1)
        k.run(take(W2L, W2E // 2))
        epi1(tt)
        k.run(take(W2L, W2E - W2E // 2))
        k.stamp('e%d' % tt)
    HH = ag(0, 176); acc4 = v(160, 64); tm4 = v(224, 24); ob = v(248, 4)
    vo = v(12); sob = shb; so4 = srd['x'][3]; send4 = srd['x'][1]
    def ld_hh(H):
        o = its(f"s_add_u32 {shv}, {shv}, {88*1024}") if H else []
        o += its(f"s_lshl_b32 {so4}, {srot3}, 11\ns_add_u32 {so4}, {so4}, {shv}\ns_add_u32 {send4}, {shv}, {22*1024}")
        for n in range(22):
            step = 2 if D3 > 1 else 4
            o.append(k.vm(f"buffer_load_dwordx4 {HH[(H*22+n)*4:(H*22+n)*4+4]}, {vl16}, {ws}, {so4} offen offset:{(n % step)*1024} sc1"))
            if n % step == step - 1: o.append(It(f"s_add_u32 {so4}, {so4}, {step*1024}" + (f"\ns_cmp_eq_u32 {so4}, {send4}\ns_cselect_b32 {so4}, {shv}, {so4}" if D3 > 1 else ""), cost=3 if D3 > 1 else 1))
        return o
    def p4_mf(H):
        o = []
        for n in range(22):
            for t in range(2):
                d = acc4[H*32+t*16:H*32+t*16+16]
                o.append(f"v_mfma_f32_32x32x16_bf16 {d}, {w2frag(n, t)}, {HH[(H*22+n)*4:(H*22+n)*4+4]}, {d if n else 0}")
        return o
    def p4_epi(H, packed):
        own = acc4[H*32:H*32+8]; o = []
        if packed:
            o += [f"v_pk_add_f32 {own[e:e+2]}, {own[e:e+2]}, {HBs[H][e:e+2]}" for e in range(0, 8, 2)]
            o += [f"v_pk_add_f32 {own[e:e+2]}, {own[e:e+2]}, {tm4[r*8+e:r*8+e+2]}" for r in range(3) for e in range(0, 8, 2)]
        else:
            o += [f"v_add_f32 {own[e]}, {own[e]}, {HBs[H][e]}" for e in range(8)]
            o += [f"v_add_f32 {own[e]}, {own[e]}, {tm4[r*8+e]}" for r in range(3) for e in range(8)]
        o += [f"v_cvt_pk_bf16_f32 {ob[r]}, {own[2*r]}, {own[2*r+1]}" for r in range(4)]
        o += [f"v_permlane32_swap_b32 {ob[h]}, {ob[2+h]}" for h in range(2)]
        if H: o.append(f"s_add_u32 {sob}, {sob}, 32768")
        o.append(f"buffer_store_dwordx4 {ob}, {vo}, {srd['out']}, {sob} offen")
        return o
    LA = ld_hh(0); LB = ld_hh(1)
    nw = 44 - len([x for x in W2L if x.kind == 'vmem']); mix = []
    for n in range(22):
        while W2L and nw < 2*n + 2: mix += take(W2L, 1); nw += 1
        mix += take(LA, 1); mix[-1].by = 2*n
    LA = mix
    e2 = epi2(3)
    if EARLY:
        fcheck(2)
        for i in range(6): k.run(take(LA, 1) + e2[6*i:6*i+6])
    else: k.run(e2)
    epi3(3)
    k.stamp('p3e')
    if not EARLY: a(fload(2))
    a(f"""v_and_b32 {t0}, 31, {lane}
v_lshlrev_b32 {vo}, 10, {t0}
v_lshrrev_b32 {t0}, 5, {lane}
v_lshl_add_u32 {vo}, {t0}, 4, {vo}
s_lshl_b32 {sob}, {srb}, 16
s_lshl_b32 {st0}, {shead}, 5
s_add_u32 {sob}, {sob}, {st0}""")
    if not EARLY: fcheck(2)
    k.stamp('s3')
    k.run(take(LA, AH - 6*EARLY))
    x = bar(('hh', 1), more=lambda: flag(3)); x.after = F4; x.cost = 4
    k.pack(p4_mf(0), [LA, [x, k.vm(fload(3), after=40)]], True, reserve=lambda i: 1, vgap=2)
    fcheck(3)
    k.stamp('p4a')
    for x in red_w(acc4[0:32], 0):
        a(x); k.run(take(LB, 1))
    a("s_waitcnt lgkmcnt(0)\ns_barrier")
    k.pack(p4_mf(1), [LB, red_r(tm4, 0), [It(x, after=8) for x in p4_epi(0, False)]], True, reserve=lambda i: 1, vgap=2)
    k.stamp('p4b')
    reduce(acc4[32:64], tm4, 32768)
    k.run(p4_epi(1, True))
    if STAMPS:
        a("s_waitcnt vmcnt(0)"); STAMPS.append('end'); k.stamp('end')
        t = f"s_memrealtime {rt[2:4]}\ns_waitcnt lgkmcnt(0)\nv_mov_b32 {t0}, {sw}\nv_lshlrev_b32 {t0}, 28, {t0}\ns_lshl_b32 {st0}, s2, 6\ns_add_u32 {st0}, {st0}, {WS_DBG}\n"
        for i in range(1, len(k.stamped)):
            t += f"s_sub_u32 {st1}, {k.str_[2*i]}, {k.str_[0]}\nv_mov_b32 {t1}, {st1}\nbuffer_store_dword {t1}, {t0}, {ws}, {st0} offen offset:{4*i}\n"
        t += f"v_mov_b32 {t1}, {rt[0]}\nbuffer_store_dword {t1}, {t0}, {ws}, {st0} offen offset:56\n"
        t += f"v_mov_b32 {t1}, {rt[2]}\nbuffer_store_dword {t1}, {t0}, {ws}, {st0} offen offset:60\n"
        a.hidden(t)
        print('stamps:', k.stamped[1:], file=sys.stderr)
    a("L_end:\ns_endpgm")
    return a.finish(), S.peak

def assemble():
    hdr = open('cdna_kernels/' + NAME + '.s.ref').read().split('; Override')[0]
    body, sp = kernel()
    print('sgpr', sp, 'lines', body.count('\n'), 'nops', body.count('s_nop'), file=sys.stderr)
    n = NAME + '_kernel'
    return (hdr + "; @launch grid=(256,1,1) block=(256,1,1) lds=163840\n" + '.amdgcn_target "amdgcn-amd-amdhsa--gfx950"\n.text\n'
            + f".globl {n}\n.p2align 8\n.type {n},@function\n{n}:\n{body}" + '.section .rodata,"a"\n.p2align 6\n' + descriptor(n, 512, 256))

if __name__ == '__main__':
    for x in sys.argv[3:]: exec(x)
    if len(sys.argv) > 2 and sys.argv[2] != '-': STAMPS = sys.argv[2].split(',')
    open(sys.argv[1], 'w').write(assemble())
```

```python
from asmlib import *
import struct, sys
def f32(x): return '0x%08x' % struct.unpack('<I', struct.pack('<f', x))[0]
NAME = 'sequential_preLN__linear_attn_block__mixer_channel_mlp__prompt'
WS_PQ = 0
WS_W2 = WS_PQ + (2 << 20)
WS_KV = WS_W2 + 8 * 88 * 2048
WS_H  = WS_KV + 65536
WS_ST = WS_H + (2 << 20)
WS_HH = WS_ST + 32 * 16384
WS_FL = WS_HH + 32 * 2 * 88 * 1024
WS_END = WS_FL + 32 * 4096
WS_DBG = WS_END
OOB = 0x7ff00000
LOG2E = 1.4426950408889634; LN2 = 0.6931471805599453
GA = -2 * 0.7978845608028654 * 0.044715 * LOG2E
GB = -2 * 0.7978845608028654 * LOG2E
KA = dict(x=0, wqkv=8, wo=16, w1=32, b1=40, w2=48, b2=56, out=64, dbg=72, ws=80)
SZ = dict(x=2048*512*2, wqkv=512*1536*2, wo=512*512*2, w1=512*1376*2, b1=1376*2, w2=1376*512*2, b2=512*2,
          out=2048*512*2, dbg=256, ws=WS_END + 16384)
DPP_X1 = 'quad_perm:[1,0,3,2] row_mask:0xf bank_mask:0xf'
DPP_X2 = 'quad_perm:[2,3,0,1] row_mask:0xf bank_mask:0xf'
DPP_HM = 'row_half_mirror row_mask:0xf bank_mask:0xf'
SPIN = 0x40000
STAMPS = None
D1 = 8
D2 = 1
AH = 10
VG1 = 4
FA = 6
F3 = 40
F4 = 20; FP = 12
EARLY = 1
UBA = 1
PACE = 1
NHL = 0; SK = 4
HA = 1; FH = 12
W2P = 8
G2 = 26; F5 = 26; NLA = 16; OUTP = ''
FB1 = 48
NOW2 = 0; NOW1 = 0
red_w_last = None
NU_ARR = 0
PRE = 3
NS1 = 3
W2N = (6, 3, 10, 6, 10)
W2E = 2
VG3 = 4
HW = 7
T1 = ()
T2 = 0
LFLAG = 1

def v(b, n=1): return R('v', b, n)
def ag(b, n=1): return R('a', b, n)

class It:
    def __init__(self, x, cost=None, kind=None, after=0, by=None):
        self.x = x; self.after = after; self.by = by
        self.dw = 2 if isinstance(x, str) and 'b128' in x.split()[0] else 1
        if kind is None:
            mn = x.split()[0]
            kind = ('trans' if mn.startswith(TRANS) else 'valu' if mn.startswith('v_') else 'ds' if mn.startswith('ds_')
                    else 'vmem' if mn.startswith(('buffer', 'global')) else 'salu')
        self.kind = kind
        self.cost = cost if cost is not None else {'trans': 2, 'valu': 1, 'ds': 1, 'vmem': 3, 'salu': 1}.get(kind, 1)
def its(text, after=0): return [It(l.strip(), after=after) for l in text.split('\n') if l.strip()]

class K:
    def __init__(self):
        self.a = Asm(); self.S = Regs('s', 4, 102); self.nlab = 0
        self.stamped = []; self.tok = {}
    def emit(self, x):
        if isinstance(x, It): x = x.x
        if callable(x): return x()
        return self.a(x)
    def run(self, items):
        for x in items: self.emit(x)
    def vm(self, text, key=None, after=0):
        def f():
            t = self.a(text)
            if key is not None: self.tok[key] = t
        return It(f, kind='vmem', after=after)
    def pack(self, mf, queues, big, reserve=None, vgap=0):
        qs = [[x if isinstance(x, It) else It(x) for x in q] for q in queues]
        cap, vcap, dcap = (7, 6, 4) if big else (3, 2, 2)
        lastv = -99
        for i, m in enumerate(mf):
            for q in qs:
                late = [n for n, x in enumerate(q) if x.by is not None and x.by <= i]
                if late:
                    assert all(x.after < i for x in q[:late[-1] + 1])
                    self.run(q[:late[-1] + 1]); del q[:late[-1] + 1]
            self.emit(m)
            s = cap - (reserve(i) if reserve else 0); vs = vcap; d = dcap
            for q in qs:
                while q:
                    x = q[0]
                    if x.after > i or x.cost > s: break
                    if x.kind in ('valu', 'trans') and x.cost > vs: break
                    if x.kind == 'ds' and x.dw > d: break
                    if x.kind == 'vmem' and i - lastv < vgap: break
                    q.pop(0); self.emit(x); s -= x.cost
                    if x.kind in ('valu', 'trans'): vs -= x.cost
                    if x.kind == 'trans' and not big: s = 0
                    if x.kind == 'ds': d -= x.dw
                    if x.kind == 'vmem': lastv = i
        left = sum(len(q) for q in qs)
        for q in qs: self.run(q)
        return left
    def stamp(self, name):
        if STAMPS and name in STAMPS:
            n = len(self.stamped); self.stamped.append(name)
            self.a.hidden(f"s_memtime {self.str_[2*n:2*n+2]}")
    def check(self, cmp_, mask, reload, st1):
        a = self.a; self.nlab += 1; n = self.nlab
        a(cmp_)
        a(f"s_cmp_eq_u32 vcc_lo, {mask}\ns_cbranch_scc1 L_ok{n}")
        a.hidden(f"""s_mov_b32 {st1}, 0
L_spin{n}:
{reload}
s_add_u32 {st1}, {st1}, 1
s_waitcnt vmcnt(0)
{cmp_}
s_cmp_ge_u32 {st1}, {SPIN}
s_cbranch_scc1 L_ok{n}
s_nop 1
s_cmp_eq_u32 vcc_lo, {mask}
s_cbranch_scc0 L_spin{n}
L_ok{n}:""")

def kernel():
    k = K(); a = k.a; S = k.S; tok = k.tok
    a("s_cmp_ge_u32 s2, 256\ns_cbranch_scc1 L_end")
    if STAMPS:
        k.str_ = S.alloc(2*len(STAMPS) + 4, 4); rt = S.alloc(4, 4)
        a.hidden(f"s_memrealtime {rt[0:2]}")
        STAMPS.insert(0, 'start')
    k.stamp('start')
    srd = {}
    for n in ['x', 'wqkv', 'ws', 'dbg', 'wo', 'w1', 'w2', 'b1', 'b2', 'out']: srd[n] = S.alloc(4)
    for n in ['x', 'wqkv']: a(f"s_load_dwordx2 {srd[n][0:2]}, s[0:1], {KA[n]}")
    for n in ['x', 'wqkv']: a(f"s_mov_b32 {srd[n][2]}, {SZ[n]}\ns_mov_b32 {srd[n][3]}, 0x00020000")
    ws = srd['ws']
    st0, st1, ssoff, sw, sj, srb, shead, sj1, srb1, shead1 = [S.alloc() for _ in range(10)]
    sxb, swb, sw10, sw11, sw12, srot, sc_x, sc_w = [S.alloc() for _ in range(8)]
    lane, vl16, t0, t1, t2, t3 = v(1), v(2), v(4), v(5), v(6), v(7)
    vxd = v(8, 2); vwd = v(10, 2)
    a(f"""v_and_b32 {lane}, 63, v0
v_lshrrev_b32 {t0}, 6, v0
v_readfirstlane_b32 {sw}, {t0}
s_and_b32 {sj1}, s2, 1
s_lshl_b32 {sj1}, {sj1}, 2
s_bfe_u32 {st0}, s2, 0x20003
s_add_u32 {sj1}, {sj1}, {st0}
s_bfe_u32 {srb1}, s2, 0x20001
s_lshl_b32 {srb1}, {srb1}, 3
s_lshr_b32 {st0}, s2, 5
s_add_u32 {srb1}, {srb1}, {st0}
v_lshrrev_b32 {t0}, 3, {lane}
v_and_b32 {t1}, 7, {lane}
v_xor_b32 {t2}, {t0}, {t1}
v_lshlrev_b32 {t2}, 4, {t2}
v_lshl_add_u32 {vxd[0]}, {t0}, 10, {t2}
v_add_u32 {vxd[1]}, 7168, {vxd[0]}
v_bfe_u32 {t2}, {lane}, 4, 1
s_and_b32 {st0}, {sw}, 1
s_lshl_b32 {st0}, {st0}, 1
v_or_b32 {t2}, {st0}, {t2}
v_lshrrev_b32 {t3}, 1, {t1}
v_xor_b32 {t2}, {t2}, {t3}
v_lshlrev_b32 {t2}, 5, {t2}
v_and_b32 {t3}, 1, {lane}
v_lshl_add_u32 {t2}, {t3}, 4, {t2}
v_mul_u32_u24 {vwd[0]}, 3072, {t0}
v_add_u32 {vwd[0]}, {vwd[0]}, {t2}
v_add_u32 {vwd[1]}, {98304 - 2048}, {vwd[0]}
s_lshl_b32 {sxb}, {srb1}, 16
s_lshl_b32 {st0}, {sw}, 14
s_add_u32 {sxb}, {sxb}, {st0}
s_mul_i32 {swb}, {sw}, {8*3072}
s_lshl_b32 {st0}, {sj1}, 7
s_add_u32 {swb}, {swb}, {st0}
s_lshl_b32 {sw10}, {sw}, 10
s_lshl_b32 {sw11}, {sw}, 11
s_lshl_b32 {sw12}, {sw}, 12
s_add_u32 {srot}, {srb1}, {sj1}
s_and_b32 {srot}, {srot}, {D1 - 1}
s_mul_i32 {srot}, {srot}, {8 // D1}""")
    WB = 65536; PB = WB + 5 * 16384; XR = PB + 8192
    def X(c):
        return (its(f"s_add_u32 {sc_x}, {srot}, {c}\ns_and_b32 {sc_x}, {sc_x}, 7\ns_lshl_b32 {sc_x}, {sc_x}, 7\ns_add_u32 {sc_x}, {sc_x}, {sxb}\ns_add_u32 m0, {sw11}, {c*8192}")
                + [k.vm(f"buffer_load_dwordx4 {vxd[o]}, {srd['x']}, {sc_x} offen offset:{o*1024} lds", ('x', c)) for o in range(2)])
    def wrot(c, add): return f"s_add_u32 {sc_w}, {srot}, {c}\ns_and_b32 {sc_w}, {sc_w}, 7\ns_mul_i32 {sc_w}, {sc_w}, {64*3072}\ns_add_u32 {sc_w}, {sc_w}, {swb}\n" + (f"s_add_u32 {sc_w}, {sc_w}, {add}\n" if add else "")
    def W(c):
        return (its(wrot(c, 1024) + f"s_add_u32 m0, {sw12}, {WB + (c % 5)*16384}")
                + [k.vm(f"buffer_load_dwordx4 {vwd[i >> 1]}, {srd['wqkv']}, {sc_w} offen offset:{i*1024} lds", ('w', c)) for i in range(4)])
    QSLOT = [3, 4, 0, 1]; QPOS = [0, 2048, 1024, 3072]
    def Q(n):
        o = []
        for h in range(2):
            o += its(wrot(2*n + h, 0) + f"s_add_u32 m0, {sw12}, {WB + QSLOT[n]*16384 + h*1024}")
            o += [k.vm(f"buffer_load_dwordx4 {vwd[i]}, {srd['wqkv']}, {sc_w} offen offset:{i*2048} lds", ('q', n)) for i in range(2)]
        return o
    def kv_lds(ks, p): return ((ks // 2) % 5) * 16384 + (ks & 1) * 2048 + p * 1024
    def q_lds(ks): return QSLOT[ks // 4] * 16384 + QPOS[ks & 3]
    a("s_waitcnt lgkmcnt(0)"); k.stamp('karg')
    k.run(X(0) + W(0))
    for n in srd:
        if n not in ('x', 'wqkv'): a(f"s_load_dwordx2 {srd[n][0:2]}, s[0:1], {KA[n]}")
    k.run(X(1) + W(1))
    for n in srd:
        if n not in ('x', 'wqkv'): a(f"s_mov_b32 {srd[n][2]}, {SZ[n]}\ns_mov_b32 {srd[n][3]}, 0x00020000")
    skvb, sflb, spsrc, sxr, sdst, sones, seps = [S.alloc() for _ in range(7)]
    vz = v(44, 4); ones = v(40, 4); sxcc = S.alloc()
    a(f"s_getreg_b32 {sxcc}, hwreg(HW_REG_XCC_ID)\ns_and_b32 {sxcc}, {sxcc}, 15\ns_add_u32 {sxcc}, {sxcc}, 1")
    a(f"""s_bfe_u32 {sj}, s2, 0x30003
s_and_b32 {srb}, s2, 7
s_lshl_b32 {srb}, {srb}, 2
s_lshr_b32 {st0}, s2, 6
s_add_u32 {srb}, {srb}, {st0}
s_lshl_b32 {shead}, {sj}, 2
s_add_u32 {shead}, {shead}, {sw}
s_lshl_b32 {shead1}, {sj1}, 2
s_add_u32 {shead1}, {shead1}, {sw}
s_lshl_b32 {skvb}, {shead1}, 11
s_add_u32 {skvb}, {skvb}, {WS_KV}
s_lshl_b32 {sflb}, {srb}, 12
s_add_u32 {sflb}, {sflb}, {WS_FL}
v_lshlrev_b32 {vl16}, 4, {lane}""")
    for r in range(4): a(f"v_mov_b32 {vz[r]}, 0")
    a("s_waitcnt lgkmcnt(0)")
    a(f"s_cmp_ge_u32 s2, 8\ns_cbranch_scc1 L_nozero")
    a.hidden(f"""s_lshl_b32 {st0}, s2, 2
s_add_u32 {st0}, {st0}, {sw}
s_lshl_b32 {st0}, {st0}, 11
s_add_u32 {st0}, {st0}, {WS_KV}
buffer_store_dwordx4 {vz}, {vl16}, {ws}, {st0} offen sc1
buffer_store_dwordx4 {vz}, {vl16}, {ws}, {st0} offen offset:1024 sc1
L_nozero:""")
    a(f"s_cmp_lg_u32 {sw}, 1\ns_cbranch_scc1 L_nofl")
    a.hidden(f"""s_lshl_b32 {st0}, {sj}, 7
s_add_u32 {st0}, {st0}, {sflb}
v_lshrrev_b32 {t0}, 2, {lane}
v_lshlrev_b32 {t0}, 26, {t0}
v_lshl_add_u32 {t0}, {lane}, 10, {t0}
v_mov_b32 {vz[1]}, {sxcc}
buffer_store_dwordx2 {vz[0:2]}, {t0}, {ws}, {st0} offen sc1
L_nofl:""")
    k.run(X(2) + W(2))
    if PRE > 3: k.run(X(3) + W(3))
    if PRE > 4: k.run(X(4) + W(4))
    k.stamp('issued')
    vxa = v(12, 2); vsa = v(14, 2); vwa = v(16, 2); vxr = v(18, 2); vroot = v(20); vrootA = v(21); vp = v(22, 2); vw1d = v(3)
    pa = v(32, 2); va = v(34, 6)
    SB = 0
    KS = 8192
    a(f"""v_lshrrev_b32 {t0}, 4, {lane}
v_and_b32 {t1}, 7, {lane}
v_xor_b32 {t2}, {t0}, {t1}
v_lshlrev_b32 {t2}, 4, {t2}
v_lshl_add_u32 {t2}, {t1}, 7, {t2}
v_bfe_u32 {t3}, {lane}, 3, 1
v_lshl_add_u32 {vxa[0]}, {t3}, 10, {t2}
v_xor_b32 {vxa[1]}, 64, {vxa[0]}
v_add_u32 {vsa[0]}, {sw11}, {vxa[0]}
v_add_u32 {vsa[1]}, {sw11}, {vxa[1]}
v_and_b32 {t2}, 1, {t0}
v_lshl_or_b32 {t2}, {t2}, 1, {t3}
v_xor_b32 {t2}, {sw}, {t2}
v_lshlrev_b32 {t2}, 5, {t2}
v_and_b32 {t3}, 3, {lane}
v_lshl_add_u32 {t2}, {t3}, 3, {t2}
v_bfe_u32 {t3}, {lane}, 2, 2
v_lshl_add_u32 {t2}, {t3}, 7, {t2}
v_lshl_add_u32 {t2}, {t0}, 12, {t2}
v_add_u32 {vwa[0]}, {WB}, {t2}
v_add_u32 {vwa[1]}, {WB + 49152}, {t2}
s_mov_b32 {sones}, 0x3f803f80
v_mov_b32 {ones[0]}, {sones}
v_mov_b32 {ones[1]}, {sones}
v_mov_b32 {ones[2]}, {sones}
v_mov_b32 {ones[3]}, {sones}""")
    later = its(f"""s_lshl_b32 {st0}, {sw}, 1
v_xor_b32 {t2}, {st0}, {t1}
v_lshlrev_b32 {t2}, 4, {t2}
v_lshl_add_u32 {t2}, {t1}, 7, {t2}
v_bfe_u32 {t3}, {lane}, 3, 2
v_lshl_add_u32 {t2}, {t3}, 10, {t2}
v_lshrrev_b32 {t3}, 5, {lane}
v_lshl_add_u32 {t2}, {t3}, 3, {t2}
v_add_u32 {vxr[0]}, {XR}, {t2}
v_xor_b32 {vxr[1]}, 16, {vxr[0]}
s_mov_b32 {seps}, {f32(1e-5)}
v_lshlrev_b32 {vrootA}, 5, {lane}
s_add_u32 {st0}, {sw11}, {KS}
v_add_u32 {va[0]}, {st0}, {vl16}
v_lshl_add_u32 {va[1]}, {t0}, 4, {st0}
v_lshlrev_b32 {va[3]}, 2, {lane}
v_add_u32 {va[2]}, {st0}, {va[3]}
v_and_b32 {t1}, 15, {lane}
v_lshl_add_u32 {va[4]}, {t1}, 2, {st0}
v_bfe_u32 {t2}, {lane}, 2, 1
v_lshlrev_b32 {t2}, 10, {t2}
v_bfe_u32 {t1}, {lane}, 3, 1
v_lshl_add_u32 {t2}, {t1}, 9, {t2}
v_bfe_u32 {t1}, {lane}, 4, 1
v_lshl_add_u32 {t2}, {t1}, 6, {t2}
v_and_b32 {t1}, 3, {lane}
v_lshl_add_u32 {t2}, {t1}, 2, {t2}
v_add_u32 {t2}, 256, {t2}
v_lshl_add_u32 {va[5]}, {t3}, 30, {t2}""")
    later += its(f"""s_lshr_b32 {st1}, s2, 3
s_and_b32 {st0}, s2, 7
s_lshl_b32 {spsrc}, {st1}, 16
s_lshl_b32 {sdst}, {st0}, 7
s_add_u32 {spsrc}, {spsrc}, {sdst}
s_lshl_b32 {sdst}, {sw}, 14
s_add_u32 {spsrc}, {spsrc}, {sdst}
s_mul_i32 {sdst}, {st0}, {88*2048}
s_lshl_b32 {st1}, {st1}, 11
s_add_u32 {sdst}, {sdst}, {st1}
s_mul_i32 {st1}, {sw}, {22*2048}
s_add_u32 {sdst}, {sdst}, {st1}
s_add_u32 {sdst}, {sdst}, {WS_W2}
""") + [It(f"s_cmp_lt_u32 s2, 176\ns_cselect_b32 {sdst}, {sdst}, {OOB}\ns_cselect_b32 {spsrc}, {spsrc}, {OOB}", cost=2)] + its(f"""
v_lshlrev_b32 {t0}, 10, {t3}
v_bfe_u32 {t1}, {lane}, 2, 2
v_lshl_add_u32 {t0}, {t1}, 7, {t0}
v_bfe_u32 {t1}, {lane}, 3, 1
v_lshlrev_b32 {t1}, 1, {t1}
v_bfe_u32 {t2}, {lane}, 4, 1
v_or_b32 {t1}, {t1}, {t2}
v_lshl_add_u32 {t0}, {t1}, 5, {t0}
v_and_b32 {t1}, 3, {lane}
v_lshl_add_u32 {t0}, {t1}, 3, {t0}
s_add_u32 {st1}, {sw11}, {PB}
v_add_u32 {pa[0]}, {st1}, {t0}
v_xor_b32 {pa[1]}, 64, {pa[0]}
v_lshrrev_b32 {t0}, 3, {lane}
v_lshlrev_b32 {t2}, 1, {t2}
v_bfe_u32 {t1}, {lane}, 1, 2
v_xor_b32 {t1}, {t1}, {t2}
v_lshlrev_b32 {t1}, 5, {t1}
v_and_b32 {t2}, 1, {lane}
v_lshl_add_u32 {t1}, {t2}, 4, {t1}
v_lshl_add_u32 {vp[0]}, {t0}, 10, {t1}
v_add_u32 {vp[1]}, 7168, {vp[0]}
s_lshr_b32 {st0}, {sw}, 1
s_lshl_b32 {st0}, {st0}, 5
v_xor_b32 {t1}, {st0}, {t1}
v_mul_u32_u24 {t0}, 2752, {t0}
v_add_u32 {vw1d}, {t0}, {t1}
s_lshl_b32 {sxr}, {srb}, 16
s_lshl_b32 {st0}, {sw}, 14
s_add_u32 {sxr}, {sxr}, {st0}
s_lshl_b32 {st0}, {sj}, 7
s_add_u32 {sxr}, {sxr}, {st0}""")
    PD = its(f"s_add_u32 m0, {sw11}, {PB}") + [k.vm(f"buffer_load_dwordx4 {vp[i]}, {srd['w2']}, {spsrc} offen offset:{i*1024} lds", 'p') for i in range(2)]
    XD = its(f"s_add_u32 m0, {sw11}, {XR}") + [k.vm(f"buffer_load_dwordx4 {vxd[i]}, {srd['x']}, {sxr} offen offset:{i*1024} lds", 'xr') for i in range(2)]
    xf = ag(0, 256)
    def xfrag(ks, tt): return xf[(ks*4+tt)*4:(ks*4+tt)*4+4]
    wf = v(48, 32)
    def wfrag(ks, p): b = ((ks // 2) & 1) * 16 + (ks & 1) * 8 + p * 4; return wf[b:b+4]
    def tr(dst, off):
        base = vwa[0] if off < 49152 else vwa[1]
        if off >= 49152: off -= 49152
        return [f"ds_read_b64_tr_b16 {dst[0:2]}, {base} offset:{off}", f"ds_read_b64_tr_b16 {dst[2:4]}, {base} offset:{off+512}"]
    def reads(c):
        o = []
        for ks in (2*c, 2*c+1):
            for p in (0, 1): o += tr(wfrag(ks, p), kv_lds(ks, p))
            for tt in range(4): o.append(f"ds_read_b128 {xfrag(ks, tt)}, {vxa[ks&1]} offset:{c*8192 + tt*2048}")
        return o
    sf = v(80, 16); acck = v(96, 16); accv = v(112, 16); accq = v(128, 16); csk = v(144, 4); csv = v(148, 4); csq = v(152, 4)
    rsum = v(156, 4); gram = v(160, 4); pf = v(164, 8); vsr = v(172, 4)
    nmv = v(184, 16); rlv = v(200, 16); rv = v(216, 16); qs = v(232, 8); tmp = v(240, 16)
    xres = v(24, 8)
    smA = S.alloc(2); smC = S.alloc(2)
    spf = S.alloc(); vt11 = v(176); vt4 = v(177)
    later = its(f"""s_lshr_b32 {spf}, s2, 3
s_lshl_b32 {spf}, {spf}, 2
s_add_u32 {spf}, {spf}, {sw}
s_mul_i32 {spf}, {spf}, {88*128}
v_lshlrev_b32 {vt4}, 7, {lane}
v_max_u32 {vt11}, 10, {lane}
v_subrev_u32 {vt11}, 10, {vt11}
v_lshl_add_u32 {vt11}, {vt11}, 24, {vt4}
v_lshrrev_b32 {vz[3]}, 2, {lane}
v_lshl_add_u32 {vt4}, {vz[3]}, 24, {vt4}""") + later
    def touch(srd_, vaddr, pre):
        def f(): a(f"buffer_load_dword v0, {vaddr}, {srd_}, {ssoff} offen").wr = set()
        return [It(pre, cost=2), It(f, kind='vmem')]
    def tw1(slot):
        return touch(srd['w1'], vt11, f"s_add_u32 {ssoff}, {spf}, {T1.index(slot)*11*128}") if slot in T1 else []
    later += its(f"""s_mov_b32 {smA[0]}, 0xaaaaaaaa
s_mov_b32 {smA[1]}, 0xaaaaaaaa
s_mov_b32 {smC[0]}, 0xcccccccc
s_mov_b32 {smC[1]}, 0xcccccccc
v_and_b32 {t0}, 15, {lane}
v_lshlrev_b32 {vsr[3]}, 3, {t0}
v_lshlrev_b32 {t0}, 2, {t0}
s_lshl_b32 {st0}, {sw}, 6
v_add_u32 {vsr[0]}, {st0}, {t0}
v_lshlrev_b32 {vsr[1]}, 1, {vsr[0]}
v_lshrrev_b32 {vsr[2]}, 4, {lane}
v_lshlrev_b32 {vsr[2]}, 4, {vsr[2]}""")
    a.wait(tok['w', 0]); a("s_barrier"); k.stamp('first')
    for r in reads(0): a(r)
    stats_at = {0: (0, 1), 2: (2, 3), 3: (4,), 4: (5, 6), 5: (7,)}
    rootld = f"buffer_load_dword {vroot}, {vrootA}, {srd['dbg']}, 0 offen sc1"
    for c in range(8):
        need_ = ([('w', c+1), ('x', c+1)] if c < 7 else []) + [('x', cc) for cc in stats_at.get(c, ())]
        for key in need_: a.wait(tok[key])
        a("s_waitcnt lgkmcnt(0)\ns_barrier")
        k.stamp('i%d' % c)
        if c == 1:
            a(f"s_cmp_ge_u32 s2, 8\ns_cbranch_scc1 L_noroot\ns_cmp_lg_u32 {sw}, 0\ns_cbranch_scc1 L_noroot")
            a.hidden(f"""s_lshl_b32 {ssoff}, s2, 5
v_lshlrev_b32 {vz[0]}, 24, {lane}
v_mov_b32 {vz[1]}, 1
buffer_store_dword {vz[1]}, {vz[0]}, {srd['dbg']}, {ssoff} offen sc1
L_noroot:""")
        mf = []
        for ks in (2*c, 2*c+1):
            for tt in range(4):
                for p, acc in ((0, acck), (1, accv)):
                    d = acc[tt*4:tt*4+4]
                    mf.append(f"v_mfma_f32_16x16x32_bf16 {d}, {xfrag(ks, tt)}, {wfrag(ks, p)}, {d if ks else 0}")
            for p, acc in ((0, csk), (1, csv)):
                mf.append(f"v_mfma_f32_16x16x32_bf16 {acc}, {ones}, {wfrag(ks, p)}, {acc if ks else 0}")
        rd = []
        for i, cc in enumerate(stats_at.get(c, ())):
            for p in range(2):
                s_ = sf[(2*i+p)*4:(2*i+p)*4+4]; first = (cc == 0 and p == 0)
                rd.append(f"ds_read_b128 {s_}, {vsa[p]} offset:{cc*8192}")
                mf.append(f"v_mfma_f32_16x16x32_bf16 {rsum}, {s_}, {ones}, {0 if first else rsum}")
                mf.append(f"v_mfma_f32_16x16x32_bf16 {gram}, {s_}, {s_}, {0 if first else gram}")
        if c < 7: rd += reads(c+1)
        if c == 7:
            for tt in range(4):
                rd += [f"ds_read_b128 {nmv[tt*4:tt*4+4]}, {vsr[2]} offset:{SB + tt*64}", f"ds_read_b128 {rlv[tt*4:tt*4+4]}, {vsr[2]} offset:{SB + 512 + tt*64}"]
            for tt in range(4):
                rd += [f"ds_read_b128 {rv[tt*4:tt*4+4]}, {vsr[2]} offset:{SB + 256 + tt*64}", f"ds_read_b64 {qs[tt*2:tt*2+2]}, {vsr[3]} offset:{SB + 768 + tt*128}"]
        dm = {0: {3: W(3) + X(3) + X(4), 4: W(4) + X(4), 5: X(5) + X(6)}[PRE], 1: {3: W(4) + W(5), 4: W(5) + X(5), 5: W(5) + X(7)}[PRE],
              2: W(6) + {3: X(5) + X(6), 4: X(6), 5: []}[PRE], 3: W(7) + (X(7) if PRE < 5 else []), 4: PD + XD,
              5: Q(0), 6: [k.vm(rootld)] + Q(1), 7: Q(2) + Q(3)}[c]
        if c == HW:
            def f5():
                a(f"s_cmp_lg_u32 {sw}, 0\ns_cbranch_scc1 L_nob")
                a.hidden(f"s_mul_i32 {ssoff}, {sj}, 384\nbuffer_load_dword v0, {vt4}, {srd['b1']}, {ssoff} offen\ns_lshl_b32 {ssoff}, {sj}, 7\nbuffer_load_dword v0, {vt4}, {srd['b2']}, {ssoff} offen\nL_nob:")
            dm = (dm + touch(srd['w1'], vt11, f"s_lshl_b32 {ssoff}, s2, 2\ns_add_u32 {ssoff}, {ssoff}, {sw}\ns_mul_i32 {ssoff}, {ssoff}, {11*128}")
                  + touch(srd['wo'], vt4, f"s_lshl_b32 {ssoff}, s2, 2\ns_add_u32 {ssoff}, {ssoff}, {sw}\ns_lshl_b32 {ssoff}, {ssoff}, 9") + [It(f5, kind='vmem')])
        dm = dm + tw1(c)
        for x in dm:
            if x.kind == 'vmem': x.cost = 2
        vq = []
        if c == 6:
            vq = its(f"""v_cndmask_b32 {rsum[0]}, {rsum[0]}, {rsum[1]}, {smA}
v_cndmask_b32 {rsum[2]}, {rsum[2]}, {rsum[3]}, {smA}
v_cndmask_b32 {gram[0]}, {gram[0]}, {gram[1]}, {smA}
v_cndmask_b32 {gram[2]}, {gram[2]}, {gram[3]}, {smA}
v_cndmask_b32 {rsum[0]}, {rsum[0]}, {rsum[2]}, {smC}
v_cndmask_b32 {gram[0]}, {gram[0]}, {gram[2]}, {smC}
v_mul_f32 {rsum[0]}, {f32(-1/512)}, {rsum[0]}
v_mul_f32 {gram[0]}, {f32(1/512)}, {gram[0]}
v_fma_f32 {gram[0]}, -{rsum[0]}, {rsum[0]}, {gram[0]}
v_max_f32 {gram[0]}, 0, {gram[0]}
v_add_f32 {gram[0]}, {seps}, {gram[0]}
v_rsq_f32 {gram[0]}, {gram[0]}
v_mul_f32 {rsum[1]}, {f32(LOG2E)}, {gram[0]}""")
            vq.append(It(f"""s_mov_b32 exec_lo, 0x00f0000f
s_mov_b32 exec_hi, 0xf0000f00
ds_write_b32 {vsr[0]}, {rsum[0]} offset:{SB}
ds_write_b32 {vsr[0]}, {gram[0]} offset:{SB + 256}
ds_write_b32 {vsr[0]}, {rsum[1]} offset:{SB + 512}
ds_write_b64 {vsr[1]}, {rsum[0:2]} offset:{SB + 768}
s_mov_b64 exec, -1""", cost=1, kind='salu'))
        if c < 4:
            n = len(later) if c == 3 else 36
            vq = later[:n]; later = later[n:]
        k.pack(mf, [rd, dm, vq] if c < 4 else [rd, vq, dm], False, vgap=VG1 if len([x for x in dm if x.kind == 'vmem'])*VG1 <= len(mf) else 3)
    k.stamp('pass1')
    sdel = smA; sln2 = smC
    a(f"s_mov_b32 {sdel[0]}, {f32(1e-6/LN2)}\ns_mov_b32 {sdel[1]}, {f32(1e-6/LN2)}\ns_mov_b32 {sln2[0]}, {f32(LN2)}\ns_mov_b32 {sln2[1]}, {f32(LN2)}")
    def phi_tail(acc, n):
        for r in range(n): a(f"v_exp_f32 {tmp[r]}, {acc[r]} clamp")
        for r in range(n): a(f"v_max_f32 {acc[r]}, {sdel[0]}, {acc[r]}")
        for r in range(0, n, 2): a(f"v_pk_fma_f32 {acc[r:r+2]}, {acc[r:r+2]}, {sln2}, {tmp[r:r+2]}")
    pkf = v(48, 8); vf = v(56, 8)
    for r in range(0, 16, 2): a(f"v_pk_fma_f32 {acck[r:r+2]}, {nmv[r:r+2]}, {csk[0:2]}, {acck[r:r+2]}")
    for r in range(0, 16, 2): a(f"v_pk_fma_f32 {acck[r:r+2]}, {acck[r:r+2]}, {rlv[r:r+2]}, {sdel}")
    phi_tail(acck, 16)
    for r in range(8): a(f"v_cvt_pk_bf16_f32 {pkf[r]}, {acck[2*r]}, {acck[2*r+1]}")
    for r in range(0, 16, 2): a(f"v_pk_fma_f32 {accv[r:r+2]}, {nmv[r:r+2]}, {csv[0:2]}, {accv[r:r+2]}")
    for r in range(0, 16, 2): a(f"v_pk_mul_f32 {accv[r:r+2]}, {accv[r:r+2]}, {rv[r:r+2]}")
    for r in range(8): a(f"v_cvt_pk_bf16_f32 {vf[r]}, {accv[2*r]}, {accv[2*r+1]}")
    dkv = tmp[8:12]; dz = tmp[12:16]
    for h in range(2):
        a(f"v_mfma_f32_16x16x32_bf16 {dkv}, {pkf[h*4:h*4+4]}, {vf[h*4:h*4+4]}, {dkv if h else 0}")
        a(f"v_mfma_f32_16x16x32_bf16 {dz}, {pkf[h*4:h*4+4]}, {ones}, {dz if h else 0}")
    k.check(f"v_cmp_ne_u32 vcc, 0, {vroot}", 0xff, rootld, st1)
    a(f"ds_write_b128 {va[0]}, {dkv}\nds_write_b128 {va[1]}, {dz} offset:1024")
    for g in range(4): a(f"ds_read_b32 {tmp[g]}, {va[2]} offset:{g*256}")
    a(f"ds_read_b32 {tmp[4]}, {va[4]} offset:1024")
    swo = spsrc; sw14 = sxr; sc0 = sj1; sw1b = sxb; sinv = srd['wqkv'][2]; sw1o = srd['wqkv'][3]
    a(f"""s_lshl_b32 {swo}, {sw}, 17
s_lshl_b32 {st0}, {sj}, 7
s_add_u32 {swo}, {swo}, {st0}
s_lshl_b32 {sw14}, {sw}, 14
s_and_b32 {srot}, {srb}, {D2 - 1}
s_mul_i32 {srot}, {srot}, {4 // D2}
s_mul_i32 {sc0}, {sj}, 12
s_add_u32 {sc0}, {sc0}, {sw}
s_cmp_lt_u32 {sj}, 7
s_cselect_b32 {sinv}, 0, {OOB}
s_mul_i32 {sw1b}, {sw}, {8*2752}
s_mul_i32 {st0}, {sj}, 384
s_add_u32 {sw1b}, {sw1b}, {st0}""")
    if NOW1: a(f"s_mov_b32 {sw1b}, {OOB}")
    for gg in range(4):
        a(f"buffer_atomic_add_f32 {tmp[gg]}, {va[3]}, {ws}, {skvb} offen offset:{(gg&1)*1024 + (gg>>1)*512}")
    a(f"buffer_atomic_add_f32 {tmp[4]}, {va[5]}, {ws}, {skvb} offen")
    k.stamp('atom')
    k.run(tw1(8))
    a.wait(tok['q', 3]); a("s_barrier")
    WOD = []
    for g4 in range(4):
        WOD += its(f"s_add_u32 {sc_x}, {srot}, {g4}\ns_and_b32 {sc_x}, {sc_x}, 3\ns_lshl_b32 {sc_w}, {sc_x}, 15\ns_add_u32 {sc_w}, {sc_w}, {swo}\ns_lshl_b32 {sc_x}, {sc_x}, 12\ns_add_u32 {sc_x}, {sc_x}, {sw14}\ns_mov_b32 m0, {sc_x}")
        WOD += [k.vm(f"buffer_load_dwordx4 {vp[i]}, {srd['wo']}, {sc_w} offen offset:{i*1024} lds", 'wo') for i in range(2)]
        WOD += its(f"s_add_u32 m0, {sc_x}, 2048\ns_add_u32 {sc_w}, {sc_w}, 16384")
        WOD += [k.vm(f"buffer_load_dwordx4 {vp[i]}, {srd['wo']}, {sc_w} offen offset:{i*1024} lds", 'wo') for i in range(2)]
    UPOS = [WB + p*12288 for p in (3, 7, 0, 1, 2, 4, 5, 6)]
    def U(ks):
        o = its(f"s_add_u32 {sc_w}, {srot}, {ks // 4}\ns_and_b32 {sc_w}, {sc_w}, 3\ns_mul_i32 {sc_w}, {sc_w}, {128*2752}\ns_add_u32 {sc_w}, {sc_w}, {sw1b}") if ks % 4 == 0 else its(f"s_add_u32 {sc_w}, {sc_w}, {32*2752}")
        o += its(f"s_add_u32 {sw1o}, {sc_w}, {sinv}")
        for s in range(3):
            o += its(f"s_add_u32 m0, {sw10}, {UPOS[ks & 7] + s*4096 - s*128}")
            o.append(k.vm(f"buffer_load_dwordx4 {vw1d}, {srd['w1']}, {sw1o if s else sc_w} offen offset:{s*128} lds", ('u', ks)))
        return o
    qf = v(72, 32)
    def qfrag(ks): b = (ks & 7) * 4; return qf[b:b+4]
    for ks in range(4):
        for r in tr(qfrag(ks), q_lds(ks)): a(r)
    mf = []; rd = []
    for ks in range(16):
        for tt in range(4):
            d = accq[tt*4:tt*4+4]
            mf.append(f"v_mfma_f32_16x16x32_bf16 {d}, {qfrag(ks)}, {xfrag(ks, tt)}, {d if ks else 0}")
        mf.append(f"v_mfma_f32_16x16x32_bf16 {csq}, {qfrag(ks)}, {ones}, {csq if ks else 0}")
        if ks + 4 < 16: rd += [It(x, after=5*ks) for x in tr(qfrag(ks+4), q_lds(ks+4))]
    xq = [f"ds_read_b64 {xres[4*H+2*e:4*H+2*e+2]}, {vxr[e]} offset:{H*4096}" for H in range(2) for e in range(2)]
    for n in range(2): xq += [f"ds_read_b64_tr_b16 {pf[n*4:n*4+2]}, {pa[n]}", f"ds_read_b64_tr_b16 {pf[n*4+2:n*4+4]}, {pa[n]} offset:512"]
    pq_ = [k.vm(f"buffer_store_dwordx4 {pf[n*4:n*4+4]}, {vl16}, {ws}, {sdst} offen offset:{n*1024} sc1", after=16) for n in range(2)]
    for s_, at in ((9, 20), (10, 44), (11, 68)):
        for x in tw1(s_): x.after = at; pq_.append(x)
    k.pack(mf, [rd, xq, pq_, WOD], False, reserve=lambda i: 1 if i % 5 == 4 else 0, vgap=4)
    k.stamp('pass2')
    for tt in range(4):
        for r in (0, 2):
            d = accq[tt*4+r:tt*4+r+2]
            a(f"v_pk_fma_f32 {d}, {qs[tt*2:tt*2+2]}, {csq[r:r+2]}, {d} op_sel_hi:[0,1,1]")
    for tt in range(4):
        for r in (0, 2):
            d = accq[tt*4+r:tt*4+r+2]
            a(f"v_pk_fma_f32 {d}, {d}, {qs[tt*2:tt*2+2]}, {sdel} op_sel:[0,1,0]")
    phi_tail(accq, 16)
    a(f"s_lshl_b32 {st0}, {srb1}, 16\ns_lshl_b32 {st1}, {shead1}, 10\ns_add_u32 {st0}, {st0}, {st1}\ns_add_u32 {st0}, {st0}, {WS_PQ}\ns_add_u32 {st1}, {st0}, 32768")
    for t32 in range(2):
        d = pkf[t32*4:t32*4+4]
        for s in range(2):
            for h in range(2):
                a(f"v_cvt_pk_bf16_f32 {d[2*s+h]}, {accq[(2*t32+s)*4+2*h]}, {accq[(2*t32+s)*4+2*h+1]}")
        for h in range(2): a(f"v_permlane16_swap_b32 {d[h]}, {d[2+h]}")
        tok['pq'] = a(f"buffer_store_dwordx4 {d}, {vl16}, {ws}, {(st0, st1)[t32]} offen sc1")
    k.stamp('pqst')
    a("s_barrier")
    UL = U(0) + U(1) + U(2) + U(3) + U(4) + U(5) + U(6) + U(7)
    def take(lst, nv):
        o = []
        while lst and nv:
            x = lst.pop(0); o.append(x)
            if x.kind == 'vmem': nv -= 1
        return o
    k.run(take(UL, NU_ARR // 2))
    vw1r = v(8, 2); vwr = v(12, 2); vcA = v(14); vc = v(15); vrw = v(16, 3); vrr = v(19); vh = v(20); vst = v(21); vone = v(22); vlz = v(23)
    vfA = v(10); vfl = v(11)
    skv = srd['wqkv'][0]; spq = srd['wqkv'][1]; shb = srd['x'][0]; sstb = srd['x'][1]; se6 = sdst
    a(f"""v_bfe_u32 {t0}, {lane}, 4, 1
v_bfe_u32 {t1}, {lane}, 3, 1
v_lshl_or_b32 {t1}, {t1}, 1, {t0}
v_xor_b32 {t1}, {sw}, {t1}
v_lshlrev_b32 {t1}, 5, {t1}
v_and_b32 {t2}, 3, {lane}
v_lshl_add_u32 {t1}, {t2}, 3, {t1}
v_bfe_u32 {t2}, {lane}, 2, 2
v_lshl_add_u32 {t1}, {t2}, 7, {t1}
v_lshrrev_b32 {t3}, 5, {lane}
v_lshl_add_u32 {t1}, {t3}, 9, {t1}
v_add_u32 {vwr[0]}, {sw14}, {t1}
v_xor_b32 {vwr[1]}, 64, {vwr[0]}
v_lshl_add_u32 {t1}, {t0}, 11, {t1}
v_add_u32 {vw1r[0]}, {WB}, {t1}
v_add_u32 {vw1r[1]}, {WB + 49152}, {t1}
v_mov_b32 {vone}, 1
v_lshlrev_b32 {vlz}, 24, {lane}
v_lshlrev_b32 {t1}, 9, {lane}
v_lshl_add_u32 {vcA}, {t3}, 30, {t1}
v_lshlrev_b32 {vh}, 14, {t0}
v_lshl_add_u32 {vh}, {t3}, 9, {vh}
v_and_b32 {t1}, 15, {lane}
v_lshl_add_u32 {vh}, {t1}, 4, {vh}
v_and_b32 {t1}, 31, {lane}
v_lshlrev_b32 {t1}, 3, {t1}
v_lshl_add_u32 {vst}, {t3}, 13, {t1}
v_lshrrev_b32 {t0}, 3, {lane}
v_lshlrev_b32 {t0}, 26, {t0}
v_lshl_add_u32 {vfA}, {lane}, 7, {t0}""")
    k.run(take(UL, NU_ARR - NU_ARR // 2))
    for r in (1, 2, 3):
        a(f"s_xor_b32 {st0}, {sw}, {r}\ns_lshl_b32 {st0}, {st0}, 13\ns_add_u32 {st0}, {st0}, {r*2048}\nv_add_u32 {vrw[r-1]}, {st0}, {vl16}")
    a(f"""s_lshl_b32 {st0}, {sw}, 13
v_add_u32 {vrr}, {st0}, {vl16}
s_add_u32 {skv}, {sw14}, {WS_KV}
s_lshl_b32 {spq}, {srb}, 16
s_add_u32 {spq}, {spq}, {st0}
s_add_u32 {spq}, {spq}, {WS_PQ}
s_lshl_b32 {shb}, {srb}, 16
s_lshr_b32 {st0}, {shead}, 1
s_lshl_b32 {st0}, {st0}, 10
s_add_u32 {shb}, {shb}, {st0}
s_and_b32 {st0}, {sw}, 1
s_lshl_b32 {st0}, {st0}, 8
s_add_u32 {shb}, {shb}, {st0}
s_add_u32 {shb}, {shb}, {WS_H}
s_lshl_b32 {sstb}, {srb}, 14
s_lshl_b32 {st0}, {shead}, 8
s_add_u32 {sstb}, {sstb}, {st0}
s_add_u32 {sstb}, {sstb}, {WS_ST}
s_mov_b32 {se6}, {f32(1e-6)}
s_and_b32 {st0}, {srb1}, 3
s_lshl_b32 {st0}, {st0}, 9
s_add_u32 {st0}, {st0}, {skvb}""")
    a.wait(tok['pq'])
    a(f"buffer_atomic_add {vone}, {vlz}, {ws}, {st0} offen offset:384")
    k.stamp('arrive')
    sw2 = swo; send = sc_x; shh = [skvb, shead1]; so2 = swb; srot3 = srb1; sgab = smA; shv = srd['x'][2]
    RB = 65536; SL = RB + 4096
    a(f"""s_mul_i32 {st0}, {srb}, {2*88*1024}
s_mul_i32 {st1}, {sw}, {22*1024}
s_add_u32 {st0}, {st0}, {st1}
s_add_u32 {shv}, {st0}, {WS_HH}
s_mul_i32 {st1}, {sj}, 3072
s_add_u32 {shh[0]}, {shv}, {st1}
s_add_u32 {shh[1]}, {shh[0]}, {sinv}
s_mov_b32 {sgab[0]}, {f32(GA)}
s_mov_b32 {sgab[1]}, {f32(GA)}
s_mul_i32 {sw2}, {shead}, {22*2048}
s_add_u32 {sw2}, {sw2}, {WS_W2 if not NOW2 else OOB}
""")
    WO = v(48, 64); KZ = v(112, 32); OF = v(144, 8); csa = v(40, 4)
    w1 = ag(0, 192)
    wor = []
    for hh in range(8):
        for t in range(2):
            d = WO[(hh*2+t)*4:(hh*2+t)*4+4]
            wor += [f"ds_read_b64_tr_b16 {d[0:2]}, {vwr[t]} offset:{hh*2048}", f"ds_read_b64_tr_b16 {d[2:4]}, {vwr[t]} offset:{hh*2048+1024}"]
    i = 0
    while UL:
        k.run(take(UL, 1)); k.run(wor[i:i+4]); i += 4
    k.run(wor[i:])
    def rd_w1(k0, k1):
        o = []
        for ks in range(k0, k1):
            for s in range(3):
                d = w1[(ks*3+s)*4:(ks*3+s)*4+4]; off = UPOS[ks & 7] - WB + s*4096
                b = vw1r[0] if off < 49152 else vw1r[1]; off %= 49152
                o += [f"ds_read_b64_tr_b16 {d[0:2]}, {b} offset:{off}", f"ds_read_b64_tr_b16 {d[2:4]}, {b} offset:{off + 1024}"]
        return o
    cload = f"buffer_load_dword {vc}, {vcA}, {ws}, {skv} offen offset:384 sc1"
    if NS1 == 2:
        a(cload)
        a.wait(tok['u', 3]); a("s_waitcnt lgkmcnt(0)\ns_barrier")
    cst = [v(44, 4), v(152, 4), v(156, 4)]; cs = v(224, 12)
    KC = 4 if NS1 == 2 else 8
    def csm(k0, k1):
        o = []
        for ks in range(k0, k1):
            for s in range(3):
                d = cst[s] if ks < KC else cs[s*4:s*4+4]
                o.append(f"v_mfma_f32_16x16x32_bf16 {d}, {w1[(ks*3+s)*4:(ks*3+s)*4+4]}, {csa}, {0 if ks == 0 else cst[s] if ks <= KC else d}")
        return o
    UB = U(8) + U(9) + U(10) + U(11); UC = U(12) + U(13) + U(14) + U(15); R47 = rd_w1(4, 8); R8 = rd_w1(8, 12); R12 = rd_w1(12, 16)
    if NS1 == 2: k.run(rd_w1(0, 4) + csm(0, 4))
    else:
        a.wait(tok['u', 1]); a("s_barrier"); k.run(rd_w1(0, 2))
        UU = UB + (UC if NS1 == 4 else [])
        for p in range(1, 2*NS1 - 3):
            if p < 4: a.wait(tok['u', 2*p + 1])
            a("s_waitcnt lgkmcnt(0)\ns_barrier")
            rr = rd_w1(2*p, 2*p + 2) if p < 4 else []; cc = csm(2*p - 2, 2*p) if p < 3 else []
            for i in range(6): k.run(take(UU, 1) + rr[2*i:2*i+2] + cc[i:i+1])
        if NS1 == 3:
            a.wait(tok['u', 7]); a("s_barrier"); k.run(rd_w1(6, 8))
        assert not UU
        UB = []; R47 = []
        if NS1 == 4: UC = []
        a(cload)
        k.run(csm(4, 8))
    k.stamp('w1a')
    k.check(f"v_cmp_eq_u32 vcc, 8, {vc}", -1, cload, st1)
    k.stamp('s1')
    PQ = ag(192, 64); ACC = v(160, 32); D = v(192, 32); KVR = v(224, 32)
    def ld(dst, sbase, off):
        o = []
        if off >= 4096: o = its(f"s_add_u32 {ssoff}, {sbase}, {off & ~4095}"); sbase = ssoff; off &= 4095
        return o + [k.vm(f"buffer_load_dwordx4 {dst}, {vl16}, {ws}, {sbase} offen offset:{off} sc1")]
    def kvr(hh): return KVR[(hh & 3)*8:(hh & 3)*8+8]
    def head_loads(hh): return ld(kvr(hh)[0:4], skv, hh*2048) + ld(kvr(hh)[4:8], skv, hh*2048 + 1024) + ld(PQ[hh*4:hh*4+4], spq, hh*1024)
    for hh in range(4): k.run(head_loads(hh))
    vxc = v(4, 2)
    a.wait(tok['u', 4*NS1 - 1])
    a(f"s_waitcnt lgkmcnt(0)\ns_barrier\nv_lshrrev_b32 {t2}, 5, {lane}\nv_lshlrev_b32 {t2}, 30, {t2}\nv_lshl_add_u32 {t2}, {lane}, 7, {t2}")
    a(f"buffer_load_dwordx2 {vxc}, {t2}, {ws}, {sflb} offen sc1")
    def store(text): return a("\n".join(l + " sc1" for l in text.split('\n')))
    ACCS = [ACC, KVR]
    def p2_units(side):
        def cvt_kv(hh): return [f"v_cvt_pk_bf16_f32 {KZ[hh*4+r]}, {kvr(hh)[2*r]}, {kvr(hh)[2*r+1]}" for r in range(4)]
        def om(n): return f"v_mfma_f32_32x32x16_bf16 {D[(n&1)*16:(n&1)*16+16]}, {KZ[(n&7)*4:(n&7)*4+4]}, {PQ[n*4:n*4+4]}, 0"
        def pm(n, t):
            d = ACCS[n >> 3][t*16:t*16+16]
            return f"v_mfma_f32_32x32x16_bf16 {d}, {WO[((n&7)*2+t)*4:((n&7)*2+t)*4+4]}, {OF[(n&1)*4:(n&1)*4+4]}, {d if n & 7 else 0}"
        k.run(cvt_kv(0)); a(om(0)); k.run(cvt_kv(1))
        for n in range(16):
            d = D[(n&1)*16:(n&1)*16+16]; o = OF[(n&1)*4:(n&1)*4+4]
            ex = list(side(n)); per = -(-len(ex) // 3)
            cv = cvt_kv(n+2) if n + 2 < 8 else []
            if n + 1 < 16: a(om(n+1))
            k.run(ex[:per])
            a(f"v_add_f32 {d[8]}, {se6}, {d[8]}\nv_rcp_f32 {d[8]}, {d[8]}")
            k.run(cv[:2])
            if n > 0: a(pm(n-1, 0))
            k.run(ex[per:2*per])
            for r in range(5): a(f"v_mul_f32 {d[r]}, {d[r]}, {d[8]}")
            if n > 0: a(pm(n-1, 1))
            k.run(ex[2*per:])
            for r in range(5, 8): a(f"v_mul_f32 {d[r]}, {d[r]}, {d[8]}")
            for r in range(4): a(f"v_cvt_pk_bf16_f32 {o[r]}, {d[2*r]}, {d[2*r+1]}")
            k.run(cv[2:])
            if n == 7: k.stamp('p2a')
        a(pm(15, 0)); a(pm(15, 1))
    def red_w(acc, base): return [f"ds_write_b128 {vrw[r-1]}, {acc[r*8+q*4:r*8+q*4+4]} offset:{base + q*1024}" for r in (1, 2, 3) for q in range(2)]
    def red_r(tm, base): return [f"ds_read_b128 {tm[(r-1)*8+q*4:(r-1)*8+q*4+4]}, {vrr} offset:{base + r*2048 + q*1024}" for r in (1, 2, 3) for q in range(2)]
    HBs = [v(32, 8), v(24, 8)]
    def flag(sync):
        k.nlab += 1; n = k.nlab
        a(f"s_cmp_lg_u32 {sw}, 3\ns_cbranch_scc1 L_nf{n}")
        a.hidden(f"""s_lshl_b32 {st0}, {sj}, 7
s_add_u32 {st0}, {st0}, {sflb}
s_cmp_eq_u32 {sxcc}, {0 if LFLAG else sxcc}
s_cbranch_scc1 L_ff{n}
buffer_store_dword {vone}, {vlz}, {ws}, {st0} offen offset:{sync*1024}
s_branch L_nf{n}
L_ff{n}:
buffer_store_dword {vone}, {vlz}, {ws}, {st0} offen offset:{sync*1024} sc1
L_nf{n}:""")
    def fload(sync): return f"buffer_load_dword {vfl}, {vfA}, {ws}, {sflb} offen offset:{sync*1024} sc1"
    def fcheck(sync): k.check(f"v_cmp_ne_u32 vcc, 0, {vfl}", 0xff, fload(sync), st1)
    pqB = [ld(PQ[(8+hh)*4:(8+hh)*4+4], spq, 32768 + hh*1024) for hh in range(8)]
    RA = R47 if NS1 == 2 else R8
    W2A = ag(192, 64); W2V = v(48, 112); vw2 = v(14, 2)
    def w2frag(n, t): i = n*2 + t; return W2V[i*4:i*4+4] if i < 28 else W2A[(i-28)*4:(i-28)*4+4]
    def w2list(ns):
        o = []
        for n in ns:
            if n % 2 == 0: o += its(f"s_add_u32 {so2}, {sw2}, {n*2048}")
            o += [k.vm(f"buffer_load_dwordx4 {w2frag(n, t)}, {vw2[t]}, {ws}, {so2} offen offset:{(n & 1)*2048} sc1") for t in range(2)]
        return o
    W2L = w2list(range(22))
    a(f"""s_and_b32 {st0}, {sw}, 1
s_lshl_b32 {st0}, {st0}, 8
s_lshr_b32 {st1}, {sw}, 1
s_lshl_b32 {st1}, {st1}, 10
s_add_u32 {st0}, {st0}, {st1}
v_xor_b32 {vw2[0]}, {st0}, {vl16}
v_xor_b32 {vw2[1]}, 1024, {vw2[0]}""")
    shs = srd['x'][3]; sst = su_ = S.alloc(); vsl = v(12)
    RWA = red_w(ACC, 0)
    def side(n):
        o = head_loads(n+4) if n < 4 else pqB[(n-4)*2] + pqB[(n-4)*2+1] if n < 8 else take(UC, 3)
        if n < 8: o += RA[3*n:3*n+3]
        elif NS1 == 4: o += R12[3*(n-8):3*(n-8)+3]
        if n >= 10: o.append(RWA[n-10])
        if n == 13: o += its(f"""s_lshl_b32 {shs}, {srb}, 16
s_add_u32 {st0}, {sw}, {srot}
s_and_b32 {st0}, {st0}, 3
s_lshl_b32 {st0}, {st0}, 12
s_add_u32 {shs}, {shs}, {st0}
s_add_u32 {shs}, {shs}, {WS_H}
s_lshl_b32 {sst}, {srb}, 14
s_add_u32 {sst}, {sst}, {sw12}
s_add_u32 {sst}, {sst}, {WS_ST}""")
        if n == 14: o.append(It(f"v_cmp_eq_u32 vcc, {sxcc}, {vxc[1]}\ns_nop 1\ns_cmp_eq_u32 vcc_lo, -1\ns_cselect_b32 {sxcc}, 1, 0\ns_add_u32 {st1}, {shb}, 32768"))
        return o
    assert NS1 >= 3
    p2_units(side)
    k.stamp('p2b')
    TA = D[0:24]; TB = WO[0:24]; XU = WO[24:40]; stt = WO[40:44]
    for r in range(8): a(f"v_lshlrev_b32 {XU[2*r]}, 16, {xres[r]}\nv_and_b32 {XU[2*r+1]}, 0xffff0000, {xres[r]}")
    k.run(red_w(KVR, 32768))
    for H in range(2):
        for e in range(0, 8, 2): a(f"v_pk_add_f32 {ACCS[H][e:e+2]}, {ACCS[H][e:e+2]}, {XU[8*H+e:8*H+e+2]}")
    a.wait(tok['u', 15])
    a("s_waitcnt lgkmcnt(0)\ns_barrier")
    k.run(red_r(TA, 0) + red_r(TB, 32768))
    for r in range(4): a(f"v_mov_b32 {stt[r]}, 0")
    for H, tm_ in ((0, TA), (1, TB)):
        own = ACCS[H]; h4 = OF[H*4:H*4+4]
        for r in range(3):
            for e in range(0, 8, 2): a(f"v_pk_add_f32 {own[e:e+2]}, {own[e:e+2]}, {tm_[r*8+e:r*8+e+2]}")
        for r in range(4): a(f"v_cvt_pk_bf16_f32 {h4[r]}, {own[2*r]}, {own[2*r+1]}")
        store(f"buffer_store_dwordx4 {h4}, {vh}, {ws}, {(shb, st1)[H]} offen")
    for r in range(4):
        for H in range(2): a(f"v_dot2_f32_bf16 {stt[2*H]}, {OF[H*4+r]}, {sones}, {stt[2*H]}\nv_dot2_f32_bf16 {stt[2*H+1]}, {OF[H*4+r]}, {OF[H*4+r]}, {stt[2*H+1]}")
    for r in range(2): a(f"v_lshlrev_b32 {HBs[0][2*r]}, 16, {OF[r]}\nv_and_b32 {HBs[0][2*r+1]}, 0xffff0000, {OF[r]}")
    a(f"v_permlane32_swap_b32 {stt[0]}, {stt[2]}\nv_permlane32_swap_b32 {stt[1]}, {stt[3]}\nv_pk_add_f32 {stt[0:2]}, {stt[0:2]}, {stt[2:4]}")
    tok['h', 0] = store(f"buffer_store_dwordx2 {stt[0:2]}, {vst}, {ws}, {sstb} offen")
    k.stamp('pubb')
    if NS1 < 4: k.run(R12)
    b1r = v(160, 6); b2 = v(166, 4); vb = v(170, 2)
    vsw = v(13); vrn = v(3); vgb = v(20, 2); tm = v(212, 12); b1f = v(236, 12)
    for r in range(2, 8): a(f"v_lshlrev_b32 {HBs[r >> 2][2*(r&3)]}, 16, {OF[r]}\nv_and_b32 {HBs[r >> 2][2*(r&3)+1]}, 0xffff0000, {OF[r]}")
    a(f"v_lshrrev_b32 {vb[0]}, 4, {lane}\nv_lshlrev_b32 {vb[0]}, 3, {vb[0]}\nv_lshrrev_b32 {vb[1]}, 5, {lane}\nv_lshlrev_b32 {vb[1]}, 3, {vb[1]}\ns_lshl_b32 {st0}, {sc0}, 5\ns_lshl_b32 {st1}, {shead}, 5")
    for i in range(3): a(f"buffer_load_dwordx2 {b1r[2*i:2*i+2]}, {vb[0]}, {srd['b1']}, {st0} offen offset:{i*128}")
    for e in range(2): a(f"buffer_load_dwordx2 {b2[2*e:2*e+2]}, {vb[1]}, {srd['b2']}, {st1} offen offset:{e*16}")
    setup = its(f"""v_and_b32 {vsw}, 56, {lane}
v_and_b32 {vsl}, 7, {lane}
v_mul_u32_u24 {vsl}, 1088, {vsl}
v_add_u32 {vsl}, {vsl}, {vsw}
s_lshl_b32 {st0}, {sw}, 6
s_add_u32 {st1}, {st0}, {SL}
v_add_u32 {vsl}, {st1}, {vsl}
s_add_u32 {st0}, {st0}, {RB}
v_add_u32 {vsw}, {st0}, {vsw}
v_mov_b32 {vgb[0]}, {f32(GB)}
v_mov_b32 {vgb[1]}, {f32(GB)}
v_and_b32 {vrn}, 15, {lane}
v_lshlrev_b32 {vrn}, 3, {vrn}
v_add_u32 {vrn}, {RB}, {vrn}""")
    k.pack(csm(KC, 16), [take(W2L, W2N[0]), setup], False, vgap=4)
    a.wait(tok['h', 0]); a("s_barrier"); flag(0)
    k.stamp('ack')
    for r in range(4): a(f"v_lshlrev_b32 {tm[2*r]}, 16, {b2[r]}\nv_and_b32 {tm[2*r+1]}, 0xffff0000, {b2[r]}")
    for H in range(2):
        for e in range(0, 8, 2): a(f"v_pk_add_f32 {HBs[H][e:e+2]}, {HBs[H][e:e+2]}, {tm[e:e+2]}")
    for i in range(3):
        for h in range(2): a(f"v_lshlrev_b32 {b1f[i*4+2*h]}, 16, {b1r[2*i+h]}\nv_and_b32 {b1f[i*4+2*h+1]}, 0xffff0000, {b1r[2*i+h]}")
    a(fload(0)); fcheck(0)
    k.stamp('s2')
    def dma_h(tt):
        return (its(f"s_add_u32 m0, {sw12}, {tt*16384}\ns_add_u32 {ssoff}, {shs}, {tt*16384}")
                + [k.vm(f"buffer_load_dwordx4 {vl16}, {ws}, {ssoff} offen offset:{i*1024} sc1 lds", ('ht', tt)) for i in range(4)])
    svs = [v(200, 8), v(152, 8)]
    def stat_reads(H): return [f"ds_read_b64 {svs[H][2*q:2*q+2]}, {vsl} offset:{H*8704 + q*256}" for q in range(4)]
    SD = its(f"s_mul_i32 {st0}, {sw}, 4352")
    for q in range(4): SD += its(f"s_add_u32 m0, {st0}, {SL + q*64}") + [k.vm(f"buffer_load_dwordx4 {vl16}, {ws}, {sst} offen offset:{q*1024} sc1 lds", ('st', 0))]
    k.run(dma_h(0) + SD + dma_h(1))
    HL = dma_h(2) + dma_h(3)
    k.run(take(HL, NHL))
    acc3 = v(160, 24); hf = v(184, 16); pk = v(200, 12); rn = v(248, 8)
    def stat_math():
        L = []
        for H in range(2):
            s = svs[H]
            L.append([f"v_add_f32 {s[d_+e]}, {s[d_+e]}, {s[o_+e]}" for d_, o_ in ((0, 2), (4, 6), (0, 4)) for e in range(2)]
                     + [x for d in (DPP_X1, DPP_X2, DPP_HM) for x in (f"v_add_f32 {s[0]}, {s[0]}, {s[0]} {d}", f"v_add_f32 {s[1]}, {s[1]}, {s[1]} {d}")]
                     + f"""v_mul_f32 {s[0]}, {f32(1/512)}, {s[0]}
v_mul_f32 {s[1]}, {f32(1/512)}, {s[1]}
v_fma_f32 {s[1]}, -{s[0]}, {s[0]}, {s[1]}
v_max_f32 {s[1]}, 0, {s[1]}
v_add_f32 {s[2]}, {seps}, {s[1]}
v_rsq_f32 {s[2]}, {s[2]}
v_mul_f32 {s[3]}, {s[2]}, {s[2]}
v_fma_f32 {s[3]}, {s[3]}, {s[1]}, {seps}
v_rsq_f32 {s[3]}, {s[3]}
v_mul_f32 {s[2]}, {s[2]}, {s[3]}
v_mul_f32 {s[3]}, -{s[2]}, {s[0]}
ds_write_b64 {vsw}, {s[2:4]} offset:{H*256}""".split('\n'))
        return [z for xy in zip(*L) for z in xy]
    def epi1(tt):
        ac = acc3[(tt&1)*12:(tt&1)*12+12]; p = rn[tt*2:tt*2+2]
        for e in range(0, 12, 2): a(f"v_pk_fma_f32 {tm[e:e+2]}, {p}, {cs[e:e+2]}, {b1f[e:e+2]} op_sel:[1,0,0]")
        for e in range(0, 12, 2): a(f"v_pk_fma_f32 {ac[e:e+2]}, {p}, {ac[e:e+2]}, {tm[e:e+2]} op_sel_hi:[0,1,1]")
        for e in range(0, 12, 2): a(f"v_pk_mul_f32 {tm[e:e+2]}, {ac[e:e+2]}, {ac[e:e+2]}")
        for e in range(0, 12, 2): a(f"v_pk_fma_f32 {tm[e:e+2]}, {tm[e:e+2]}, {sgab}, {vgb}")
        for e in range(0, 12, 2): a(f"v_pk_mul_f32 {tm[e:e+2]}, {tm[e:e+2]}, {ac[e:e+2]}")
    def epi2(tt, packed=False):
        add = [f"v_pk_add_f32 {tm[e:e+2]}, {tm[e:e+2]}, 1.0 op_sel_hi:[1,0]" for e in range(0, 12, 2)] if packed else [f"v_add_f32 {tm[e]}, 1.0, {tm[e]}" for e in range(12)]
        return [f"v_exp_f32 {tm[e]}, {tm[e]}" for e in range(12)] + add + [f"v_rcp_f32 {tm[e]}, {tm[e]}" for e in range(12)]
    def epi3(tt):
        ac = acc3[(tt&1)*12:(tt&1)*12+12]
        for e in range(0, 12, 2): a(f"v_pk_mul_f32 {ac[e:e+2]}, {ac[e:e+2]}, {tm[e:e+2]}")
        for i in range(3):
            for h in range(2): a(f"v_cvt_pk_bf16_f32 {pk[i*4+(tt&1)*2+h]}, {ac[i*4+2*h]}, {ac[i*4+2*h+1]}")
        if tt & 1:
            for i in range(3):
                for h in range(2): a(f"v_permlane16_swap_b32 {pk[i*4+h]}, {pk[i*4+2+h]}")
            if tt == 3: a(f"s_add_u32 {shh[0]}, {shh[0]}, {88*1024}\ns_add_u32 {shh[1]}, {shh[1]}, {88*1024}")
            tok['hh', tt >> 1] = store("\n".join(f"buffer_store_dwordx4 {pk[i*4:i*4+4]}, {vl16}, {ws}, {shh[min(i, 1)]} offen offset:{i*1024}" for i in range(3)))
    def rd(n): return f"ds_read_b128 {hf[(n&3)*4:(n&3)*4+4]}, {vl16} offset:{n*1024}"
    def rnrd(tt): return f"ds_read_b64 {rn[tt*2:tt*2+2]}, {vrn} offset:{tt*128}"
    a.wait(tok['ht', 0]); a("s_barrier")
    for n in range(3): a(rd(n))
    k.stamp('t0')
    def bar(*keys, more=None):
        def f():
            k.stamp('x%s%s' % keys[0])
            for key in keys: a.wait(tok[key])
            k.stamp('y%s%s' % keys[0])
            a("s_barrier")
            k.stamp('z%s%s' % keys[0])
            if more: more()
        return It(f, cost=2, kind='salu')
    for tt in range(4):
        mf = []; rq = []
        for ks in range(16):
            n = tt*16 + ks
            for i in range(3):
                d = acc3[(tt&1)*12+i*4:(tt&1)*12+i*4+4]
                mf.append(f"v_mfma_f32_16x16x32_bf16 {d}, {w1[(ks*3+i)*4:(ks*3+i)*4+4]}, {hf[(n&3)*4:(n&3)*4+4]}, {d if ks else 0}")
            if tt == 0 and ks == SK:
                x = bar(('st', 0)); x.after = 3*ks - 2; rq.append(x)
                rq += [It(y, after=3*ks - 1) for y in stat_reads(0) + stat_reads(1)]
            if ks == 13 and tt < 3:
                x = bar(('ht', tt+1)); x.after = 3*ks - 2; rq.append(x)
            if n + 3 < 64: rq.append(It(rd(n + 3) + "\ns_waitcnt lgkmcnt(2)", cost=3 if tt in (1, 3) else 2, after=3*ks, by=3*ks + 6))
        vq = take(W2L, W2N[tt+1])
        if tt == 0: vq = HL + vq
        fq = []
        if tt == 0:
            fq = [It(x, after=3*SK + 4) for x in stat_math()]
            fq += [It("s_waitcnt lgkmcnt(0)\ns_barrier", cost=3)] + [rnrd(q) for q in range(4)]
        if tt == 2:
            for x in vq: x.after = G2
        if tt == 3: vq = take(vq, 4) + [k.vm(fload(2), after=F5)] + vq
        k.pack(mf, [rq, vq, fq, epi2(tt-1) if tt in (1, 3) else []], False, vgap=VG3)
        k.stamp('m%d' % tt)
        if tt == 3: break
        if tt == 1:
            epi3(0); k.run(take(W2L, 1)); epi1(1); k.run(take(W2L, 1)); k.run(epi2(1, True)); epi3(1)

        else:
            epi1(tt)
        if tt == 2: k.emit(bar(('hh', 0), more=lambda: flag(2)))
        k.stamp('e%d' % tt)
    HH = ag(0, 176); acc4 = v(160, 64); tm4 = v(224, 24); ob = v(248, 4)
    vo = v(12); sob = shb; so4 = srd['x'][3]; send4 = srd['x'][1]
    def ld_hh(H):
        o = []
        for n in range(22):
            if n % 4 == 0: o += its(f"s_add_u32 {so4}, {shv}, {H*88*1024 + n*1024}")
            o.append(k.vm(f"buffer_load_dwordx4 {HH[(H*22+n)*4:(H*22+n)*4+4]}, {vl16}, {ws}, {so4} offen offset:{(n % 4)*1024} sc1"))
        return o
    def p4_mf(H):
        o = []
        for n in range(22):
            for t in range(2):
                d = acc4[H*32+t*16:H*32+t*16+16]
                o.append(f"v_mfma_f32_32x32x16_bf16 {d}, {w2frag(n, t)}, {HH[(H*22+n)*4:(H*22+n)*4+4]}, {d if n else 0}")
        return o
    def p4_epi(H, packed):
        own = acc4[H*32:H*32+8]; o = []
        if packed:
            o += [f"v_pk_add_f32 {own[e:e+2]}, {own[e:e+2]}, {HBs[H][e:e+2]}" for e in range(0, 8, 2)]
            o += [f"v_pk_add_f32 {own[e:e+2]}, {own[e:e+2]}, {tm4[r*8+e:r*8+e+2]}" for r in range(3) for e in range(0, 8, 2)]
        else:
            o += [f"v_add_f32 {own[e]}, {own[e]}, {HBs[H][e]}" for e in range(8)]
            o += [f"v_add_f32 {own[e]}, {own[e]}, {tm4[r*8+e]}" for r in range(3) for e in range(8)]
        o += [f"v_cvt_pk_bf16_f32 {ob[r]}, {own[2*r]}, {own[2*r+1]}" for r in range(4)]
        o += [f"v_permlane32_swap_b32 {ob[h]}, {ob[2+h]}" for h in range(2)]
        if H: o.append(f"s_add_u32 {sob}, {sob}, 32768")
        o.append(f"buffer_store_dwordx4 {ob}, {vo}, {srd['out']}, {sob} offen {OUTP}")
        return o
    LA = ld_hh(0); LB = ld_hh(1)
    class Rec:
        def __init__(s): s.l = []
        def __call__(s, t): s.l += [x for x in t.split('\n') if x.strip()]
    real = a; a = Rec(); epi3(2); epi1(3); tail = a.l + epi2(3, True); a = real
    fcheck(2)
    step = len(tail) // NLA
    for i, x in enumerate(tail):
        if i % step == 0 and i // step < NLA: k.run(take(LA, 1))
        a(x)
    epi3(3)
    k.stamp('p3e')
    a(f"""v_and_b32 {t0}, 31, {lane}
v_lshlrev_b32 {vo}, 10, {t0}
v_lshrrev_b32 {t0}, 5, {lane}
v_lshl_add_u32 {vo}, {t0}, 4, {vo}
s_lshl_b32 {sob}, {srb}, 16
s_lshl_b32 {st0}, {shead}, 5
s_add_u32 {sob}, {sob}, {st0}""")
    nleft = len([x for x in W2L if x.kind == 'vmem']); assert nleft <= 8, nleft; print('W2 left', nleft, file=sys.stderr)
    mfa = p4_mf(0)
    k.run(mfa[:F4])
    k.run(LA + W2L)
    k.emit(bar(('hh', 1), more=lambda: flag(3)))
    k.pack(mfa[F4:], [[k.vm(fload(3), after=FP)]], True)
    fcheck(3)
    k.stamp('p4a')
    for x in red_w(acc4[0:32], 0):
        a(x); k.run(take(LB, 1))
    a("s_waitcnt lgkmcnt(0)\ns_barrier")
    k.pack(p4_mf(1), [LB, red_r(tm4, 0), [It(x, after=8) for x in p4_epi(0, False)]], True, reserve=lambda i: 1, vgap=2)
    k.stamp('p4b')
    k.run(red_w(acc4[32:64], 32768))
    a("s_waitcnt lgkmcnt(0)\ns_barrier")
    k.run(red_r(tm4, 32768))
    k.run(p4_epi(1, True))
    if STAMPS:
        a("s_waitcnt vmcnt(0)"); STAMPS.append('end'); k.stamp('end')
        t = f"s_memrealtime {rt[2:4]}\ns_waitcnt lgkmcnt(0)\nv_mov_b32 {t0}, {sw}\nv_lshlrev_b32 {t0}, 28, {t0}\ns_lshl_b32 {st0}, s2, 6\ns_add_u32 {st0}, {st0}, {WS_DBG}\n"
        for i in range(1, len(k.stamped)):
            t += f"s_sub_u32 {st1}, {k.str_[2*i]}, {k.str_[0]}\nv_mov_b32 {t1}, {st1}\nbuffer_store_dword {t1}, {t0}, {ws}, {st0} offen offset:{4*i}\n"
        t += f"v_mov_b32 {t1}, {rt[0]}\nbuffer_store_dword {t1}, {t0}, {ws}, {st0} offen offset:56\n"
        t += f"v_mov_b32 {t1}, {rt[2]}\nbuffer_store_dword {t1}, {t0}, {ws}, {st0} offen offset:60\n"
        a.hidden(t)
        print('stamps:', k.stamped[1:], file=sys.stderr)
    a("L_end:\ns_endpgm")
    return a.finish(), S.peak

def assemble():
    hdr = open('cdna_kernels/' + NAME + '.s.ref').read().split('; Override')[0]
    body, sp = kernel()
    print('sgpr', sp, 'lines', body.count('\n'), 'nops', body.count('s_nop'), file=sys.stderr)
    n = NAME + '_kernel'
    return (hdr + "; @launch grid=(256,1,1) block=(256,1,1) lds=163840\n" + '.amdgcn_target "amdgcn-amd-amdhsa--gfx950"\n.text\n'
            + f".globl {n}\n.p2align 8\n.type {n},@function\n{n}:\n{body}" + '.section .rodata,"a"\n.p2align 6\n' + descriptor(n, 512, 256))

if __name__ == '__main__':
    for x in sys.argv[3:]: exec(x)
    if len(sys.argv) > 2 and sys.argv[2] != '-': STAMPS = sys.argv[2].split(',')
    open(sys.argv[1], 'w').write(assemble())
```

```python
from asmlib import *
import struct, sys
def f32(x): return '0x%08x' % struct.unpack('<I', struct.pack('<f', x))[0]
NAME = 'sequential_preLN__linear_attn_block__mixer_channel_mlp__prompt'
WS_PQ = 0
WS_W2 = WS_PQ + (2 << 20)
WS_KV = WS_W2 + 8 * 88 * 2048
WS_H  = WS_KV + 65536
WS_ST = WS_H + (2 << 20)
WS_HH = WS_ST + 32 * 16384
WS_FL = WS_HH + 32 * 2 * 88 * 1024
WS_END = WS_FL + 32 * 4096
WS_DBG = WS_END
OOB = 0x7ff00000
LOG2E = 1.4426950408889634; LN2 = 0.6931471805599453
GA = -2 * 0.7978845608028654 * 0.044715 * LOG2E
GB = -2 * 0.7978845608028654 * LOG2E
KA = dict(x=0, wqkv=8, wo=16, w1=32, b1=40, w2=48, b2=56, out=64, dbg=72, ws=80)
SZ = dict(x=2048*512*2, wqkv=512*1536*2, wo=512*512*2, w1=512*1376*2, b1=1376*2, w2=1376*512*2, b2=512*2,
          out=2048*512*2, dbg=256, ws=WS_END + 16384)
DPP_X1 = 'quad_perm:[1,0,3,2] row_mask:0xf bank_mask:0xf'
DPP_X2 = 'quad_perm:[2,3,0,1] row_mask:0xf bank_mask:0xf'
DPP_HM = 'row_half_mirror row_mask:0xf bank_mask:0xf'
SPIN = 0x40000
STAMPS = None
D1 = 2
D2 = 1
AH = 10
VG1 = 4
FA = 6
F3 = 40
F4 = 20; FP = 12
EARLY = 1
UBA = 1
PACE = 1
RTS = 0
DX = 1; RT = 6; QL = 1; QD = 10
NHL = 4; SK = 5; FAKEOUT = 0
HA = 1; FH = 12
W2P = 8
G2 = 26; F5 = 26; NLA = 16; OUTP = ''
FB1 = 48
NOW2 = 0; NOW1 = 0
red_w_last = None
NU_ARR = 0
PRE = 3
NS1 = 3
W2N = (8, 7, 11, 6, 10)
W2E = 2
VG3 = 4
HW = 7
T1 = ()
T2 = 0
LFLAG = 1

def v(b, n=1): return R('v', b, n)
def ag(b, n=1): return R('a', b, n)

class It:
    def __init__(self, x, cost=None, kind=None, after=0, by=None):
        self.x = x; self.after = after; self.by = by
        self.dw = 2 if isinstance(x, str) and 'b128' in x.split()[0] else 1
        if kind is None:
            mn = x.split()[0]
            kind = ('trans' if mn.startswith(TRANS) else 'valu' if mn.startswith('v_') else 'ds' if mn.startswith('ds_')
                    else 'vmem' if mn.startswith(('buffer', 'global')) else 'salu')
        self.kind = kind
        self.cost = cost if cost is not None else {'trans': 2, 'valu': 1, 'ds': 1, 'vmem': 3, 'salu': 1}.get(kind, 1)
def its(text, after=0): return [It(l.strip(), after=after) for l in text.split('\n') if l.strip()]

class K:
    def __init__(self):
        self.a = Asm(); self.S = Regs('s', 4, 102); self.nlab = 0
        self.stamped = []; self.tok = {}
    def emit(self, x):
        if isinstance(x, It): x = x.x
        if callable(x): return x()
        return self.a(x)
    def run(self, items):
        for x in items: self.emit(x)
    def vm(self, text, key=None, after=0):
        def f():
            t = self.a(text)
            if key is not None: self.tok[key] = t
        return It(f, kind='vmem', after=after)
    def pack(self, mf, queues, big, reserve=None, vgap=0):
        qs = [[x if isinstance(x, It) else It(x) for x in q] for q in queues]
        cap, vcap, dcap = (7, 6, 4) if big else (3, 2, 2)
        lastv = -99
        for i, m in enumerate(mf):
            for q in qs:
                late = [n for n, x in enumerate(q) if x.by is not None and x.by <= i]
                if late:
                    assert all(x.after < i for x in q[:late[-1] + 1])
                    self.run(q[:late[-1] + 1]); del q[:late[-1] + 1]
            self.emit(m)
            s = cap - (reserve(i) if reserve else 0); vs = vcap; d = dcap
            for q in qs:
                while q:
                    x = q[0]
                    if x.after > i or x.cost > s: break
                    if x.kind in ('valu', 'trans') and x.cost > vs: break
                    if x.kind == 'ds' and x.dw > d: break
                    if x.kind == 'vmem' and i - lastv < vgap: break
                    q.pop(0); self.emit(x); s -= x.cost
                    if x.kind in ('valu', 'trans'): vs -= x.cost
                    if x.kind == 'trans' and not big: s = 0
                    if x.kind == 'ds': d -= x.dw
                    if x.kind == 'vmem': lastv = i
        left = sum(len(q) for q in qs)
        for q in qs: self.run(q)
        return left
    def stamp(self, name):
        if STAMPS and name in STAMPS:
            n = len(self.stamped); self.stamped.append(name)
            self.a.hidden(f"{'s_memrealtime' if RTS else 's_memtime'} {self.str_[2*n:2*n+2]}")
    def check(self, cmp_, mask, reload, st1):
        a = self.a; self.nlab += 1; n = self.nlab
        a(cmp_)
        a(f"s_cmp_eq_u32 vcc_lo, {mask}\ns_cbranch_scc1 L_ok{n}")
        a.hidden(f"""s_mov_b32 {st1}, 0
L_spin{n}:
{reload}
s_add_u32 {st1}, {st1}, 1
s_waitcnt vmcnt(0)
{cmp_}
s_cmp_ge_u32 {st1}, {SPIN}
s_cbranch_scc1 L_ok{n}
s_nop 1
s_cmp_eq_u32 vcc_lo, {mask}
s_cbranch_scc0 L_spin{n}
L_ok{n}:""")

def kernel():
    k = K(); a = k.a; S = k.S; tok = k.tok
    a("s_cmp_ge_u32 s2, 256\ns_cbranch_scc1 L_end")
    if STAMPS:
        k.str_ = S.alloc(2*len(STAMPS) + 4, 4); rt = S.alloc(4, 4)
        a.hidden(f"s_memrealtime {rt[0:2]}")
        STAMPS.insert(0, 'start')
    k.stamp('start')
    srd = {}
    for n in ['x', 'wqkv', 'ws', 'dbg', 'wo', 'w1', 'w2', 'b1', 'b2', 'out']: srd[n] = S.alloc(4)
    for n in ['x', 'wqkv']: a(f"s_load_dwordx2 {srd[n][0:2]}, s[0:1], {KA[n]}")
    for n in ['x', 'wqkv']: a(f"s_mov_b32 {srd[n][2]}, {SZ[n]}\ns_mov_b32 {srd[n][3]}, 0x00020000")
    ws = srd['ws']
    st0, st1, ssoff, sw, sj, srb, shead, sj1, srb1, shead1 = [S.alloc() for _ in range(10)]
    sxb, swb, sw10, sw11, sw12, srot, sc_x, sc_w = [S.alloc() for _ in range(8)]
    lane, vl16, t0, t1, t2, t3 = v(1), v(2), v(4), v(5), v(6), v(7)
    vxd = v(8, 2); vwd = v(10, 2)
    a(f"""v_and_b32 {lane}, 63, v0
v_lshrrev_b32 {t0}, 6, v0
v_readfirstlane_b32 {sw}, {t0}
s_and_b32 {sj1}, s2, 1
s_lshl_b32 {sj1}, {sj1}, 2
s_bfe_u32 {st0}, s2, 0x20003
s_add_u32 {sj1}, {sj1}, {st0}
s_bfe_u32 {srb1}, s2, 0x20001
s_lshl_b32 {srb1}, {srb1}, 3
s_lshr_b32 {st0}, s2, 5
s_add_u32 {srb1}, {srb1}, {st0}
v_lshrrev_b32 {t0}, 3, {lane}
v_and_b32 {t1}, 7, {lane}
v_xor_b32 {t2}, {t0}, {t1}
v_lshlrev_b32 {t2}, 4, {t2}
v_lshl_add_u32 {vxd[0]}, {t0}, 10, {t2}
v_add_u32 {vxd[1]}, 7168, {vxd[0]}
v_bfe_u32 {t2}, {lane}, 4, 1
s_and_b32 {st0}, {sw}, 1
s_lshl_b32 {st0}, {st0}, 1
v_or_b32 {t2}, {st0}, {t2}
v_lshrrev_b32 {t3}, 1, {t1}
v_xor_b32 {t2}, {t2}, {t3}
v_lshlrev_b32 {t2}, 5, {t2}
v_and_b32 {t3}, 1, {lane}
v_lshl_add_u32 {t2}, {t3}, 4, {t2}
v_mul_u32_u24 {vwd[0]}, 3072, {t0}
v_add_u32 {vwd[0]}, {vwd[0]}, {t2}
v_add_u32 {vwd[1]}, {98304 - 2048}, {vwd[0]}
s_lshl_b32 {sxb}, {srb1}, 16
s_lshl_b32 {st0}, {sw}, 14
s_add_u32 {sxb}, {sxb}, {st0}
s_mul_i32 {swb}, {sw}, {8*3072}
s_lshl_b32 {st0}, {sj1}, 7
s_add_u32 {swb}, {swb}, {st0}
s_lshl_b32 {sw10}, {sw}, 10
s_lshl_b32 {sw11}, {sw}, 11
s_lshl_b32 {sw12}, {sw}, 12
s_add_u32 {srot}, {srb1}, {sj1}
s_and_b32 {srot}, {srot}, {D1 - 1}
s_mul_i32 {srot}, {srot}, {8 // D1}""")
    if DX == 1: a(f"s_bfe_u32 {st0}, s2, 0x20001\ns_add_u32 {srot}, {srot}, {st0}\ns_and_b32 {st0}, s2, 1\ns_lshl_b32 {st0}, {st0}, 1\ns_add_u32 {srot}, {srot}, {st0}")
    if DX == 2: a(f"s_bfe_u32 {st0}, s2, 0x10001\ns_add_u32 {srot}, {srot}, {st0}")
    if DX == 3: a(f"s_bfe_u32 {st0}, s2, 0x20001\ns_lshl_b32 {st0}, {st0}, 1\ns_add_u32 {srot}, {srot}, {st0}\ns_and_b32 {st0}, s2, 1\ns_add_u32 {srot}, {srot}, {st0}")
    WB = 65536; PB = WB + 5 * 16384; XR = PB + 8192
    def X(c):
        return (its(f"s_add_u32 {sc_x}, {srot}, {c}\ns_and_b32 {sc_x}, {sc_x}, 7\ns_lshl_b32 {sc_x}, {sc_x}, 7\ns_add_u32 {sc_x}, {sc_x}, {sxb}\ns_add_u32 m0, {sw11}, {c*8192}")
                + [k.vm(f"buffer_load_dwordx4 {vxd[o]}, {srd['x']}, {sc_x} offen offset:{o*1024} lds", ('x', c)) for o in range(2)])
    def wrot(c, add): return f"s_add_u32 {sc_w}, {srot}, {c}\ns_and_b32 {sc_w}, {sc_w}, 7\ns_mul_i32 {sc_w}, {sc_w}, {64*3072}\ns_add_u32 {sc_w}, {sc_w}, {swb}\n" + (f"s_add_u32 {sc_w}, {sc_w}, {add}\n" if add else "")
    def W(c):
        return (its(wrot(c, 1024) + f"s_add_u32 m0, {sw12}, {WB + (c % 5)*16384}")
                + [k.vm(f"buffer_load_dwordx4 {vwd[i >> 1]}, {srd['wqkv']}, {sc_w} offen offset:{i*1024} lds", ('w', c)) for i in range(4)])
    QSLOT = [3, 4, 0, 1]; QPOS = [0, 2048, 1024, 3072]
    def Q(n):
        o = []
        for h in range(2):
            o += its(wrot(2*n + h, 0) + f"s_add_u32 m0, {sw12}, {WB + QSLOT[n]*16384 + h*1024}")
            o += [k.vm(f"buffer_load_dwordx4 {vwd[i]}, {srd['wqkv']}, {sc_w} offen offset:{i*2048} lds", ('q', n)) for i in range(2)]
        return o
    def kv_lds(ks, p): return ((ks // 2) % 5) * 16384 + (ks & 1) * 2048 + p * 1024
    def q_lds(ks): return QSLOT[ks // 4] * 16384 + QPOS[ks & 3]
    a("s_waitcnt lgkmcnt(0)"); k.stamp('karg')
    k.run(X(0) + W(0))
    for n in srd:
        if n not in ('x', 'wqkv'): a(f"s_load_dwordx2 {srd[n][0:2]}, s[0:1], {KA[n]}")
    k.run(X(1) + W(1))
    for n in srd:
        if n not in ('x', 'wqkv'): a(f"s_mov_b32 {srd[n][2]}, {SZ[n]}\ns_mov_b32 {srd[n][3]}, 0x00020000")
    skvb, sflb, spsrc, sxr, sdst, sones, seps = [S.alloc() for _ in range(7)]
    vz = v(44, 4); ones = v(40, 4); sxcc = S.alloc()
    a(f"s_getreg_b32 {sxcc}, hwreg(HW_REG_XCC_ID)\ns_and_b32 {sxcc}, {sxcc}, 15\ns_add_u32 {sxcc}, {sxcc}, 1")
    a(f"""s_bfe_u32 {sj}, s2, 0x30003
s_and_b32 {srb}, s2, 7
s_lshl_b32 {srb}, {srb}, 2
s_lshr_b32 {st0}, s2, 6
s_add_u32 {srb}, {srb}, {st0}
s_lshl_b32 {shead}, {sj}, 2
s_add_u32 {shead}, {shead}, {sw}
s_lshl_b32 {shead1}, {sj1}, 2
s_add_u32 {shead1}, {shead1}, {sw}
s_lshl_b32 {skvb}, {shead1}, 11
s_add_u32 {skvb}, {skvb}, {WS_KV}
s_lshl_b32 {sflb}, {srb}, 12
s_add_u32 {sflb}, {sflb}, {WS_FL}
v_lshlrev_b32 {vl16}, 4, {lane}""")
    for r in range(4): a(f"v_mov_b32 {vz[r]}, 0")
    a("s_waitcnt lgkmcnt(0)")
    a(f"s_cmp_ge_u32 s2, 8\ns_cbranch_scc1 L_nozero")
    a.hidden(f"""s_lshl_b32 {st0}, s2, 2
s_add_u32 {st0}, {st0}, {sw}
s_lshl_b32 {st0}, {st0}, 11
s_add_u32 {st0}, {st0}, {WS_KV}
buffer_store_dwordx4 {vz}, {vl16}, {ws}, {st0} offen sc1
buffer_store_dwordx4 {vz}, {vl16}, {ws}, {st0} offen offset:1024 sc1
L_nozero:""")
    a(f"s_cmp_lg_u32 {sw}, 1\ns_cbranch_scc1 L_nofl")
    a.hidden(f"""s_lshl_b32 {st0}, {sj}, 7
s_add_u32 {st0}, {st0}, {sflb}
v_lshrrev_b32 {t0}, 2, {lane}
v_lshlrev_b32 {t0}, 26, {t0}
v_lshl_add_u32 {t0}, {lane}, 10, {t0}
v_mov_b32 {vz[1]}, {sxcc}
buffer_store_dwordx2 {vz[0:2]}, {t0}, {ws}, {st0} offen sc1
L_nofl:""")
    k.stamp('issued')
    vxa = v(12, 2); vsa = v(14, 2); vwa = v(16, 2); vxr = v(18, 2); vroot = v(20); vrootA = v(21); vp = v(22, 2); vw1d = v(3)
    pa = v(32, 2); va = v(34, 6)
    SB = 0
    KS = 8192
    a(f"""v_lshrrev_b32 {t0}, 4, {lane}
v_and_b32 {t1}, 7, {lane}
v_xor_b32 {t2}, {t0}, {t1}
v_lshlrev_b32 {t2}, 4, {t2}
v_lshl_add_u32 {t2}, {t1}, 7, {t2}
v_bfe_u32 {t3}, {lane}, 3, 1
v_lshl_add_u32 {vxa[0]}, {t3}, 10, {t2}
v_xor_b32 {vxa[1]}, 64, {vxa[0]}
v_add_u32 {vsa[0]}, {sw11}, {vxa[0]}
v_add_u32 {vsa[1]}, {sw11}, {vxa[1]}
v_and_b32 {t2}, 1, {t0}
v_lshl_or_b32 {t2}, {t2}, 1, {t3}
v_xor_b32 {t2}, {sw}, {t2}
v_lshlrev_b32 {t2}, 5, {t2}
v_and_b32 {t3}, 3, {lane}
v_lshl_add_u32 {t2}, {t3}, 3, {t2}
v_bfe_u32 {t3}, {lane}, 2, 2
v_lshl_add_u32 {t2}, {t3}, 7, {t2}
v_lshl_add_u32 {t2}, {t0}, 12, {t2}
v_add_u32 {vwa[0]}, {WB}, {t2}
v_add_u32 {vwa[1]}, {WB + 49152}, {t2}
s_mov_b32 {sones}, 0x3f803f80
v_mov_b32 {ones[0]}, {sones}
v_mov_b32 {ones[1]}, {sones}
v_mov_b32 {ones[2]}, {sones}
v_mov_b32 {ones[3]}, {sones}""")
    later = its(f"""s_lshl_b32 {st0}, {sw}, 1
v_xor_b32 {t2}, {st0}, {t1}
v_lshlrev_b32 {t2}, 4, {t2}
v_lshl_add_u32 {t2}, {t1}, 7, {t2}
v_bfe_u32 {t3}, {lane}, 3, 2
v_lshl_add_u32 {t2}, {t3}, 10, {t2}
v_lshrrev_b32 {t3}, 5, {lane}
v_lshl_add_u32 {t2}, {t3}, 3, {t2}
v_add_u32 {vxr[0]}, {XR}, {t2}
v_xor_b32 {vxr[1]}, 16, {vxr[0]}
s_mov_b32 {seps}, {f32(1e-5)}
v_lshlrev_b32 {vrootA}, 5, {lane}
s_add_u32 {st0}, {sw11}, {KS}
v_add_u32 {va[0]}, {st0}, {vl16}
v_lshl_add_u32 {va[1]}, {t0}, 4, {st0}
v_lshlrev_b32 {va[3]}, 2, {lane}
v_add_u32 {va[2]}, {st0}, {va[3]}
v_and_b32 {t1}, 15, {lane}
v_lshl_add_u32 {va[4]}, {t1}, 2, {st0}
v_bfe_u32 {t2}, {lane}, 2, 1
v_lshlrev_b32 {t2}, 10, {t2}
v_bfe_u32 {t1}, {lane}, 3, 1
v_lshl_add_u32 {t2}, {t1}, 9, {t2}
v_bfe_u32 {t1}, {lane}, 4, 1
v_lshl_add_u32 {t2}, {t1}, 6, {t2}
v_and_b32 {t1}, 3, {lane}
v_lshl_add_u32 {t2}, {t1}, 2, {t2}
v_add_u32 {t2}, 256, {t2}
v_lshl_add_u32 {va[5]}, {t3}, 30, {t2}""")
    later += its(f"""s_lshr_b32 {st1}, s2, 3
s_and_b32 {st0}, s2, 7
s_lshl_b32 {spsrc}, {st1}, 16
s_lshl_b32 {sdst}, {st0}, 7
s_add_u32 {spsrc}, {spsrc}, {sdst}
s_lshl_b32 {sdst}, {sw}, 14
s_add_u32 {spsrc}, {spsrc}, {sdst}
s_mul_i32 {sdst}, {st0}, {88*2048}
s_lshl_b32 {st1}, {st1}, 11
s_add_u32 {sdst}, {sdst}, {st1}
s_mul_i32 {st1}, {sw}, {22*2048}
s_add_u32 {sdst}, {sdst}, {st1}
s_add_u32 {sdst}, {sdst}, {WS_W2}
""") + [It(f"s_cmp_lt_u32 s2, 176\ns_cselect_b32 {sdst}, {sdst}, {OOB}\ns_cselect_b32 {spsrc}, {spsrc}, {OOB}", cost=2)] + its(f"""
v_lshlrev_b32 {t0}, 10, {t3}
v_bfe_u32 {t1}, {lane}, 2, 2
v_lshl_add_u32 {t0}, {t1}, 7, {t0}
v_bfe_u32 {t1}, {lane}, 3, 1
v_lshlrev_b32 {t1}, 1, {t1}
v_bfe_u32 {t2}, {lane}, 4, 1
v_or_b32 {t1}, {t1}, {t2}
v_lshl_add_u32 {t0}, {t1}, 5, {t0}
v_and_b32 {t1}, 3, {lane}
v_lshl_add_u32 {t0}, {t1}, 3, {t0}
s_add_u32 {st1}, {sw11}, {PB}
v_add_u32 {pa[0]}, {st1}, {t0}
v_xor_b32 {pa[1]}, 64, {pa[0]}
v_lshrrev_b32 {t0}, 3, {lane}
v_lshlrev_b32 {t2}, 1, {t2}
v_bfe_u32 {t1}, {lane}, 1, 2
v_xor_b32 {t1}, {t1}, {t2}
v_lshlrev_b32 {t1}, 5, {t1}
v_and_b32 {t2}, 1, {lane}
v_lshl_add_u32 {t1}, {t2}, 4, {t1}
v_lshl_add_u32 {vp[0]}, {t0}, 10, {t1}
v_add_u32 {vp[1]}, 7168, {vp[0]}
s_lshr_b32 {st0}, {sw}, 1
s_lshl_b32 {st0}, {st0}, 5
v_xor_b32 {t1}, {st0}, {t1}
v_mul_u32_u24 {t0}, 2752, {t0}
v_add_u32 {vw1d}, {t0}, {t1}
s_lshl_b32 {sxr}, {srb}, 16
s_lshl_b32 {st0}, {sw}, 14
s_add_u32 {sxr}, {sxr}, {st0}
s_lshl_b32 {st0}, {sj}, 7
s_add_u32 {sxr}, {sxr}, {st0}""")
    PD = its(f"s_add_u32 m0, {sw11}, {PB}") + [k.vm(f"buffer_load_dwordx4 {vp[i]}, {srd['w2']}, {spsrc} offen offset:{i*1024} lds", 'p') for i in range(2)]
    XD = its(f"s_add_u32 m0, {sw11}, {XR}") + [k.vm(f"buffer_load_dwordx4 {vxd[i]}, {srd['x']}, {sxr} offen offset:{i*1024} lds", 'xr') for i in range(2)]
    xf = ag(0, 256)
    def xfrag(ks, tt): return xf[(ks*4+tt)*4:(ks*4+tt)*4+4]
    wf = v(48, 32)
    def wfrag(ks, p): b = ((ks // 2) & 1) * 16 + (ks & 1) * 8 + p * 4; return wf[b:b+4]
    def tr(dst, off):
        base = vwa[0] if off < 49152 else vwa[1]
        if off >= 49152: off -= 49152
        return [f"ds_read_b64_tr_b16 {dst[0:2]}, {base} offset:{off}", f"ds_read_b64_tr_b16 {dst[2:4]}, {base} offset:{off+512}"]
    def reads(c):
        o = []
        for ks in (2*c, 2*c+1):
            for p in (0, 1): o += tr(wfrag(ks, p), kv_lds(ks, p))
            for tt in range(4): o.append(f"ds_read_b128 {xfrag(ks, tt)}, {vxa[ks&1]} offset:{c*8192 + tt*2048}")
        return o
    sf = v(80, 16); acck = v(96, 16); accv = v(112, 16); accq = v(128, 16); csk = v(144, 4); csv = v(148, 4); csq = v(152, 4)
    rsum = v(156, 4); gram = v(160, 4); pf = v(164, 8); vsr = v(172, 4)
    nmv = v(184, 16); rlv = v(200, 16); rv = v(216, 16); qs = v(232, 8); tmp = v(240, 16)
    xres = v(24, 8)
    smA = S.alloc(2); smC = S.alloc(2)
    spf = S.alloc(); vt11 = v(176); vt4 = v(177)
    later = its(f"""s_lshr_b32 {spf}, s2, 3
s_lshl_b32 {spf}, {spf}, 2
s_add_u32 {spf}, {spf}, {sw}
s_mul_i32 {spf}, {spf}, {88*128}
v_lshlrev_b32 {vt4}, 7, {lane}
v_max_u32 {vt11}, 10, {lane}
v_subrev_u32 {vt11}, 10, {vt11}
v_lshl_add_u32 {vt11}, {vt11}, 24, {vt4}
v_lshrrev_b32 {vz[3]}, 2, {lane}
v_lshl_add_u32 {vt4}, {vz[3]}, 24, {vt4}""") + later
    def touch(srd_, vaddr, pre):
        def f(): a(f"buffer_load_dword v0, {vaddr}, {srd_}, {ssoff} offen").wr = set()
        return [It(pre, cost=2), It(f, kind='vmem')]
    def tw1(slot):
        return touch(srd['w1'], vt11, f"s_add_u32 {ssoff}, {spf}, {T1.index(slot)*11*128}") if slot in T1 else []
    later += its(f"""s_mov_b32 {smA[0]}, 0xaaaaaaaa
s_mov_b32 {smA[1]}, 0xaaaaaaaa
s_mov_b32 {smC[0]}, 0xcccccccc
s_mov_b32 {smC[1]}, 0xcccccccc
v_and_b32 {t0}, 15, {lane}
v_lshlrev_b32 {vsr[3]}, 3, {t0}
v_lshlrev_b32 {t0}, 2, {t0}
s_lshl_b32 {st0}, {sw}, 6
v_add_u32 {vsr[0]}, {st0}, {t0}
v_lshlrev_b32 {vsr[1]}, 1, {vsr[0]}
v_lshrrev_b32 {vsr[2]}, 4, {lane}
v_lshlrev_b32 {vsr[2]}, 4, {vsr[2]}""")
    if PRE > 2: k.run(W(2) + X(2))
    a.wait(tok['w', 0]); a("s_barrier"); k.stamp('first')
    for r in reads(0): a(r)
    if PRE == 2: k.run(W(2) + X(2))
    stats_at = {0: (0, 1), 2: (2, 3), 3: (4,), 4: (5, 6), 5: (7,)}
    rootld = f"buffer_load_dword {vroot}, {vrootA}, {srd['dbg']}, 0 offen sc1"
    for c in range(8):
        need_ = ([('w', c+1), ('x', c+1)] if c < 7 else []) + [('x', cc) for cc in stats_at.get(c, ())]
        for key in need_: a.wait(tok[key])
        a("s_waitcnt lgkmcnt(0)\ns_barrier")
        k.stamp('i%d' % c)
        if c == 1:
            a(f"s_cmp_ge_u32 s2, 8\ns_cbranch_scc1 L_noroot\ns_cmp_lg_u32 {sw}, 0\ns_cbranch_scc1 L_noroot")
            a.hidden(f"""s_lshl_b32 {ssoff}, s2, 5
v_lshlrev_b32 {vz[0]}, 24, {lane}
v_mov_b32 {vz[1]}, 1
buffer_store_dword {vz[1]}, {vz[0]}, {srd['dbg']}, {ssoff} offen sc1
L_noroot:""")
        mf = []
        for ks in (2*c, 2*c+1):
            for tt in range(4):
                for p, acc in ((0, acck), (1, accv)):
                    d = acc[tt*4:tt*4+4]
                    mf.append(f"v_mfma_f32_16x16x32_bf16 {d}, {xfrag(ks, tt)}, {wfrag(ks, p)}, {d if ks else 0}")
            for p, acc in ((0, csk), (1, csv)):
                mf.append(f"v_mfma_f32_16x16x32_bf16 {acc}, {ones}, {wfrag(ks, p)}, {acc if ks else 0}")
        rd = []
        for i, cc in enumerate(stats_at.get(c, ())):
            for p in range(2):
                s_ = sf[(2*i+p)*4:(2*i+p)*4+4]; first = (cc == 0 and p == 0)
                rd.append(f"ds_read_b128 {s_}, {vsa[p]} offset:{cc*8192}")
                mf.append(f"v_mfma_f32_16x16x32_bf16 {rsum}, {s_}, {ones}, {0 if first else rsum}")
                mf.append(f"v_mfma_f32_16x16x32_bf16 {gram}, {s_}, {s_}, {0 if first else gram}")
        if c < 7: rd += reads(c+1)
        if c == 7:
            for tt in range(4):
                rd += [f"ds_read_b128 {nmv[tt*4:tt*4+4]}, {vsr[2]} offset:{SB + tt*64}", f"ds_read_b128 {rlv[tt*4:tt*4+4]}, {vsr[2]} offset:{SB + 512 + tt*64}"]
            for tt in range(4):
                rd += [f"ds_read_b128 {rv[tt*4:tt*4+4]}, {vsr[2]} offset:{SB + 256 + tt*64}", f"ds_read_b64 {qs[tt*2:tt*2+2]}, {vsr[3]} offset:{SB + 768 + tt*128}"]
        dm = {0: W(3) + X(3) + X(4), 1: W(4) + W(5), 2: W(6) + X(5) + X(6), 3: W(7) + X(7) + ([k.vm(rootld)] if RT == 3 else []), 4: PD + XD,
              5: Q(0), 6: ([k.vm(rootld)] if RT == 6 else []) + Q(1), 7: (Q(2) if QL < 2 else []) + (Q(3) if QL < 1 else [])}[c]
        if c == HW:
            def f5():
                a(f"s_cmp_lg_u32 {sw}, 0\ns_cbranch_scc1 L_nob")
                a.hidden(f"s_mul_i32 {ssoff}, {sj}, 384\nbuffer_load_dword v0, {vt4}, {srd['b1']}, {ssoff} offen\ns_lshl_b32 {ssoff}, {sj}, 7\nbuffer_load_dword v0, {vt4}, {srd['b2']}, {ssoff} offen\nL_nob:")
            dm = (dm + touch(srd['w1'], vt11, f"s_lshl_b32 {ssoff}, s2, 2\ns_add_u32 {ssoff}, {ssoff}, {sw}\ns_mul_i32 {ssoff}, {ssoff}, {11*128}")
                  + touch(srd['wo'], vt4, f"s_lshl_b32 {ssoff}, s2, 2\ns_add_u32 {ssoff}, {ssoff}, {sw}\ns_lshl_b32 {ssoff}, {ssoff}, 9") + [It(f5, kind='vmem')])
        dm = dm + tw1(c)
        for x in dm:
            if x.kind == 'vmem': x.cost = 2
        vq = []
        if c == 6:
            vq = its(f"""v_cndmask_b32 {rsum[0]}, {rsum[0]}, {rsum[1]}, {smA}
v_cndmask_b32 {rsum[2]}, {rsum[2]}, {rsum[3]}, {smA}
v_cndmask_b32 {gram[0]}, {gram[0]}, {gram[1]}, {smA}
v_cndmask_b32 {gram[2]}, {gram[2]}, {gram[3]}, {smA}
v_cndmask_b32 {rsum[0]}, {rsum[0]}, {rsum[2]}, {smC}
v_cndmask_b32 {gram[0]}, {gram[0]}, {gram[2]}, {smC}
v_mul_f32 {rsum[0]}, {f32(-1/512)}, {rsum[0]}
v_mul_f32 {gram[0]}, {f32(1/512)}, {gram[0]}
v_fma_f32 {gram[0]}, -{rsum[0]}, {rsum[0]}, {gram[0]}
v_max_f32 {gram[0]}, 0, {gram[0]}
v_add_f32 {gram[0]}, {seps}, {gram[0]}
v_rsq_f32 {gram[0]}, {gram[0]}
v_mul_f32 {rsum[1]}, {f32(LOG2E)}, {gram[0]}""")
            vq.append(It(f"""s_mov_b32 exec_lo, 0x00f0000f
s_mov_b32 exec_hi, 0xf0000f00
ds_write_b32 {vsr[0]}, {rsum[0]} offset:{SB}
ds_write_b32 {vsr[0]}, {gram[0]} offset:{SB + 256}
ds_write_b32 {vsr[0]}, {rsum[1]} offset:{SB + 512}
ds_write_b64 {vsr[1]}, {rsum[0:2]} offset:{SB + 768}
s_mov_b64 exec, -1""", cost=1, kind='salu'))
        if c < 4:
            n = len(later) if c == 3 else 36
            vq = later[:n]; later = later[n:]
        k.pack(mf, [rd, dm, vq] if c < 4 else [rd, vq, dm], False, vgap=VG1 if len([x for x in dm if x.kind == 'vmem'])*VG1 <= len(mf) else 3)
    k.stamp('pass1')
    sdel = smA; sln2 = smC
    a(f"s_mov_b32 {sdel[0]}, {f32(1e-6/LN2)}\ns_mov_b32 {sdel[1]}, {f32(1e-6/LN2)}\ns_mov_b32 {sln2[0]}, {f32(LN2)}\ns_mov_b32 {sln2[1]}, {f32(LN2)}")
    def phi_tail(acc, n):
        for r in range(n): a(f"v_exp_f32 {tmp[r]}, {acc[r]} clamp")
        for r in range(n): a(f"v_max_f32 {acc[r]}, {sdel[0]}, {acc[r]}")
        for r in range(0, n, 2): a(f"v_pk_fma_f32 {acc[r:r+2]}, {acc[r:r+2]}, {sln2}, {tmp[r:r+2]}")
    pkf = v(48, 8); vf = v(56, 8)
    for r in range(0, 16, 2): a(f"v_pk_fma_f32 {acck[r:r+2]}, {nmv[r:r+2]}, {csk[0:2]}, {acck[r:r+2]}")
    for r in range(0, 16, 2): a(f"v_pk_fma_f32 {acck[r:r+2]}, {acck[r:r+2]}, {rlv[r:r+2]}, {sdel}")
    phi_tail(acck, 16)
    for r in range(8): a(f"v_cvt_pk_bf16_f32 {pkf[r]}, {acck[2*r]}, {acck[2*r+1]}")
    for r in range(0, 16, 2): a(f"v_pk_fma_f32 {accv[r:r+2]}, {nmv[r:r+2]}, {csv[0:2]}, {accv[r:r+2]}")
    for r in range(0, 16, 2): a(f"v_pk_mul_f32 {accv[r:r+2]}, {accv[r:r+2]}, {rv[r:r+2]}")
    for r in range(8): a(f"v_cvt_pk_bf16_f32 {vf[r]}, {accv[2*r]}, {accv[2*r+1]}")
    dkv = tmp[8:12]; dz = tmp[12:16]
    for h in range(2):
        a(f"v_mfma_f32_16x16x32_bf16 {dkv}, {pkf[h*4:h*4+4]}, {vf[h*4:h*4+4]}, {dkv if h else 0}")
        a(f"v_mfma_f32_16x16x32_bf16 {dz}, {pkf[h*4:h*4+4]}, {ones}, {dz if h else 0}")
    k.check(f"v_cmp_ne_u32 vcc, 0, {vroot}", 0xff, rootld, st1)
    a(f"ds_write_b128 {va[0]}, {dkv}\nds_write_b128 {va[1]}, {dz} offset:1024")
    for g in range(4): a(f"ds_read_b32 {tmp[g]}, {va[2]} offset:{g*256}")
    a(f"ds_read_b32 {tmp[4]}, {va[4]} offset:1024")
    for gg in range(4):
        a(f"buffer_atomic_add_f32 {tmp[gg]}, {va[3]}, {ws}, {skvb} offen offset:{(gg&1)*1024 + (gg>>1)*512}")
    a(f"buffer_atomic_add_f32 {tmp[4]}, {va[5]}, {ws}, {skvb} offen")
    k.stamp('atom')
    k.run(tw1(8))
    QQ = (Q(2) if QL >= 2 else []) + (Q(3) if QL >= 1 else [])
    a.wait(tok['q', 3 - QL]); a("s_barrier")
    k.run(QQ)
    swo = spsrc; sw14 = sxr; sc0 = sj1; sw1b = sxb; sinv = srd['wqkv'][2]; sw1o = srd['wqkv'][3]
    a(f"""s_lshl_b32 {swo}, {sw}, 17
s_lshl_b32 {st0}, {sj}, 7
s_add_u32 {swo}, {swo}, {st0}
s_lshl_b32 {sw14}, {sw}, 14
s_and_b32 {srot}, {srb}, {D2 - 1}
s_mul_i32 {srot}, {srot}, {4 // D2}
s_mul_i32 {sc0}, {sj}, 12
s_add_u32 {sc0}, {sc0}, {sw}
s_cmp_lt_u32 {sj}, 7
s_cselect_b32 {sinv}, 0, {OOB}
s_mul_i32 {sw1b}, {sw}, {8*2752}
s_mul_i32 {st0}, {sj}, 384
s_add_u32 {sw1b}, {sw1b}, {st0}""")
    if NOW1: a(f"s_mov_b32 {sw1b}, {OOB}")
    WOD = []
    for g4 in range(4):
        WOD += its(f"s_add_u32 {sc_x}, {srot}, {g4}\ns_and_b32 {sc_x}, {sc_x}, 3\ns_lshl_b32 {sc_w}, {sc_x}, 15\ns_add_u32 {sc_w}, {sc_w}, {swo}\ns_lshl_b32 {sc_x}, {sc_x}, 12\ns_add_u32 {sc_x}, {sc_x}, {sw14}\ns_mov_b32 m0, {sc_x}")
        WOD += [k.vm(f"buffer_load_dwordx4 {vp[i]}, {srd['wo']}, {sc_w} offen offset:{i*1024} lds", 'wo') for i in range(2)]
        WOD += its(f"s_add_u32 m0, {sc_x}, 2048\ns_add_u32 {sc_w}, {sc_w}, 16384")
        WOD += [k.vm(f"buffer_load_dwordx4 {vp[i]}, {srd['wo']}, {sc_w} offen offset:{i*1024} lds", 'wo') for i in range(2)]
    UPOS = [WB + p*12288 for p in (3, 7, 0, 1, 2, 4, 5, 6)]
    def U(ks):
        o = its(f"s_add_u32 {sc_w}, {srot}, {ks // 4}\ns_and_b32 {sc_w}, {sc_w}, 3\ns_mul_i32 {sc_w}, {sc_w}, {128*2752}\ns_add_u32 {sc_w}, {sc_w}, {sw1b}") if ks % 4 == 0 else its(f"s_add_u32 {sc_w}, {sc_w}, {32*2752}")
        o += its(f"s_add_u32 {sw1o}, {sc_w}, {sinv}")
        for s in range(3):
            o += its(f"s_add_u32 m0, {sw10}, {UPOS[ks & 7] + s*4096 - s*128}")
            o.append(k.vm(f"buffer_load_dwordx4 {vw1d}, {srd['w1']}, {sw1o if s else sc_w} offen offset:{s*128} lds", ('u', ks)))
        return o
    qf = v(72, 32)
    def qfrag(ks): b = (ks & 7) * 4; return qf[b:b+4]
    for ks in range(4):
        for r in tr(qfrag(ks), q_lds(ks)): a(r)
    mf = []; rd = []
    for ks in range(16):
        for tt in range(4):
            d = accq[tt*4:tt*4+4]
            mf.append(f"v_mfma_f32_16x16x32_bf16 {d}, {qfrag(ks)}, {xfrag(ks, tt)}, {d if ks else 0}")
        mf.append(f"v_mfma_f32_16x16x32_bf16 {csq}, {qfrag(ks)}, {ones}, {csq if ks else 0}")
        if QL and ks + 4 == 16 - 4*QL: rd.append(It(lambda: (a.wait(tok['q', 3]), a("s_barrier")), cost=2, kind='salu', after=5*ks + QD))
        if ks + 4 < 16: rd += [It(x, after=5*ks, by=5*ks + 20) for x in tr(qfrag(ks+4), q_lds(ks+4))]
    xq = [f"ds_read_b64 {xres[4*H+2*e:4*H+2*e+2]}, {vxr[e]} offset:{H*4096}" for H in range(2) for e in range(2)]
    for n in range(2): xq += [f"ds_read_b64_tr_b16 {pf[n*4:n*4+2]}, {pa[n]}", f"ds_read_b64_tr_b16 {pf[n*4+2:n*4+4]}, {pa[n]} offset:512"]
    pq_ = [k.vm(f"buffer_store_dwordx4 {pf[n*4:n*4+4]}, {vl16}, {ws}, {sdst} offen offset:{n*1024} sc1", after=16) for n in range(2)]
    for s_, at in ((9, 20), (10, 44), (11, 68)):
        for x in tw1(s_): x.after = at; pq_.append(x)
    k.pack(mf, [rd, xq, pq_, WOD], False, reserve=lambda i: 1 if i % 5 == 4 else 0, vgap=4)
    k.stamp('pass2')
    for tt in range(4):
        for r in (0, 2):
            d = accq[tt*4+r:tt*4+r+2]
            a(f"v_pk_fma_f32 {d}, {qs[tt*2:tt*2+2]}, {csq[r:r+2]}, {d} op_sel_hi:[0,1,1]")
    for tt in range(4):
        for r in (0, 2):
            d = accq[tt*4+r:tt*4+r+2]
            a(f"v_pk_fma_f32 {d}, {d}, {qs[tt*2:tt*2+2]}, {sdel} op_sel:[0,1,0]")
    phi_tail(accq, 16)
    a(f"s_lshl_b32 {st0}, {srb1}, 16\ns_lshl_b32 {st1}, {shead1}, 10\ns_add_u32 {st0}, {st0}, {st1}\ns_add_u32 {st0}, {st0}, {WS_PQ}\ns_add_u32 {st1}, {st0}, 32768")
    for t32 in range(2):
        d = pkf[t32*4:t32*4+4]
        for s in range(2):
            for h in range(2):
                a(f"v_cvt_pk_bf16_f32 {d[2*s+h]}, {accq[(2*t32+s)*4+2*h]}, {accq[(2*t32+s)*4+2*h+1]}")
        for h in range(2): a(f"v_permlane16_swap_b32 {d[h]}, {d[2+h]}")
        tok['pq'] = a(f"buffer_store_dwordx4 {d}, {vl16}, {ws}, {(st0, st1)[t32]} offen sc1")
    k.stamp('pqst')
    a("s_barrier")
    UL = U(0) + U(1) + U(2) + U(3) + U(4) + U(5) + U(6) + U(7)
    def take(lst, nv):
        o = []
        while lst and nv:
            x = lst.pop(0); o.append(x)
            if x.kind == 'vmem': nv -= 1
        return o
    k.run(take(UL, NU_ARR // 2))
    vw1r = v(8, 2); vwr = v(12, 2); vcA = v(14); vc = v(15); vrw = v(16, 3); vrr = v(19); vh = v(20); vst = v(21); vone = v(22); vlz = v(23)
    vfA = v(10); vfl = v(11)
    skv = srd['wqkv'][0]; spq = srd['wqkv'][1]; shb = srd['x'][0]; sstb = srd['x'][1]; se6 = sdst
    a(f"""v_bfe_u32 {t0}, {lane}, 4, 1
v_bfe_u32 {t1}, {lane}, 3, 1
v_lshl_or_b32 {t1}, {t1}, 1, {t0}
v_xor_b32 {t1}, {sw}, {t1}
v_lshlrev_b32 {t1}, 5, {t1}
v_and_b32 {t2}, 3, {lane}
v_lshl_add_u32 {t1}, {t2}, 3, {t1}
v_bfe_u32 {t2}, {lane}, 2, 2
v_lshl_add_u32 {t1}, {t2}, 7, {t1}
v_lshrrev_b32 {t3}, 5, {lane}
v_lshl_add_u32 {t1}, {t3}, 9, {t1}
v_add_u32 {vwr[0]}, {sw14}, {t1}
v_xor_b32 {vwr[1]}, 64, {vwr[0]}
v_lshl_add_u32 {t1}, {t0}, 11, {t1}
v_add_u32 {vw1r[0]}, {WB}, {t1}
v_add_u32 {vw1r[1]}, {WB + 49152}, {t1}
v_mov_b32 {vone}, 1
v_lshlrev_b32 {vlz}, 24, {lane}
v_lshlrev_b32 {t1}, 9, {lane}
v_lshl_add_u32 {vcA}, {t3}, 30, {t1}
v_lshlrev_b32 {vh}, 14, {t0}
v_lshl_add_u32 {vh}, {t3}, 9, {vh}
v_and_b32 {t1}, 15, {lane}
v_lshl_add_u32 {vh}, {t1}, 4, {vh}
v_and_b32 {t1}, 31, {lane}
v_lshlrev_b32 {t1}, 3, {t1}
v_lshl_add_u32 {vst}, {t3}, 13, {t1}
v_lshrrev_b32 {t0}, 3, {lane}
v_lshlrev_b32 {t0}, 26, {t0}
v_lshl_add_u32 {vfA}, {lane}, 7, {t0}""")
    k.run(take(UL, NU_ARR - NU_ARR // 2))
    for r in (1, 2, 3):
        a(f"s_xor_b32 {st0}, {sw}, {r}\ns_lshl_b32 {st0}, {st0}, 13\ns_add_u32 {st0}, {st0}, {r*2048}\nv_add_u32 {vrw[r-1]}, {st0}, {vl16}")
    a(f"""s_lshl_b32 {st0}, {sw}, 13
v_add_u32 {vrr}, {st0}, {vl16}
s_add_u32 {skv}, {sw14}, {WS_KV}
s_lshl_b32 {spq}, {srb}, 16
s_add_u32 {spq}, {spq}, {st0}
s_add_u32 {spq}, {spq}, {WS_PQ}
s_lshl_b32 {shb}, {srb}, 16
s_lshr_b32 {st0}, {shead}, 1
s_lshl_b32 {st0}, {st0}, 10
s_add_u32 {shb}, {shb}, {st0}
s_and_b32 {st0}, {sw}, 1
s_lshl_b32 {st0}, {st0}, 8
s_add_u32 {shb}, {shb}, {st0}
s_add_u32 {shb}, {shb}, {WS_H}
s_lshl_b32 {sstb}, {srb}, 14
s_lshl_b32 {st0}, {shead}, 8
s_add_u32 {sstb}, {sstb}, {st0}
s_add_u32 {sstb}, {sstb}, {WS_ST}
s_mov_b32 {se6}, {f32(1e-6)}
s_and_b32 {st0}, {srb1}, 3
s_lshl_b32 {st0}, {st0}, 9
s_add_u32 {st0}, {st0}, {skvb}""")
    a.wait(tok['pq'])
    a(f"buffer_atomic_add {vone}, {vlz}, {ws}, {st0} offen offset:384")
    k.stamp('arrive')
    sw2 = swo; send = sc_x; shh = [skvb, shead1]; so2 = swb; srot3 = srb1; sgab = smA; shv = srd['x'][2]
    RB = 65536; SL = RB + 4096
    a(f"""s_mul_i32 {st0}, {srb}, {2*88*1024}
s_mul_i32 {st1}, {sw}, {22*1024}
s_add_u32 {st0}, {st0}, {st1}
s_add_u32 {shv}, {st0}, {WS_HH}
s_mul_i32 {st1}, {sj}, 3072
s_add_u32 {shh[0]}, {shv}, {st1}
s_add_u32 {shh[1]}, {shh[0]}, {sinv}
s_mov_b32 {sgab[0]}, {f32(GA)}
s_mov_b32 {sgab[1]}, {f32(GA)}
s_mul_i32 {sw2}, {shead}, {22*2048}
s_add_u32 {sw2}, {sw2}, {WS_W2 if not NOW2 else OOB}
""")
    WO = v(48, 64); KZ = v(112, 32); OF = v(144, 8); csa = v(40, 4)
    w1 = ag(0, 192)
    wor = []
    for hh in range(8):
        for t in range(2):
            d = WO[(hh*2+t)*4:(hh*2+t)*4+4]
            wor += [f"ds_read_b64_tr_b16 {d[0:2]}, {vwr[t]} offset:{hh*2048}", f"ds_read_b64_tr_b16 {d[2:4]}, {vwr[t]} offset:{hh*2048+1024}"]
    i = 0
    while UL:
        k.run(take(UL, 1)); k.run(wor[i:i+4]); i += 4
    k.run(wor[i:])
    def rd_w1(k0, k1):
        o = []
        for ks in range(k0, k1):
            for s in range(3):
                d = w1[(ks*3+s)*4:(ks*3+s)*4+4]; off = UPOS[ks & 7] - WB + s*4096
                b = vw1r[0] if off < 49152 else vw1r[1]; off %= 49152
                o += [f"ds_read_b64_tr_b16 {d[0:2]}, {b} offset:{off}", f"ds_read_b64_tr_b16 {d[2:4]}, {b} offset:{off + 1024}"]
        return o
    cload = f"buffer_load_dword {vc}, {vcA}, {ws}, {skv} offen offset:384 sc1"
    if NS1 == 2:
        a(cload)
        a.wait(tok['u', 3]); a("s_waitcnt lgkmcnt(0)\ns_barrier")
    cst = [v(44, 4), v(152, 4), v(156, 4)]; cs = v(224, 12)
    KC = 4 if NS1 == 2 else 8
    def csm(k0, k1):
        o = []
        for ks in range(k0, k1):
            for s in range(3):
                d = cst[s] if ks < KC else cs[s*4:s*4+4]
                o.append(f"v_mfma_f32_16x16x32_bf16 {d}, {w1[(ks*3+s)*4:(ks*3+s)*4+4]}, {csa}, {0 if ks == 0 else cst[s] if ks <= KC else d}")
        return o
    UB = U(8) + U(9) + U(10) + U(11); UC = U(12) + U(13) + U(14) + U(15); R47 = rd_w1(4, 8); R8 = rd_w1(8, 12); R12 = rd_w1(12, 16)
    if NS1 == 2: k.run(rd_w1(0, 4) + csm(0, 4))
    else:
        a.wait(tok['u', 1]); a("s_barrier"); k.run(rd_w1(0, 2))
        UU = UB + (UC if NS1 == 4 else [])
        for p in range(1, 2*NS1 - 3):
            if p < 4: a.wait(tok['u', 2*p + 1])
            a("s_waitcnt lgkmcnt(0)\ns_barrier")
            rr = rd_w1(2*p, 2*p + 2) if p < 4 else []; cc = csm(2*p - 2, 2*p) if p < 3 else []
            for i in range(6): k.run(take(UU, 1) + rr[2*i:2*i+2] + cc[i:i+1])
        if NS1 == 3:
            a.wait(tok['u', 7]); a("s_barrier"); k.run(rd_w1(6, 8))
        assert not UU
        UB = []; R47 = []
        if NS1 == 4: UC = []
        a(cload)
        k.run(csm(4, 8))
    k.stamp('w1a')
    k.check(f"v_cmp_eq_u32 vcc, 8, {vc}", -1, cload, st1)
    k.stamp('s1')
    PQ = ag(192, 64); ACC = v(160, 32); D = v(192, 32); KVR = v(224, 32)
    def ld(dst, sbase, off):
        o = []
        if off >= 4096: o = its(f"s_add_u32 {ssoff}, {sbase}, {off & ~4095}"); sbase = ssoff; off &= 4095
        return o + [k.vm(f"buffer_load_dwordx4 {dst}, {vl16}, {ws}, {sbase} offen offset:{off} sc1")]
    def kvr(hh): return KVR[(hh & 3)*8:(hh & 3)*8+8]
    def head_loads(hh): return ld(kvr(hh)[0:4], skv, hh*2048) + ld(kvr(hh)[4:8], skv, hh*2048 + 1024) + ld(PQ[hh*4:hh*4+4], spq, hh*1024)
    for hh in range(4): k.run(head_loads(hh))
    vxc = v(4, 2)
    a.wait(tok['u', 4*NS1 - 1])
    a(f"s_waitcnt lgkmcnt(0)\ns_barrier\nv_lshrrev_b32 {t2}, 5, {lane}\nv_lshlrev_b32 {t2}, 30, {t2}\nv_lshl_add_u32 {t2}, {lane}, 7, {t2}")
    a(f"buffer_load_dwordx2 {vxc}, {t2}, {ws}, {sflb} offen sc1")
    def store(text): return a("\n".join(l + " sc1" for l in text.split('\n')))
    ACCS = [ACC, KVR]
    def p2_units(side):
        def cvt_kv(hh): return [f"v_cvt_pk_bf16_f32 {KZ[hh*4+r]}, {kvr(hh)[2*r]}, {kvr(hh)[2*r+1]}" for r in range(4)]
        def om(n): return f"v_mfma_f32_32x32x16_bf16 {D[(n&1)*16:(n&1)*16+16]}, {KZ[(n&7)*4:(n&7)*4+4]}, {PQ[n*4:n*4+4]}, 0"
        def pm(n, t):
            d = ACCS[n >> 3][t*16:t*16+16]
            return f"v_mfma_f32_32x32x16_bf16 {d}, {WO[((n&7)*2+t)*4:((n&7)*2+t)*4+4]}, {OF[(n&1)*4:(n&1)*4+4]}, {d if n & 7 else 0}"
        k.run(cvt_kv(0)); a(om(0)); k.run(cvt_kv(1))
        for n in range(16):
            d = D[(n&1)*16:(n&1)*16+16]; o = OF[(n&1)*4:(n&1)*4+4]
            ex = list(side(n)); per = -(-len(ex) // 3)
            cv = cvt_kv(n+2) if n + 2 < 8 else []
            if n + 1 < 16: a(om(n+1))
            k.run(ex[:per])
            a(f"v_add_f32 {d[8]}, {se6}, {d[8]}\nv_rcp_f32 {d[8]}, {d[8]}")
            k.run(cv[:2])
            if n > 0: a(pm(n-1, 0))
            k.run(ex[per:2*per])
            for r in range(5): a(f"v_mul_f32 {d[r]}, {d[r]}, {d[8]}")
            if n > 0: a(pm(n-1, 1))
            k.run(ex[2*per:])
            for r in range(5, 8): a(f"v_mul_f32 {d[r]}, {d[r]}, {d[8]}")
            for r in range(4): a(f"v_cvt_pk_bf16_f32 {o[r]}, {d[2*r]}, {d[2*r+1]}")
            k.run(cv[2:])
            if n == 7: k.stamp('p2a')
        a(pm(15, 0)); a(pm(15, 1))
    def red_w(acc, base): return [f"ds_write_b128 {vrw[r-1]}, {acc[r*8+q*4:r*8+q*4+4]} offset:{base + q*1024}" for r in (1, 2, 3) for q in range(2)]
    def red_r(tm, base): return [f"ds_read_b128 {tm[(r-1)*8+q*4:(r-1)*8+q*4+4]}, {vrr} offset:{base + r*2048 + q*1024}" for r in (1, 2, 3) for q in range(2)]
    HBs = [v(32, 8), v(24, 8)]
    def flag(sync):
        k.nlab += 1; n = k.nlab
        a(f"s_cmp_lg_u32 {sw}, 3\ns_cbranch_scc1 L_nf{n}")
        a.hidden(f"""s_lshl_b32 {st0}, {sj}, 7
s_add_u32 {st0}, {st0}, {sflb}
s_cmp_eq_u32 {sxcc}, {0 if LFLAG else sxcc}
s_cbranch_scc1 L_ff{n}
buffer_store_dword {vone}, {vlz}, {ws}, {st0} offen offset:{sync*1024}
s_branch L_nf{n}
L_ff{n}:
buffer_store_dword {vone}, {vlz}, {ws}, {st0} offen offset:{sync*1024} sc1
L_nf{n}:""")
    def fload(sync): return f"buffer_load_dword {vfl}, {vfA}, {ws}, {sflb} offen offset:{sync*1024} sc1"
    def fcheck(sync): k.check(f"v_cmp_ne_u32 vcc, 0, {vfl}", 0xff, fload(sync), st1)
    pqB = [ld(PQ[(8+hh)*4:(8+hh)*4+4], spq, 32768 + hh*1024) for hh in range(8)]
    RA = R47 if NS1 == 2 else R8
    W2A = ag(192, 64); W2V = v(48, 112); vw2 = v(14, 2)
    def w2frag(n, t): i = n*2 + t; return W2V[i*4:i*4+4] if i < 28 else W2A[(i-28)*4:(i-28)*4+4]
    def w2list(ns):
        o = []
        for n in ns:
            if n % 2 == 0: o += its(f"s_add_u32 {so2}, {sw2}, {n*2048}")
            o += [k.vm(f"buffer_load_dwordx4 {w2frag(n, t)}, {vw2[t]}, {ws}, {so2} offen offset:{(n & 1)*2048} sc1") for t in range(2)]
        return o
    W2L = w2list(range(22))
    a(f"""s_and_b32 {st0}, {sw}, 1
s_lshl_b32 {st0}, {st0}, 8
s_lshr_b32 {st1}, {sw}, 1
s_lshl_b32 {st1}, {st1}, 10
s_add_u32 {st0}, {st0}, {st1}
v_xor_b32 {vw2[0]}, {st0}, {vl16}
v_xor_b32 {vw2[1]}, 1024, {vw2[0]}""")
    shs = srd['x'][3]; sst = su_ = S.alloc(); vsl = v(12)
    RWA = red_w(ACC, 0)
    def side(n):
        o = head_loads(n+4) if n < 4 else pqB[(n-4)*2] + pqB[(n-4)*2+1] if n < 8 else take(UC, 3)
        if n < 8: o += RA[3*n:3*n+3]
        elif NS1 == 4: o += R12[3*(n-8):3*(n-8)+3]
        if n >= 10: o.append(RWA[n-10])
        if n == 13: o += its(f"""s_lshl_b32 {shs}, {srb}, 16
s_add_u32 {st0}, {sw}, {srot}
s_and_b32 {st0}, {st0}, 3
s_lshl_b32 {st0}, {st0}, 12
s_add_u32 {shs}, {shs}, {st0}
s_add_u32 {shs}, {shs}, {WS_H}
s_lshl_b32 {sst}, {srb}, 14
s_add_u32 {sst}, {sst}, {sw12}
s_add_u32 {sst}, {sst}, {WS_ST}""")
        if n == 14: o.append(It(f"v_cmp_eq_u32 vcc, {sxcc}, {vxc[1]}\ns_nop 1\ns_cmp_eq_u32 vcc_lo, -1\ns_cselect_b32 {sxcc}, 1, 0\ns_add_u32 {st1}, {shb}, 32768"))
        return o
    assert NS1 >= 3
    p2_units(side)
    k.stamp('p2b')
    TA = D[0:24]; TB = WO[0:24]; XU = WO[24:40]; stt = WO[40:44]
    for r in range(8): a(f"v_lshlrev_b32 {XU[2*r]}, 16, {xres[r]}\nv_and_b32 {XU[2*r+1]}, 0xffff0000, {xres[r]}")
    k.run(red_w(KVR, 32768))
    for H in range(2):
        for e in range(0, 8, 2): a(f"v_pk_add_f32 {ACCS[H][e:e+2]}, {ACCS[H][e:e+2]}, {XU[8*H+e:8*H+e+2]}")
    a.wait(tok['u', 15])
    a("s_waitcnt lgkmcnt(0)\ns_barrier")
    k.run(red_r(TA, 0) + red_r(TB, 32768))
    for r in range(4): a(f"v_mov_b32 {stt[r]}, 0")
    for H, tm_ in ((0, TA), (1, TB)):
        own = ACCS[H]; h4 = OF[H*4:H*4+4]
        for r in range(3):
            for e in range(0, 8, 2): a(f"v_pk_add_f32 {own[e:e+2]}, {own[e:e+2]}, {tm_[r*8+e:r*8+e+2]}")
        for r in range(4): a(f"v_cvt_pk_bf16_f32 {h4[r]}, {own[2*r]}, {own[2*r+1]}")
        store(f"buffer_store_dwordx4 {h4}, {vh}, {ws}, {(shb, st1)[H]} offen")
    for r in range(4):
        for H in range(2): a(f"v_dot2_f32_bf16 {stt[2*H]}, {OF[H*4+r]}, {sones}, {stt[2*H]}\nv_dot2_f32_bf16 {stt[2*H+1]}, {OF[H*4+r]}, {OF[H*4+r]}, {stt[2*H+1]}")
    for r in range(2): a(f"v_lshlrev_b32 {HBs[0][2*r]}, 16, {OF[r]}\nv_and_b32 {HBs[0][2*r+1]}, 0xffff0000, {OF[r]}")
    a(f"v_permlane32_swap_b32 {stt[0]}, {stt[2]}\nv_permlane32_swap_b32 {stt[1]}, {stt[3]}\nv_pk_add_f32 {stt[0:2]}, {stt[0:2]}, {stt[2:4]}")
    tok['h', 0] = store(f"buffer_store_dwordx2 {stt[0:2]}, {vst}, {ws}, {sstb} offen")
    k.stamp('pubb')
    if NS1 < 4: k.run(R12)
    b1r = v(160, 6); b2 = v(166, 4); vb = v(170, 2)
    vsw = v(13); vrn = v(3); vgb = v(20, 2); tm = v(212, 12); b1f = v(236, 12)
    for r in range(2, 8): a(f"v_lshlrev_b32 {HBs[r >> 2][2*(r&3)]}, 16, {OF[r]}\nv_and_b32 {HBs[r >> 2][2*(r&3)+1]}, 0xffff0000, {OF[r]}")
    a(f"v_lshrrev_b32 {vb[0]}, 4, {lane}\nv_lshlrev_b32 {vb[0]}, 3, {vb[0]}\nv_lshrrev_b32 {vb[1]}, 5, {lane}\nv_lshlrev_b32 {vb[1]}, 3, {vb[1]}\ns_lshl_b32 {st0}, {sc0}, 5\ns_lshl_b32 {st1}, {shead}, 5")
    for i in range(3): a(f"buffer_load_dwordx2 {b1r[2*i:2*i+2]}, {vb[0]}, {srd['b1']}, {st0} offen offset:{i*128}")
    for e in range(2): a(f"buffer_load_dwordx2 {b2[2*e:2*e+2]}, {vb[1]}, {srd['b2']}, {st1} offen offset:{e*16}")
    setup = its(f"""v_and_b32 {vsw}, 56, {lane}
v_and_b32 {vsl}, 7, {lane}
v_mul_u32_u24 {vsl}, 1088, {vsl}
v_add_u32 {vsl}, {vsl}, {vsw}
s_lshl_b32 {st0}, {sw}, 6
s_add_u32 {st1}, {st0}, {SL}
v_add_u32 {vsl}, {st1}, {vsl}
s_add_u32 {st0}, {st0}, {RB}
v_add_u32 {vsw}, {st0}, {vsw}
v_mov_b32 {vgb[0]}, {f32(GB)}
v_mov_b32 {vgb[1]}, {f32(GB)}
v_and_b32 {vrn}, 15, {lane}
v_lshlrev_b32 {vrn}, 3, {vrn}
v_add_u32 {vrn}, {RB}, {vrn}""")
    k.pack(csm(KC, 16), [take(W2L, W2N[0]), setup], False, vgap=4)
    a.wait(tok['h', 0]); a("s_barrier"); flag(0)
    k.stamp('ack')
    for r in range(4): a(f"v_lshlrev_b32 {tm[2*r]}, 16, {b2[r]}\nv_and_b32 {tm[2*r+1]}, 0xffff0000, {b2[r]}")
    for H in range(2):
        for e in range(0, 8, 2): a(f"v_pk_add_f32 {HBs[H][e:e+2]}, {HBs[H][e:e+2]}, {tm[e:e+2]}")
    for i in range(3):
        for h in range(2): a(f"v_lshlrev_b32 {b1f[i*4+2*h]}, 16, {b1r[2*i+h]}\nv_and_b32 {b1f[i*4+2*h+1]}, 0xffff0000, {b1r[2*i+h]}")
    a(fload(0)); fcheck(0)
    k.stamp('s2')
    def dma_h(tt):
        return (its(f"s_add_u32 m0, {sw12}, {tt*16384}\ns_add_u32 {ssoff}, {shs}, {tt*16384}")
                + [k.vm(f"buffer_load_dwordx4 {vl16}, {ws}, {ssoff} offen offset:{i*1024} sc1 lds", ('ht', tt)) for i in range(4)])
    svs = [v(200, 8), v(152, 8)]
    def stat_reads(H): return [f"ds_read_b64 {svs[H][2*q:2*q+2]}, {vsl} offset:{H*8704 + q*256}" for q in range(4)]
    SD = its(f"s_mul_i32 {st0}, {sw}, 4352")
    for q in range(4): SD += its(f"s_add_u32 m0, {st0}, {SL + q*64}") + [k.vm(f"buffer_load_dwordx4 {vl16}, {ws}, {sst} offen offset:{q*1024} sc1 lds", ('st', 0))]
    k.run(dma_h(0) + SD + dma_h(1))
    HL = dma_h(2) + dma_h(3)
    k.run(take(HL, NHL))
    acc3 = v(160, 24); hf = v(184, 16); pk = v(200, 12); rn = v(248, 8)
    def stat_math():
        L = []
        for H in range(2):
            s = svs[H]
            L.append([f"v_add_f32 {s[d_+e]}, {s[d_+e]}, {s[o_+e]}" for d_, o_ in ((0, 2), (4, 6), (0, 4)) for e in range(2)]
                     + [x for d in (DPP_X1, DPP_X2, DPP_HM) for x in (f"v_add_f32 {s[0]}, {s[0]}, {s[0]} {d}", f"v_add_f32 {s[1]}, {s[1]}, {s[1]} {d}")]
                     + f"""v_mul_f32 {s[0]}, {f32(1/512)}, {s[0]}
v_mul_f32 {s[1]}, {f32(1/512)}, {s[1]}
v_fma_f32 {s[1]}, -{s[0]}, {s[0]}, {s[1]}
v_max_f32 {s[1]}, 0, {s[1]}
v_add_f32 {s[2]}, {seps}, {s[1]}
v_rsq_f32 {s[2]}, {s[2]}
v_mul_f32 {s[3]}, {s[2]}, {s[2]}
v_fma_f32 {s[3]}, {s[3]}, {s[1]}, {seps}
v_rsq_f32 {s[3]}, {s[3]}
v_mul_f32 {s[2]}, {s[2]}, {s[3]}
v_mul_f32 {s[3]}, -{s[2]}, {s[0]}
ds_write_b64 {vsw}, {s[2:4]} offset:{H*256}""".split('\n'))
        return [z for xy in zip(*L) for z in xy]
    def epi1(tt):
        ac = acc3[(tt&1)*12:(tt&1)*12+12]; p = rn[tt*2:tt*2+2]
        for e in range(0, 12, 2): a(f"v_pk_fma_f32 {tm[e:e+2]}, {p}, {cs[e:e+2]}, {b1f[e:e+2]} op_sel:[1,0,0]")
        for e in range(0, 12, 2): a(f"v_pk_fma_f32 {ac[e:e+2]}, {p}, {ac[e:e+2]}, {tm[e:e+2]} op_sel_hi:[0,1,1]")
        for e in range(0, 12, 2): a(f"v_pk_mul_f32 {tm[e:e+2]}, {ac[e:e+2]}, {ac[e:e+2]}")
        for e in range(0, 12, 2): a(f"v_pk_fma_f32 {tm[e:e+2]}, {tm[e:e+2]}, {sgab}, {vgb}")
        for e in range(0, 12, 2): a(f"v_pk_mul_f32 {tm[e:e+2]}, {tm[e:e+2]}, {ac[e:e+2]}")
    def epi2(tt, packed=False):
        add = [f"v_pk_add_f32 {tm[e:e+2]}, {tm[e:e+2]}, 1.0 op_sel_hi:[1,0]" for e in range(0, 12, 2)] if packed else [f"v_add_f32 {tm[e]}, 1.0, {tm[e]}" for e in range(12)]
        return [f"v_exp_f32 {tm[e]}, {tm[e]}" for e in range(12)] + add + [f"v_rcp_f32 {tm[e]}, {tm[e]}" for e in range(12)]
    def epi3(tt):
        ac = acc3[(tt&1)*12:(tt&1)*12+12]
        for e in range(0, 12, 2): a(f"v_pk_mul_f32 {ac[e:e+2]}, {ac[e:e+2]}, {tm[e:e+2]}")
        for i in range(3):
            for h in range(2): a(f"v_cvt_pk_bf16_f32 {pk[i*4+(tt&1)*2+h]}, {ac[i*4+2*h]}, {ac[i*4+2*h+1]}")
        if tt & 1:
            for i in range(3):
                for h in range(2): a(f"v_permlane16_swap_b32 {pk[i*4+h]}, {pk[i*4+2+h]}")
            if tt == 3: a(f"s_add_u32 {shh[0]}, {shh[0]}, {88*1024}\ns_add_u32 {shh[1]}, {shh[1]}, {88*1024}")
            tok['hh', tt >> 1] = store("\n".join(f"buffer_store_dwordx4 {pk[i*4:i*4+4]}, {vl16}, {ws}, {shh[min(i, 1)]} offen offset:{i*1024}" for i in range(3)))
    def rd(n): return f"ds_read_b128 {hf[(n&3)*4:(n&3)*4+4]}, {vl16} offset:{n*1024}"
    def rnrd(tt): return f"ds_read_b64 {rn[tt*2:tt*2+2]}, {vrn} offset:{tt*128}"
    a.wait(tok['ht', 0]); a("s_barrier")
    for n in range(3): a(rd(n))
    k.stamp('t0')
    def bar(*keys, more=None):
        def f():
            k.stamp('x%s%s' % keys[0])
            for key in keys: a.wait(tok[key])
            k.stamp('y%s%s' % keys[0])
            a("s_barrier")
            k.stamp('z%s%s' % keys[0])
            if more: more()
        return It(f, cost=2, kind='salu')
    for tt in range(4):
        mf = []; rq = []
        for ks in range(16):
            n = tt*16 + ks
            for i in range(3):
                d = acc3[(tt&1)*12+i*4:(tt&1)*12+i*4+4]
                mf.append(f"v_mfma_f32_16x16x32_bf16 {d}, {w1[(ks*3+i)*4:(ks*3+i)*4+4]}, {hf[(n&3)*4:(n&3)*4+4]}, {d if ks else 0}")
            if tt == 0 and ks == SK:
                x = bar(('st', 0)); x.after = 3*ks - 2; rq.append(x)
                rq += [It(y, after=3*ks - 1) for y in stat_reads(0) + stat_reads(1)]
            if ks == 13 and tt < 3:
                x = bar(('ht', tt+1)); x.after = 3*ks - 2; rq.append(x)
            if n + 3 < 64: rq.append(It(rd(n + 3) + "\ns_waitcnt lgkmcnt(2)", cost=3 if tt in (1, 3) else 2, after=3*ks, by=3*ks + 6))
        vq = take(W2L, W2N[tt+1])
        if tt == 0: vq = HL + vq
        fq = []
        if tt == 0:
            fq = [It(x, after=3*SK + 4) for x in stat_math()]
            fq += [It("s_waitcnt lgkmcnt(0)\ns_barrier", cost=3)] + [rnrd(q) for q in range(4)]
        if tt == 2:
            for x in vq: x.after = G2
        if tt == 3: vq = take(vq, 4) + [k.vm(fload(2), after=F5)] + vq
        k.pack(mf, [rq, vq, fq, epi2(tt-1) if tt in (1, 3) else []], False, vgap=VG3)
        k.stamp('m%d' % tt)
        if tt == 3: break
        if tt == 1:
            epi3(0); k.run(take(W2L, 1)); epi1(1); k.run(take(W2L, 1)); k.run(epi2(1, True)); epi3(1)

        else:
            epi1(tt)
        if tt == 2: k.emit(bar(('hh', 0), more=lambda: flag(2)))
        k.stamp('e%d' % tt)
    HH = ag(0, 176); acc4 = v(160, 64); tm4 = v(224, 24); ob = v(248, 4)
    vo = v(12); sob = shb; so4 = srd['x'][3]; send4 = srd['x'][1]
    def ld_hh(H):
        o = []
        for n in range(22):
            if n % 4 == 0: o += its(f"s_add_u32 {so4}, {shv}, {H*88*1024 + n*1024}")
            o.append(k.vm(f"buffer_load_dwordx4 {HH[(H*22+n)*4:(H*22+n)*4+4]}, {vl16}, {ws}, {so4} offen offset:{(n % 4)*1024} sc1"))
        return o
    def p4_mf(H):
        o = []
        for n in range(22):
            for t in range(2):
                d = acc4[H*32+t*16:H*32+t*16+16]
                o.append(f"v_mfma_f32_32x32x16_bf16 {d}, {w2frag(n, t)}, {HH[(H*22+n)*4:(H*22+n)*4+4]}, {d if n else 0}")
        return o
    def p4_epi(H, packed):
        own = acc4[H*32:H*32+8]; o = []
        if packed:
            o += [f"v_pk_add_f32 {own[e:e+2]}, {own[e:e+2]}, {HBs[H][e:e+2]}" for e in range(0, 8, 2)]
            o += [f"v_pk_add_f32 {own[e:e+2]}, {own[e:e+2]}, {tm4[r*8+e:r*8+e+2]}" for r in range(3) for e in range(0, 8, 2)]
        else:
            o += [f"v_add_f32 {own[e]}, {own[e]}, {HBs[H][e]}" for e in range(8)]
            o += [f"v_add_f32 {own[e]}, {own[e]}, {tm4[r*8+e]}" for r in range(3) for e in range(8)]
        o += [f"v_cvt_pk_bf16_f32 {ob[r]}, {own[2*r]}, {own[2*r+1]}" for r in range(4)]
        o += [f"v_permlane32_swap_b32 {ob[h]}, {ob[2+h]}" for h in range(2)]
        if H: o.append(f"s_add_u32 {sob}, {sob}, 32768")
        o.append(f"buffer_store_dwordx4 {ob}, {vo}, {srd['out']}, {sob} offen {OUTP}")
        return o
    LA = ld_hh(0); LB = ld_hh(1)
    class Rec:
        def __init__(s): s.l = []
        def __call__(s, t): s.l += [x for x in t.split('\n') if x.strip()]
    real = a; a = Rec(); epi3(2); epi1(3); tail = a.l + epi2(3, True); a = real
    fcheck(2)
    step = len(tail) // NLA
    for i, x in enumerate(tail):
        if i % step == 0 and i // step < NLA: k.run(take(LA, 1))
        a(x)
    epi3(3)
    k.stamp('p3e')
    a(f"""v_and_b32 {t0}, 31, {lane}
v_lshlrev_b32 {vo}, 10, {t0}
v_lshrrev_b32 {t0}, 5, {lane}
v_lshl_add_u32 {vo}, {t0}, 4, {vo}
s_lshl_b32 {sob}, {srb}, 16
s_lshl_b32 {st0}, {shead}, 5
s_add_u32 {sob}, {sob}, {st0}""")
    if FAKEOUT: a(f"v_lshrrev_b32 {t0}, 3, {lane}\nv_lshlrev_b32 {vo}, 10, {t0}\nv_and_b32 {t0}, 7, {lane}\nv_lshl_add_u32 {vo}, {t0}, 4, {vo}\ns_lshl_b32 {sob}, {srb}, 16\ns_lshl_b32 {st0}, {sj}, 7\ns_add_u32 {sob}, {sob}, {st0}\ns_lshl_b32 {st0}, {sw}, 13\ns_add_u32 {sob}, {sob}, {st0}")
    nleft = len([x for x in W2L if x.kind == 'vmem']); assert nleft <= 8, nleft; print('W2 left', nleft, file=sys.stderr)
    mfa = p4_mf(0)
    k.run(mfa[:F4])
    k.run(LA + W2L)
    k.emit(bar(('hh', 1), more=lambda: flag(3)))
    k.pack(mfa[F4:], [[k.vm(fload(3), after=FP)]], True)
    fcheck(3)
    k.stamp('p4a')
    for x in red_w(acc4[0:32], 0):
        a(x); k.run(take(LB, 1))
    a("s_waitcnt lgkmcnt(0)\ns_barrier")
    k.pack(p4_mf(1), [LB, red_r(tm4, 0), [It(x, after=8) for x in p4_epi(0, False)]], True, reserve=lambda i: 1, vgap=2)
    k.stamp('p4b')
    k.run(red_w(acc4[32:64], 32768))
    a("s_waitcnt lgkmcnt(0)\ns_barrier")
    k.run(red_r(tm4, 32768))
    k.run(p4_epi(1, True))
    if STAMPS:
        a("s_waitcnt vmcnt(0)"); STAMPS.append('end'); k.stamp('end')
        t = f"s_memrealtime {rt[2:4]}\ns_waitcnt lgkmcnt(0)\nv_mov_b32 {t0}, {sw}\nv_lshlrev_b32 {t0}, 28, {t0}\ns_lshl_b32 {st0}, s2, 6\ns_add_u32 {st0}, {st0}, {WS_DBG}\n"
        for i in range(1, len(k.stamped)):
            t += f"s_sub_u32 {st1}, {k.str_[2*i]}, {k.str_[0]}\nv_mov_b32 {t1}, {st1}\nbuffer_store_dword {t1}, {t0}, {ws}, {st0} offen offset:{4*i}\n"
        t += f"v_mov_b32 {t1}, {rt[0]}\nbuffer_store_dword {t1}, {t0}, {ws}, {st0} offen offset:56\n"
        t += f"v_mov_b32 {t1}, {rt[2]}\nbuffer_store_dword {t1}, {t0}, {ws}, {st0} offen offset:60\n"
        a.hidden(t)
        print('stamps:', k.stamped[1:], file=sys.stderr)
    a("L_end:\ns_endpgm")
    return a.finish(), S.peak

def assemble():
    hdr = open('cdna_kernels/' + NAME + '.s.ref').read().split('; Override')[0]
    body, sp = kernel()
    print('sgpr', sp, 'lines', body.count('\n'), 'nops', body.count('s_nop'), file=sys.stderr)
    n = NAME + '_kernel'
    return (hdr + "; @launch grid=(256,1,1) block=(256,1,1) lds=163840\n" + '.amdgcn_target "amdgcn-amd-amdhsa--gfx950"\n.text\n'
            + f".globl {n}\n.p2align 8\n.type {n},@function\n{n}:\n{body}" + '.section .rodata,"a"\n.p2align 6\n' + descriptor(n, 512, 256))

if __name__ == '__main__':
    for x in sys.argv[3:]: exec(x)
    if len(sys.argv) > 2 and sys.argv[2] != '-': STAMPS = sys.argv[2].split(',')
    open(sys.argv[1], 'w').write(assemble())
```

```python
from asmlib import *
import struct, sys
def f32(x): return '0x%08x' % struct.unpack('<I', struct.pack('<f', x))[0]
NAME = 'sequential_preLN__linear_attn_block__mixer_channel_mlp__prompt'
WS_PQ = 0
WS_W2 = WS_PQ + (2 << 20)
WS_KV = WS_W2 + 8 * 88 * 2048
WS_H  = WS_KV + 65536
WS_ST = WS_H + (2 << 20)
WS_HH = WS_ST + 32 * 16384
WS_FL = WS_HH + 32 * 2 * 88 * 1024
WS_END = WS_FL + 32 * 4096
WS_DBG = WS_END
OOB = 0x7ff00000
LOG2E = 1.4426950408889634; LN2 = 0.6931471805599453
GA = -2 * 0.7978845608028654 * 0.044715 * LOG2E
GB = -2 * 0.7978845608028654 * LOG2E
KA = dict(x=0, wqkv=8, wo=16, w1=32, b1=40, w2=48, b2=56, out=64, dbg=72, ws=80)
SZ = dict(x=2048*512*2, wqkv=512*1536*2, wo=512*512*2, w1=512*1376*2, b1=1376*2, w2=1376*512*2, b2=512*2,
          out=2048*512*2, dbg=256, ws=WS_END + 16384)
DPP_X1 = 'quad_perm:[1,0,3,2] row_mask:0xf bank_mask:0xf'
DPP_X2 = 'quad_perm:[2,3,0,1] row_mask:0xf bank_mask:0xf'
DPP_HM = 'row_half_mirror row_mask:0xf bank_mask:0xf'
SPIN = 0x40000
STAMPS = None
D1 = 2
D2 = 1
AH = 10
VG1 = 4
FA = 6
F3 = 40
F4 = 20; F4b = 26; F4c = 32; TL = 5
EARLY = 1
UBA = 1
PACE = 1
HOP = 1
EXCL = 1
LAT = 1
XT = 0
NB = (0, 6, 8, 6); PRE1 = 2
RTS = 0
DX = 1; RT = 6; QL = 0; QD = 10
NHL = 4; SK = 5; FAKEOUT = 0
HA = 1; FH = 12
W2P = 8
G2 = 26; F5 = 26; NLA = 16; OUTP = ''
FB1 = 48
NOW2 = 0; NOW1 = 0
red_w_last = None
NU_ARR = 8
PRE = 2
NS1 = 3
W2N = (8, 7, 11, 6, 10)
W2E = 2
VG3 = 4
HW = 5
T1 = ()
T2 = 0
LFLAG = 1

def v(b, n=1): return R('v', b, n)
def ag(b, n=1): return R('a', b, n)

class It:
    def __init__(self, x, cost=None, kind=None, after=0, by=None):
        self.x = x; self.after = after; self.by = by
        self.dw = 2 if isinstance(x, str) and 'b128' in x.split()[0] else 1
        if kind is None:
            mn = x.split()[0]
            kind = ('trans' if mn.startswith(TRANS) else 'valu' if mn.startswith('v_') else 'ds' if mn.startswith('ds_')
                    else 'vmem' if mn.startswith(('buffer', 'global')) else 'salu')
        self.kind = kind
        self.cost = cost if cost is not None else {'trans': 2, 'valu': 1, 'ds': 1, 'vmem': 3, 'salu': 1}.get(kind, 1)
def its(text, after=0): return [It(l.strip(), after=after) for l in text.split('\n') if l.strip()]

class K:
    def __init__(self):
        self.a = Asm(); self.S = Regs('s', 4, 102); self.nlab = 0
        self.stamped = []; self.tok = {}
    def emit(self, x):
        if isinstance(x, It): x = x.x
        if callable(x): return x()
        return self.a(x)
    def run(self, items):
        for x in items: self.emit(x)
    def vm(self, text, key=None, after=0):
        def f():
            t = self.a(text)
            if key is not None: self.tok[key] = t
        return It(f, kind='vmem', after=after)
    def pack(self, mf, queues, big, reserve=None, vgap=0, excl=False):
        qs = [[x if isinstance(x, It) else It(x) for x in q] for q in queues]
        cap, vcap, dcap = (7, 6, 4) if big else (3, 2, 2)
        lastv = -99
        for i, m in enumerate(mf):
            for q in qs:
                late = [n for n, x in enumerate(q) if x.by is not None and x.by <= i]
                if late:
                    assert all(x.after < i for x in q[:late[-1] + 1])
                    self.run(q[:late[-1] + 1]); del q[:late[-1] + 1]
            self.emit(m)
            s = cap - (reserve(i) if reserve else 0); vs = vcap; d = dcap
            if excl:
                hit = [q for q in qs if q and q[0].kind == 'vmem' and q[0].after <= i and i - lastv >= vgap]
                nds = sum(x.kind == 'ds' for q in qs for x in q)
                if hit and nds < len(mf) - i - 2:
                    self.emit(hit[0].pop(0)); lastv = i; continue
            for q in qs:
                while q:
                    x = q[0]
                    if x.after > i or x.cost > s: break
                    if x.kind in ('valu', 'trans') and x.cost > vs: break
                    if x.kind == 'ds' and (x.dw > d or (excl and d < dcap)): break
                    if x.kind == 'vmem' and excl: break
                    if x.kind == 'vmem' and i - lastv < vgap: break
                    q.pop(0); self.emit(x); s -= x.cost
                    if x.kind in ('valu', 'trans'): vs -= x.cost
                    if x.kind == 'trans' and not big: s = 0
                    if x.kind == 'ds': d -= x.dw
                    if x.kind == 'vmem': lastv = i
        left = sum(len(q) for q in qs)
        for q in qs: self.run(q)
        return left
    def stamp(self, name):
        if STAMPS and name in STAMPS:
            n = len(self.stamped); self.stamped.append(name)
            self.a.hidden(f"{'s_memrealtime' if RTS else 's_memtime'} {self.str_[2*n:2*n+2]}")
    def check(self, cmp_, mask, reload, st1):
        a = self.a; self.nlab += 1; n = self.nlab
        a(cmp_)
        a(f"s_cmp_eq_u32 vcc_lo, {mask}\ns_cbranch_scc1 L_ok{n}")
        a.hidden(f"""s_mov_b32 {st1}, 0
L_spin{n}:
{reload}
s_add_u32 {st1}, {st1}, 1
s_waitcnt vmcnt(0)
{cmp_}
s_cmp_ge_u32 {st1}, {SPIN}
s_cbranch_scc1 L_ok{n}
s_nop 1
s_cmp_eq_u32 vcc_lo, {mask}
s_cbranch_scc0 L_spin{n}
L_ok{n}:""")

def kernel():
    k = K(); a = k.a; S = k.S; tok = k.tok
    a("s_cmp_ge_u32 s2, 256\ns_cbranch_scc1 L_end")
    if STAMPS:
        k.str_ = S.alloc(2*len(STAMPS) + 4, 4); rt = S.alloc(4, 4)
        a.hidden(f"s_memrealtime {rt[0:2]}")
        STAMPS.insert(0, 'start')
    k.stamp('start')
    srd = {}
    for n in ['x', 'wqkv', 'ws', 'dbg', 'wo', 'w1', 'w2', 'b1', 'b2', 'out']: srd[n] = S.alloc(4)
    for n in ['x', 'wqkv']: a(f"s_load_dwordx2 {srd[n][0:2]}, s[0:1], {KA[n]}")
    for n in ['x', 'wqkv']: a(f"s_mov_b32 {srd[n][2]}, {SZ[n]}\ns_mov_b32 {srd[n][3]}, 0x00020000")
    ws = srd['ws']
    st0, st1, ssoff, sw, sj, srb, shead, sj1, srb1, shead1 = [S.alloc() for _ in range(10)]
    sxb, swb, sw10, sw11, sw12, srot, sc_x, sc_w, sw6k = [S.alloc() for _ in range(9)]
    lane, vl16, t0, t1, t2, t3 = v(1), v(2), v(4), v(5), v(6), v(7)
    vxd = v(8, 2); vwd = v(10, 2)
    a(f"""v_and_b32 {lane}, 63, v0
v_lshrrev_b32 {t0}, 6, v0
v_readfirstlane_b32 {sw}, {t0}
s_and_b32 {sj1}, s2, 1
s_lshl_b32 {sj1}, {sj1}, 2
s_bfe_u32 {st0}, s2, 0x20003
s_add_u32 {sj1}, {sj1}, {st0}
s_bfe_u32 {srb1}, s2, 0x20001
s_lshl_b32 {srb1}, {srb1}, 3
s_lshr_b32 {st0}, s2, 5
s_add_u32 {srb1}, {srb1}, {st0}
v_lshrrev_b32 {t0}, 3, {lane}
v_and_b32 {t1}, 7, {lane}
v_xor_b32 {t2}, {t0}, {t1}
v_lshlrev_b32 {t2}, 4, {t2}
v_lshl_add_u32 {vxd[0]}, {t0}, 10, {t2}
v_add_u32 {vxd[1]}, 7168, {vxd[0]}
v_bfe_u32 {t2}, {lane}, 4, 1
s_and_b32 {st0}, {sw}, 1
s_lshl_b32 {st0}, {st0}, 1
v_or_b32 {t2}, {st0}, {t2}
v_lshrrev_b32 {t3}, 1, {t1}
v_xor_b32 {t2}, {t2}, {t3}
v_lshlrev_b32 {t2}, 5, {t2}
v_and_b32 {t3}, 1, {lane}
v_lshl_add_u32 {t2}, {t3}, 4, {t2}
v_mul_u32_u24 {vwd[0]}, 3072, {t0}
v_add_u32 {vwd[0]}, {vwd[0]}, {t2}
v_add_u32 {vwd[1]}, 98304, {vwd[0]}
s_lshl_b32 {sxb}, {srb1}, 16
s_lshl_b32 {st0}, {sw}, 14
s_add_u32 {sxb}, {sxb}, {st0}
s_mul_i32 {swb}, {sw}, {8*3072}
s_lshl_b32 {st0}, {sj1}, 7
s_add_u32 {swb}, {swb}, {st0}
s_lshl_b32 {sw10}, {sw}, 10
s_lshl_b32 {sw11}, {sw}, 11
s_lshl_b32 {sw12}, {sw}, 12
s_mul_i32 {sw6k}, {sw}, 6144
s_add_u32 {srot}, {srb1}, {sj1}
s_and_b32 {srot}, {srot}, {D1 - 1}
s_mul_i32 {srot}, {srot}, {8 // D1}""")
    if DX == 1: a(f"s_bfe_u32 {st0}, s2, 0x20001\ns_add_u32 {srot}, {srot}, {st0}\ns_and_b32 {st0}, s2, 1\ns_lshl_b32 {st0}, {st0}, 1\ns_add_u32 {srot}, {srot}, {st0}")
    if DX == 2: a(f"s_bfe_u32 {st0}, s2, 0x10001\ns_add_u32 {srot}, {srot}, {st0}")
    if DX == 3: a(f"s_bfe_u32 {st0}, s2, 0x20001\ns_lshl_b32 {st0}, {st0}, 1\ns_add_u32 {srot}, {srot}, {st0}\ns_and_b32 {st0}, s2, 1\ns_add_u32 {srot}, {srot}, {st0}")
    WB = 65536; PB = WB + 3 * 24576; XR = PB + 8192
    def X(c):
        return (its(f"s_add_u32 {sc_x}, {srot}, {c}\ns_and_b32 {sc_x}, {sc_x}, 7\ns_lshl_b32 {sc_x}, {sc_x}, 7\ns_add_u32 {sc_x}, {sc_x}, {sxb}\ns_add_u32 m0, {sw11}, {c*8192}")
                + [k.vm(f"buffer_load_dwordx4 {vxd[o]}, {srd['x']}, {sc_x} offen offset:{o*1024} lds", ('x', c)) for o in range(2)])
    def wrot(c, add): return f"s_add_u32 {sc_w}, {srot}, {c}\ns_and_b32 {sc_w}, {sc_w}, 7\ns_mul_i32 {sc_w}, {sc_w}, {64*3072}\ns_add_u32 {sc_w}, {sc_w}, {swb}\n" + (f"s_add_u32 {sc_w}, {sc_w}, {add}\n" if add else "")
    def W(c):
        o = its(wrot(c, 0))
        for h in range(2):
            o += its(f"s_add_u32 m0, {sw6k}, {WB + (c % 3)*24576 + h*3072}")
            o += [k.vm(f"buffer_load_dwordx4 {vwd[h]}, {srd['wqkv']}, {sc_w} offen offset:{p*1024} lds", ('w', c)) for p in range(3)]
        return o
    def w_lds(ks, p): return ((ks // 2) % 3) * 24576 + (ks & 1) * 3072 + p * 1024
    def take(lst, nv):
        o = []
        while lst and nv:
            x = lst.pop(0); o.append(x)
            if x.kind == 'vmem': nv -= 1
        return o
    a("s_waitcnt lgkmcnt(0)"); k.stamp('karg')
    k.run(X(0) + W(0))
    if XT:
        a(f"v_lshrrev_b32 {t0}, 4, {lane}\nv_lshlrev_b32 {t0}, 24, {t0}\nv_lshl_add_u32 {t0}, {lane}, 7, {t0}\ns_lshl_b32 {st0}, s2, 13\ns_add_u32 {st0}, {st0}, {sw11}")
        a(f"buffer_load_dword v0, {t0}, {srd['x']}, {st0} offen").wr = set()
    if XT > 1:
        a(f"v_max_u32 {t0}, 11, {lane}\nv_subrev_u32 {t0}, 11, {t0}\nv_lshlrev_b32 {t0}, 24, {t0}\nv_lshl_add_u32 {t0}, {lane}, 7, {t0}\ns_lshl_b32 {st0}, s2, 2\ns_add_u32 {st0}, {st0}, {sw}\ns_mul_i32 {st0}, {st0}, 1536")
        a(f"buffer_load_dword v0, {t0}, {srd['wqkv']}, {st0} offen").wr = set()
    for n in srd:
        if n not in ('x', 'wqkv'): a(f"s_load_dwordx2 {srd[n][0:2]}, s[0:1], {KA[n]}")
    W1_ = W(1)
    k.run(X(1) + (take(W1_, PRE1)))
    for n in srd:
        if n not in ('x', 'wqkv'): a(f"s_mov_b32 {srd[n][2]}, {SZ[n]}\ns_mov_b32 {srd[n][3]}, 0x00020000")
    skvb, sflb, spsrc, sxr, sdst, sones, seps = [S.alloc() for _ in range(7)]
    vz = v(44, 4); ones = v(40, 4); sxcc = S.alloc()
    a(f"s_getreg_b32 {sxcc}, hwreg(HW_REG_XCC_ID)\ns_and_b32 {sxcc}, {sxcc}, 15\ns_add_u32 {sxcc}, {sxcc}, 1")
    a(f"""s_bfe_u32 {sj}, s2, 0x30003
s_and_b32 {srb}, s2, 7
s_lshl_b32 {srb}, {srb}, 2
s_lshr_b32 {st0}, s2, 6
s_add_u32 {srb}, {srb}, {st0}
s_lshl_b32 {shead}, {sj}, 2
s_add_u32 {shead}, {shead}, {sw}
s_lshl_b32 {shead1}, {sj1}, 2
s_add_u32 {shead1}, {shead1}, {sw}
s_lshl_b32 {skvb}, {shead1}, 11
s_add_u32 {skvb}, {skvb}, {WS_KV}
s_lshl_b32 {sflb}, {srb}, 12
s_add_u32 {sflb}, {sflb}, {WS_FL}
v_lshlrev_b32 {vl16}, 4, {lane}""")
    for r in range(4): a(f"v_mov_b32 {vz[r]}, 0")
    a("s_waitcnt lgkmcnt(0)")
    a(f"s_cmp_ge_u32 s2, 8\ns_cbranch_scc1 L_nozero")
    a.hidden(f"""s_lshl_b32 {st0}, s2, 2
s_add_u32 {st0}, {st0}, {sw}
s_lshl_b32 {st0}, {st0}, 11
s_add_u32 {st0}, {st0}, {WS_KV}
buffer_store_dwordx4 {vz}, {vl16}, {ws}, {st0} offen sc1
buffer_store_dwordx4 {vz}, {vl16}, {ws}, {st0} offen offset:1024 sc1
L_nozero:""")
    a(f"s_cmp_lg_u32 {sw}, 1\ns_cbranch_scc1 L_nofl")
    a.hidden(f"""s_lshl_b32 {st0}, {sj}, 7
s_add_u32 {st0}, {st0}, {sflb}
v_lshrrev_b32 {t0}, 2, {lane}
v_lshlrev_b32 {t0}, 26, {t0}
v_lshl_add_u32 {t0}, {lane}, 10, {t0}
v_mov_b32 {vz[1]}, {sxcc}
buffer_store_dwordx2 {vz[0:2]}, {t0}, {ws}, {st0} offen sc1
L_nofl:""")
    k.stamp('issued')
    if HOP:
        a.hidden(f"""s_mov_b64 exec, 0
s_cmp_eq_u32 {sw}, 0
s_cbranch_scc1 L_hop0
s_cmp_eq_u32 {sw}, 1
s_cbranch_scc1 L_hop1
s_cmp_eq_u32 {sw}, 2
s_cbranch_scc1 L_hop2
s_branch L_hop3
L_back:
s_mov_b64 exec, -1""")
    vxa = v(12, 2); vsa = v(14, 2); vwa = v(16, 2); vxr = v(18, 2); vroot = v(20); vrootA = v(21); vp = v(178, 2); vw1d = v(3)
    pa = v(32, 2); va = v(34, 6)
    SB = PB + 16384
    KS = SB + 2048
    a(f"""v_lshrrev_b32 {t0}, 4, {lane}
v_and_b32 {t1}, 7, {lane}
v_xor_b32 {t2}, {t0}, {t1}
v_lshlrev_b32 {t2}, 4, {t2}
v_lshl_add_u32 {t2}, {t1}, 7, {t2}
v_bfe_u32 {t3}, {lane}, 3, 1
v_lshl_add_u32 {vxa[0]}, {t3}, 10, {t2}
v_xor_b32 {vxa[1]}, 64, {vxa[0]}
v_add_u32 {vsa[0]}, {sw11}, {vxa[0]}
v_add_u32 {vsa[1]}, {sw11}, {vxa[1]}
v_and_b32 {t2}, 1, {t0}
v_lshl_or_b32 {t2}, {t2}, 1, {t3}
v_xor_b32 {t2}, {sw}, {t2}
v_lshlrev_b32 {t2}, 5, {t2}
v_and_b32 {t3}, 3, {lane}
v_lshl_add_u32 {t2}, {t3}, 3, {t2}
v_bfe_u32 {t3}, {lane}, 2, 2
v_lshl_add_u32 {t2}, {t3}, 7, {t2}
v_mul_u32_u24 {t3}, 6144, {t0}
v_add_u32 {t2}, {t2}, {t3}
v_add_u32 {vwa[0]}, {WB}, {t2}
s_mov_b32 {sones}, 0x3f803f80
v_mov_b32 {ones[0]}, {sones}
v_mov_b32 {ones[1]}, {sones}
v_mov_b32 {ones[2]}, {sones}
v_mov_b32 {ones[3]}, {sones}""")
    later = its(f"""s_lshl_b32 {st0}, {sw}, 1
v_xor_b32 {t2}, {st0}, {t1}
v_lshlrev_b32 {t2}, 4, {t2}
v_lshl_add_u32 {t2}, {t1}, 7, {t2}
v_bfe_u32 {t3}, {lane}, 3, 2
v_lshl_add_u32 {t2}, {t3}, 10, {t2}
v_lshrrev_b32 {t3}, 5, {lane}
v_lshl_add_u32 {t2}, {t3}, 3, {t2}
v_add_u32 {vxr[0]}, {XR}, {t2}
v_xor_b32 {vxr[1]}, 16, {vxr[0]}
s_mov_b32 {seps}, {f32(1e-5)}
v_lshlrev_b32 {vrootA}, 5, {lane}
s_mul_i32 {st0}, {sw}, 1536
s_add_u32 {st0}, {st0}, {KS}
v_add_u32 {va[0]}, {st0}, {vl16}
v_lshl_add_u32 {va[1]}, {t0}, 4, {st0}
v_lshlrev_b32 {va[3]}, 2, {lane}
v_add_u32 {va[2]}, {st0}, {va[3]}
v_and_b32 {t1}, 15, {lane}
v_lshl_add_u32 {va[4]}, {t1}, 2, {st0}
v_bfe_u32 {t2}, {lane}, 2, 1
v_lshlrev_b32 {t2}, 10, {t2}
v_bfe_u32 {t1}, {lane}, 3, 1
v_lshl_add_u32 {t2}, {t1}, 9, {t2}
v_bfe_u32 {t1}, {lane}, 4, 1
v_lshl_add_u32 {t2}, {t1}, 6, {t2}
v_and_b32 {t1}, 3, {lane}
v_lshl_add_u32 {t2}, {t1}, 2, {t2}
v_add_u32 {t2}, 256, {t2}
v_lshl_add_u32 {va[5]}, {t3}, 30, {t2}""")
    later += its(f"""s_lshr_b32 {st1}, s2, 3
s_and_b32 {st0}, s2, 7
s_lshl_b32 {spsrc}, {st1}, 16
s_lshl_b32 {sdst}, {st0}, 7
s_add_u32 {spsrc}, {spsrc}, {sdst}
s_lshl_b32 {sdst}, {sw}, 14
s_add_u32 {spsrc}, {spsrc}, {sdst}
s_mul_i32 {sdst}, {st0}, {88*2048}
s_lshl_b32 {st1}, {st1}, 11
s_add_u32 {sdst}, {sdst}, {st1}
s_mul_i32 {st1}, {sw}, {22*2048}
s_add_u32 {sdst}, {sdst}, {st1}
s_add_u32 {sdst}, {sdst}, {WS_W2}
""") + [It(f"s_cmp_lt_u32 s2, 176\ns_cselect_b32 {sdst}, {sdst}, {OOB}\ns_cselect_b32 {spsrc}, {spsrc}, {OOB}", cost=2)] + its(f"""
v_lshlrev_b32 {t0}, 10, {t3}
v_bfe_u32 {t1}, {lane}, 2, 2
v_lshl_add_u32 {t0}, {t1}, 7, {t0}
v_bfe_u32 {t1}, {lane}, 3, 1
v_lshlrev_b32 {t1}, 1, {t1}
v_bfe_u32 {t2}, {lane}, 4, 1
v_or_b32 {t1}, {t1}, {t2}
v_lshl_add_u32 {t0}, {t1}, 5, {t0}
v_and_b32 {t1}, 3, {lane}
v_lshl_add_u32 {t0}, {t1}, 3, {t0}
s_add_u32 {st1}, {sw11}, {PB}
v_add_u32 {pa[0]}, {st1}, {t0}
v_xor_b32 {pa[1]}, 64, {pa[0]}
v_lshrrev_b32 {t0}, 3, {lane}
v_lshlrev_b32 {t2}, 1, {t2}
v_bfe_u32 {t1}, {lane}, 1, 2
v_xor_b32 {t1}, {t1}, {t2}
v_lshlrev_b32 {t1}, 5, {t1}
v_and_b32 {t2}, 1, {lane}
v_lshl_add_u32 {t1}, {t2}, 4, {t1}
v_lshl_add_u32 {vp[0]}, {t0}, 10, {t1}
v_add_u32 {vp[1]}, 7168, {vp[0]}
s_lshr_b32 {st0}, {sw}, 1
s_lshl_b32 {st0}, {st0}, 5
v_xor_b32 {t1}, {st0}, {t1}
v_mul_u32_u24 {t0}, 2752, {t0}
v_add_u32 {vw1d}, {t0}, {t1}
s_lshl_b32 {sxr}, {srb}, 16
s_lshl_b32 {st0}, {sw}, 14
s_add_u32 {sxr}, {sxr}, {st0}
s_lshl_b32 {st0}, {sj}, 7
s_add_u32 {sxr}, {sxr}, {st0}""")
    PD = its(f"s_add_u32 m0, {sw11}, {PB}") + [k.vm(f"buffer_load_dwordx4 {vp[i]}, {srd['w2']}, {spsrc} offen offset:{i*1024} lds", 'p') for i in range(2)]
    XD = its(f"s_add_u32 m0, {sw11}, {XR}") + [k.vm(f"buffer_load_dwordx4 {vxd[i]}, {srd['x']}, {sxr} offen offset:{i*1024} lds", 'xr') for i in range(2)]
    xf = ag(192, 64)
    def xfrag(ks, tt): b = ((ks & 3)*4 + tt)*4; return xf[b:b+4]
    wf = v(48, 48)
    def wfrag(ks, p): b = ((ks & 3)*3 + p)*4; return wf[b:b+4]
    def tr(dst, off): return [f"ds_read_b64_tr_b16 {dst[0:2]}, {vwa[0]} offset:{off}", f"ds_read_b64_tr_b16 {dst[2:4]}, {vwa[0]} offset:{off+512}"]
    def reads(c):
        o = []
        for ks in (2*c, 2*c+1):
            for p in (1, 2, 0): o += tr(wfrag(ks, p), w_lds(ks, p))
            for tt in range(4): o.append(f"ds_read_b128 {xfrag(ks, tt)}, {vxa[ks&1]} offset:{c*8192 + tt*2048}")
        return o
    sf = v(184, 16); acck = v(96, 16); accv = v(112, 16); accq = v(128, 16); csk = v(144, 4); csv = v(148, 4); csq = v(152, 4)
    rsum = v(156, 4); gram = v(160, 4); pf = v(164, 8); vsr = v(172, 4)
    nmv = v(184, 16); rlv = v(200, 16); rv = v(216, 16); qs = v(232, 8); tmp = v(240, 16)
    xres = v(24, 8)
    smA = S.alloc(2); smC = S.alloc(2)
    vt11 = v(176); vt4 = v(177)
    later = its(f"""v_lshlrev_b32 {vt4}, 7, {lane}
v_max_u32 {vt11}, 10, {lane}
v_subrev_u32 {vt11}, 10, {vt11}
v_lshl_add_u32 {vt11}, {vt11}, 24, {vt4}
v_lshrrev_b32 {vz[3]}, 2, {lane}
v_lshl_add_u32 {vt4}, {vz[3]}, 24, {vt4}""") + later
    def touch(srd_, vaddr, pre):
        def f(): a(f"buffer_load_dword v0, {vaddr}, {srd_}, {ssoff} offen").wr = set()
        return [It(pre, cost=2), It(f, kind='vmem')]
    later += its(f"""s_mov_b32 {smA[0]}, 0xaaaaaaaa
s_mov_b32 {smA[1]}, 0xaaaaaaaa
s_mov_b32 {smC[0]}, 0xcccccccc
s_mov_b32 {smC[1]}, 0xcccccccc
v_and_b32 {t0}, 15, {lane}
v_lshlrev_b32 {vsr[3]}, 3, {t0}
v_lshlrev_b32 {t0}, 2, {t0}
s_lshl_b32 {st0}, {sw}, 6
v_add_u32 {vsr[0]}, {st0}, {t0}
v_lshlrev_b32 {vsr[1]}, 1, {vsr[0]}
v_lshrrev_b32 {vsr[2]}, 4, {lane}
v_lshlrev_b32 {vsr[2]}, 4, {vsr[2]}
v_add_u32 {vsr[0]}, {SB}, {vsr[0]}
v_add_u32 {vsr[1]}, {SB}, {vsr[1]}
v_add_u32 {vsr[2]}, {SB}, {vsr[2]}
v_add_u32 {vsr[3]}, {SB}, {vsr[3]}""")
    if LAT:
        h_ = len(later) // 2; k.run(later[:h_] + take(W1_, 2) + later[h_:]); later = []
    k.run(W1_)
    if HOP: a("s_branch L_main\n.p2align 12\nL_main:")
    a.wait(tok['w', 0]); a("s_barrier"); k.stamp('first')
    for r in reads(0): a(r)
    k.run(X(2) + W(2))
    swo = spsrc; sw14 = sxr; sc0 = sj1; sw1b = sxb; sinv = srd['wqkv'][2]; sw1o = srd['wqkv'][3]
    NEXT = its(f"""s_lshl_b32 {swo}, {sw}, 17
s_lshl_b32 {st0}, {sj}, 7
s_add_u32 {swo}, {swo}, {st0}
s_lshl_b32 {sw14}, {sw}, 14
s_mul_i32 {sc0}, {sj}, 12
s_add_u32 {sc0}, {sc0}, {sw}
s_mul_i32 {sw1b}, {sw}, {8*2752}
s_mul_i32 {st0}, {sj}, 384
s_add_u32 {sw1b}, {sw1b}, {st0}""") + [It(f"s_cmp_lt_u32 {sj}, 7\ns_cselect_b32 {sinv}, 0, {OOB}", cost=2)]
    WOD = []
    for g2 in range(8):
        WOD += its(f"s_add_u32 m0, {sw14}, {g2*2048}\ns_add_u32 {sc_x}, {swo}, {g2*16384}")
        WOD += [k.vm(f"buffer_load_dwordx4 {vp[i]}, {srd['wo']}, {sc_x} offen offset:{i*1024} lds", 'wo') for i in range(2)]
    UPOS = [WB + p*12288 for p in (4, 5, 0, 1, 2, 3, 6, 7)]
    def U(ks):
        o = its(f"s_add_u32 {sc_w}, {sw1b}, {ks*32*2752}\ns_add_u32 {sw1o}, {sc_w}, {sinv}")
        for s in range(3):
            o += its(f"s_add_u32 m0, {sw10}, {UPOS[ks & 7] + s*4096 - s*128}")
            o.append(k.vm(f"buffer_load_dwordx4 {vw1d}, {srd['w1']}, {sw1o if s else sc_w} offen offset:{s*128} lds", ('u', ks)))
        return o
    BULK = U(0) + U(1) + U(2) + U(3) + WOD + U(4) + U(5)
    assert NB[0] <= 6 and NB[0] + NB[1] <= 12
    stats_at = {0: (0, 1), 1: (2,), 2: (3,), 3: (4, 5), 4: (6,), 5: (7,)}
    rootld = f"buffer_load_dword {vroot}, {vrootA}, {srd['dbg']}, 0 offen sc1"
    for c in range(8):
        need_ = ([('w', c+1), ('x', c+1)] if c < 7 else []) + [('x', cc) for cc in stats_at.get(c, ())] + (['xr'] if c == 7 else [])
        k.stamp('j%d' % c)
        for key in need_: a.wait(tok[key])
        k.stamp('k%d' % c)
        a("s_waitcnt lgkmcnt(0)\ns_barrier")
        k.stamp('i%d' % c)
        if c == 1:
            a(f"s_cmp_ge_u32 s2, 8\ns_cbranch_scc1 L_noroot\ns_cmp_lg_u32 {sw}, 0\ns_cbranch_scc1 L_noroot")
            a.hidden(f"""s_lshl_b32 {ssoff}, s2, 5
v_lshlrev_b32 {vz[0]}, 24, {lane}
v_mov_b32 {vz[1]}, 1
buffer_store_dword {vz[1]}, {vz[0]}, {srd['dbg']}, {ssoff} offen sc1
L_noroot:""")
        mf = []
        for ks in (2*c, 2*c+1):
            for tt in range(4):
                for p, acc in ((1, acck), (2, accv)):
                    d = acc[tt*4:tt*4+4]
                    mf.append(f"v_mfma_f32_16x16x32_bf16 {d}, {xfrag(ks, tt)}, {wfrag(ks, p)}, {d if ks else 0}")
            for p, acc in ((1, csk), (2, csv)):
                mf.append(f"v_mfma_f32_16x16x32_bf16 {acc}, {ones}, {wfrag(ks, p)}, {acc if ks else 0}")
        for ks in (2*c, 2*c+1):
            for tt in range(4):
                d = accq[tt*4:tt*4+4]
                mf.append(f"v_mfma_f32_16x16x32_bf16 {d}, {wfrag(ks, 0)}, {xfrag(ks, tt)}, {d if ks else 0}")
            mf.append(f"v_mfma_f32_16x16x32_bf16 {csq}, {wfrag(ks, 0)}, {ones}, {csq if ks else 0}")
        rd = []
        for i, cc in enumerate(stats_at.get(c, ())):
            for p in range(2):
                s_ = sf[(2*i+p)*4:(2*i+p)*4+4]; first = (cc == 0 and p == 0)
                rd.append(f"ds_read_b128 {s_}, {vsa[p]} offset:{cc*8192}")
                mf.append(f"v_mfma_f32_16x16x32_bf16 {rsum}, {s_}, {ones}, {0 if first else rsum}")
                mf.append(f"v_mfma_f32_16x16x32_bf16 {gram}, {s_}, {s_}, {0 if first else gram}")
        if c < 7: rd += reads(c+1)
        if c == 7:
            for tt in range(4):
                rd += [f"ds_read_b128 {nmv[tt*4:tt*4+4]}, {vsr[2]} offset:{tt*64}", f"ds_read_b128 {rlv[tt*4:tt*4+4]}, {vsr[2]} offset:{512 + tt*64}"]
            for tt in range(4):
                rd += [f"ds_read_b128 {rv[tt*4:tt*4+4]}, {vsr[2]} offset:{256 + tt*64}", f"ds_read_b64 {qs[tt*2:tt*2+2]}, {vsr[3]} offset:{768 + tt*128}"]
        if c == 7:
            rd += [f"ds_read_b64 {xres[4*H+2*e:4*H+2*e+2]}, {vxr[e]} offset:{H*4096}" for H in range(2) for e in range(2)]
            for n in range(2): rd += [f"ds_read_b64_tr_b16 {pf[n*4:n*4+2]}, {pa[n]}", f"ds_read_b64_tr_b16 {pf[n*4+2:n*4+4]}, {pa[n]} offset:512"]
        dm = {0: W(3) + X(3), 1: W(4) + X(4) + X(5), 2: W(5) + X(6), 3: W(6) + X(7), 4: W(7) + PD + XD,
              5: [k.vm(rootld)] + NEXT, 6: [], 7: []}[c]
        if c == HW:
            def f5():
                a(f"s_cmp_lg_u32 {sw}, 0\ns_cbranch_scc1 L_nob")
                a.hidden(f"s_mul_i32 {ssoff}, {sj}, 384\nbuffer_load_dword v0, {vt4}, {srd['b1']}, {ssoff} offen\ns_lshl_b32 {ssoff}, {sj}, 7\nbuffer_load_dword v0, {vt4}, {srd['b2']}, {ssoff} offen\nL_nob:")
            dm = (dm + touch(srd['w1'], vt11, f"s_lshl_b32 {ssoff}, s2, 2\ns_add_u32 {ssoff}, {ssoff}, {sw}\ns_mul_i32 {ssoff}, {ssoff}, {11*128}")
                  + touch(srd['wo'], vt4, f"s_lshl_b32 {ssoff}, s2, 2\ns_add_u32 {ssoff}, {ssoff}, {sw}\ns_lshl_b32 {ssoff}, {ssoff}, 9") + [It(f5, kind='vmem')])
        if c >= 5: dm = dm + take(BULK, NB[c-5])
        for x in dm:
            if x.kind == 'vmem': x.cost = 2
        vq = []
        if c == 6:
            vq = its(f"""v_cndmask_b32 {rsum[0]}, {rsum[0]}, {rsum[1]}, {smA}
v_cndmask_b32 {rsum[2]}, {rsum[2]}, {rsum[3]}, {smA}
v_cndmask_b32 {gram[0]}, {gram[0]}, {gram[1]}, {smA}
v_cndmask_b32 {gram[2]}, {gram[2]}, {gram[3]}, {smA}
v_cndmask_b32 {rsum[0]}, {rsum[0]}, {rsum[2]}, {smC}
v_cndmask_b32 {gram[0]}, {gram[0]}, {gram[2]}, {smC}
v_mul_f32 {rsum[0]}, {f32(-1/512)}, {rsum[0]}
v_mul_f32 {gram[0]}, {f32(1/512)}, {gram[0]}
v_fma_f32 {gram[0]}, -{rsum[0]}, {rsum[0]}, {gram[0]}
v_max_f32 {gram[0]}, 0, {gram[0]}
v_add_f32 {gram[0]}, {seps}, {gram[0]}
v_rsq_f32 {gram[0]}, {gram[0]}
v_mul_f32 {rsum[1]}, {f32(LOG2E)}, {gram[0]}""")
            vq.append(It(f"""s_mov_b32 exec_lo, 0x00f0000f
s_mov_b32 exec_hi, 0xf0000f00
ds_write_b32 {vsr[0]}, {rsum[0]} offset:0
ds_write_b32 {vsr[0]}, {gram[0]} offset:{256}
ds_write_b32 {vsr[0]}, {rsum[1]} offset:{512}
ds_write_b64 {vsr[1]}, {rsum[0:2]} offset:{768}
s_mov_b64 exec, -1""", cost=1, kind='salu'))
        if c < 4:
            n = len(later) if c == 3 else 40
            vq = later[:n]; later = later[n:]
        k.pack(mf, [rd, dm, vq] if c < 4 else [rd, vq, dm], False, vgap=VG1 if len([x for x in dm if x.kind == 'vmem'])*VG1 <= len(mf) else 3, excl=EXCL)
    k.stamp('pass1')
    sdel = smA; sln2 = smC
    a(f"s_mov_b32 {sdel[0]}, {f32(1e-6/LN2)}\ns_mov_b32 {sdel[1]}, {f32(1e-6/LN2)}\ns_mov_b32 {sln2[0]}, {f32(LN2)}\ns_mov_b32 {sln2[1]}, {f32(LN2)}")
    def phi_tail(acc, n):
        return ([f"v_exp_f32 {tmp[r]}, {acc[r]} clamp" for r in range(n)] + [f"v_max_f32 {acc[r]}, {sdel[0]}, {acc[r]}" for r in range(n)]
                + [f"v_pk_fma_f32 {acc[r:r+2]}, {acc[r:r+2]}, {sln2}, {tmp[r:r+2]}" for r in range(0, n, 2)])
    def weave(ops, nv):
        step = len(ops) // max(nv, 1)
        for i, x in enumerate(ops):
            if nv and i % step == step // 2 and i // step < nv: k.run(take(BULK, 1))
            a(x)
    pkf = v(48, 8); vf = v(56, 8)
    weave([f"v_pk_fma_f32 {acck[r:r+2]}, {nmv[r:r+2]}, {csk[0:2]}, {acck[r:r+2]}" for r in range(0, 16, 2)]
          + [f"v_pk_fma_f32 {acck[r:r+2]}, {acck[r:r+2]}, {rlv[r:r+2]}, {sdel}" for r in range(0, 16, 2)] + phi_tail(acck, 16)
          + [f"v_cvt_pk_bf16_f32 {pkf[r]}, {acck[2*r]}, {acck[2*r+1]}" for r in range(8)]
          + [f"v_pk_fma_f32 {accv[r:r+2]}, {nmv[r:r+2]}, {csv[0:2]}, {accv[r:r+2]}" for r in range(0, 16, 2)]
          + [f"v_pk_mul_f32 {accv[r:r+2]}, {accv[r:r+2]}, {rv[r:r+2]}" for r in range(0, 16, 2)]
          + [f"v_cvt_pk_bf16_f32 {vf[r]}, {accv[2*r]}, {accv[2*r+1]}" for r in range(8)], NB[3])
    dkv = v(64, 4); dz = v(68, 4); bn = v(72, 5)
    for h in range(2):
        a(f"v_mfma_f32_16x16x32_bf16 {dkv}, {pkf[h*4:h*4+4]}, {vf[h*4:h*4+4]}, {dkv if h else 0}")
        a(f"v_mfma_f32_16x16x32_bf16 {dz}, {pkf[h*4:h*4+4]}, {ones}, {dz if h else 0}")
    qops = []
    for tt in range(4): qops += [f"v_pk_fma_f32 {accq[tt*4+r:tt*4+r+2]}, {qs[tt*2:tt*2+2]}, {csq[r:r+2]}, {accq[tt*4+r:tt*4+r+2]} op_sel_hi:[0,1,1]" for r in (0, 2)]
    for tt in range(4): qops += [f"v_pk_fma_f32 {accq[tt*4+r:tt*4+r+2]}, {accq[tt*4+r:tt*4+r+2]}, {qs[tt*2:tt*2+2]}, {sdel} op_sel:[0,1,0]" for r in (0, 2)]
    qops += phi_tail(accq, 16)
    k.check(f"v_cmp_ne_u32 vcc, 0, {vroot}", 0xff, rootld, st1)
    a(f"ds_write_b128 {va[0]}, {dkv}\nds_write_b128 {va[1]}, {dz} offset:1024")
    for g in range(4): a(f"ds_read_b32 {bn[g]}, {va[2]} offset:{g*256}")
    a(f"ds_read_b32 {bn[4]}, {va[4]} offset:1024")
    k.run(qops[:16])
    for gg in range(5):
        if gg < 4: a(f"buffer_atomic_add_f32 {bn[gg]}, {va[3]}, {ws}, {skvb} offen offset:{(gg&1)*1024 + (gg>>1)*512}")
        else: a(f"buffer_atomic_add_f32 {bn[4]}, {va[5]}, {ws}, {skvb} offen")
        k.run(qops[16 + 8*gg:24 + 8*gg])
    k.stamp('atom')
    a(f"s_lshl_b32 {st0}, {srb1}, 16\ns_lshl_b32 {st1}, {shead1}, 10\ns_add_u32 {st0}, {st0}, {st1}\ns_add_u32 {st0}, {st0}, {WS_PQ}\ns_add_u32 {st1}, {st0}, 32768")
    for t32 in range(2):
        d = v(80, 8)[t32*4:t32*4+4]
        for s in range(2):
            for h in range(2):
                a(f"v_cvt_pk_bf16_f32 {d[2*s+h]}, {accq[(2*t32+s)*4+2*h]}, {accq[(2*t32+s)*4+2*h+1]}")
        for h in range(2): a(f"v_permlane16_swap_b32 {d[h]}, {d[2+h]}")
        a(f"buffer_store_dwordx4 {d}, {vl16}, {ws}, {(st0, st1)[t32]} offen sc1")
    for n in range(2): tok['pq'] = a(f"buffer_store_dwordx4 {pf[n*4:n*4+4]}, {vl16}, {ws}, {sdst} offen offset:{n*1024} sc1")
    k.stamp('pqst')
    a("s_barrier")
    UL = BULK + U(6) + U(7)
    k.run(take(UL, NU_ARR // 2))
    vw1r = v(8, 2); vwr = v(12, 2); vcA = v(14); vc = v(15); vrw = v(16, 3); vrr = v(19); vh = v(20); vst = v(21); vone = v(22); vlz = v(23)
    vfA = v(10); vfl = v(11)
    skv = srd['wqkv'][0]; spq = srd['wqkv'][1]; shb = srd['x'][0]; sstb = srd['x'][1]; se6 = sdst
    a(f"""v_bfe_u32 {t0}, {lane}, 4, 1
v_bfe_u32 {t1}, {lane}, 3, 1
v_lshl_or_b32 {t1}, {t1}, 1, {t0}
v_xor_b32 {t1}, {sw}, {t1}
v_lshlrev_b32 {t1}, 5, {t1}
v_and_b32 {t2}, 3, {lane}
v_lshl_add_u32 {t1}, {t2}, 3, {t1}
v_bfe_u32 {t2}, {lane}, 2, 2
v_lshl_add_u32 {t1}, {t2}, 7, {t1}
v_lshrrev_b32 {t3}, 5, {lane}
v_lshl_add_u32 {t1}, {t3}, 9, {t1}
v_add_u32 {vwr[0]}, {sw14}, {t1}
v_xor_b32 {vwr[1]}, 64, {vwr[0]}
v_lshl_add_u32 {t1}, {t0}, 11, {t1}
v_add_u32 {vw1r[0]}, {WB}, {t1}
v_add_u32 {vw1r[1]}, {WB + 49152}, {t1}
v_mov_b32 {vone}, 1
v_lshlrev_b32 {vlz}, 24, {lane}
v_lshlrev_b32 {t1}, 9, {lane}
v_lshl_add_u32 {vcA}, {t3}, 30, {t1}
v_lshlrev_b32 {vh}, 14, {t0}
v_lshl_add_u32 {vh}, {t3}, 9, {vh}
v_and_b32 {t1}, 15, {lane}
v_lshl_add_u32 {vh}, {t1}, 4, {vh}
v_and_b32 {t1}, 31, {lane}
v_lshlrev_b32 {t1}, 3, {t1}
v_lshl_add_u32 {vst}, {t3}, 13, {t1}
v_lshrrev_b32 {t0}, 3, {lane}
v_lshlrev_b32 {t0}, 26, {t0}
v_lshl_add_u32 {vfA}, {lane}, 7, {t0}""")
    k.run(take(UL, NU_ARR - NU_ARR // 2))
    for r in (1, 2, 3):
        a(f"s_xor_b32 {st0}, {sw}, {r}\ns_lshl_b32 {st0}, {st0}, 13\ns_add_u32 {st0}, {st0}, {r*2048}\nv_add_u32 {vrw[r-1]}, {st0}, {vl16}")
    a(f"""s_lshl_b32 {st0}, {sw}, 13
v_add_u32 {vrr}, {st0}, {vl16}
s_add_u32 {skv}, {sw14}, {WS_KV}
s_lshl_b32 {spq}, {srb}, 16
s_add_u32 {spq}, {spq}, {st0}
s_add_u32 {spq}, {spq}, {WS_PQ}
s_lshl_b32 {shb}, {srb}, 16
s_lshr_b32 {st0}, {shead}, 1
s_lshl_b32 {st0}, {st0}, 10
s_add_u32 {shb}, {shb}, {st0}
s_and_b32 {st0}, {sw}, 1
s_lshl_b32 {st0}, {st0}, 8
s_add_u32 {shb}, {shb}, {st0}
s_add_u32 {shb}, {shb}, {WS_H}
s_lshl_b32 {sstb}, {srb}, 14
s_lshl_b32 {st0}, {shead}, 8
s_add_u32 {sstb}, {sstb}, {st0}
s_add_u32 {sstb}, {sstb}, {WS_ST}
s_mov_b32 {se6}, {f32(1e-6)}
s_and_b32 {st0}, {srb1}, 3
s_lshl_b32 {st0}, {st0}, 9
s_add_u32 {st0}, {st0}, {skvb}""")
    a.wait(tok['pq'])
    a(f"buffer_atomic_add {vone}, {vlz}, {ws}, {st0} offen offset:384")
    k.stamp('arrive')
    WO = v(48, 64); KZ = v(112, 32); OF = v(144, 8); csa = v(40, 4)
    w1 = ag(0, 192)
    wor = []
    for hh in range(8):
        for t in range(2):
            d = WO[(hh*2+t)*4:(hh*2+t)*4+4]
            wor += [f"ds_read_b64_tr_b16 {d[0:2]}, {vwr[t]} offset:{hh*2048}", f"ds_read_b64_tr_b16 {d[2:4]}, {vwr[t]} offset:{hh*2048+1024}"]
    k.run(UL)
    sw2 = swo; send = sc_x; shh = [skvb, shead1]; so2 = swb; srot3 = srb1; sgab = smA; shv = srd['x'][2]
    RB = 65536; SL = RB + 4096
    a(f"""s_mul_i32 {st0}, {srb}, {2*88*1024}
s_mul_i32 {st1}, {sw}, {22*1024}
s_add_u32 {st0}, {st0}, {st1}
s_add_u32 {shv}, {st0}, {WS_HH}
s_mul_i32 {st1}, {sj}, 3072
s_add_u32 {shh[0]}, {shv}, {st1}
s_add_u32 {shh[1]}, {shh[0]}, {sinv}
s_mov_b32 {sgab[0]}, {f32(GA)}
s_mov_b32 {sgab[1]}, {f32(GA)}
s_mul_i32 {sw2}, {shead}, {22*2048}
s_add_u32 {sw2}, {sw2}, {WS_W2 if not NOW2 else OOB}
""")
    a.wait(tok['wo']); k.run(wor)
    def rd_w1(k0, k1):
        o = []
        for ks in range(k0, k1):
            for s in range(3):
                d = w1[(ks*3+s)*4:(ks*3+s)*4+4]; off = UPOS[ks & 7] - WB + s*4096
                b = vw1r[0] if off < 49152 else vw1r[1]; off %= 49152
                o += [f"ds_read_b64_tr_b16 {d[0:2]}, {b} offset:{off}", f"ds_read_b64_tr_b16 {d[2:4]}, {b} offset:{off + 1024}"]
        return o
    cload = f"buffer_load_dword {vc}, {vcA}, {ws}, {skv} offen offset:384 sc1"
    if NS1 == 2:
        a(cload)
        a.wait(tok['u', 3]); a("s_waitcnt lgkmcnt(0)\ns_barrier")
    cst = [v(44, 4), v(152, 4), v(156, 4)]; cs = v(224, 12)
    KC = 4 if NS1 == 2 else 8
    def csm(k0, k1):
        o = []
        for ks in range(k0, k1):
            for s in range(3):
                d = cst[s] if ks < KC else cs[s*4:s*4+4]
                o.append(f"v_mfma_f32_16x16x32_bf16 {d}, {w1[(ks*3+s)*4:(ks*3+s)*4+4]}, {csa}, {0 if ks == 0 else cst[s] if ks <= KC else d}")
        return o
    UB = U(8) + U(9) + U(10) + U(11); UC = U(12) + U(13) + U(14) + U(15); R47 = rd_w1(4, 8); R8 = rd_w1(8, 12); R12 = rd_w1(12, 16)
    if NS1 == 2: k.run(rd_w1(0, 4) + csm(0, 4))
    else:
        a.wait(tok['u', 1]); a("s_barrier"); k.run(rd_w1(0, 2))
        UU = UB + (UC if NS1 == 4 else [])
        for p in range(1, 2*NS1 - 3):
            if p < 4: a.wait(tok['u', 2*p + 1])
            a("s_waitcnt lgkmcnt(0)\ns_barrier")
            rr = rd_w1(2*p, 2*p + 2) if p < 4 else []; cc = csm(2*p - 2, 2*p) if p < 3 else []
            for i in range(6): k.run(take(UU, 1) + rr[2*i:2*i+2] + cc[i:i+1])
        if NS1 == 3:
            a.wait(tok['u', 7]); a("s_barrier"); k.run(rd_w1(6, 8))
        assert not UU
        UB = []; R47 = []
        if NS1 == 4: UC = []
        a(cload)
        k.run(csm(4, 8))
    k.stamp('w1a')
    k.check(f"v_cmp_eq_u32 vcc, 8, {vc}", -1, cload, st1)
    k.stamp('s1')
    PQ = ag(192, 64); ACC = v(160, 32); D = v(192, 32); KVR = v(224, 32)
    def ld(dst, sbase, off):
        o = []
        if off >= 4096: o = its(f"s_add_u32 {ssoff}, {sbase}, {off & ~4095}"); sbase = ssoff; off &= 4095
        return o + [k.vm(f"buffer_load_dwordx4 {dst}, {vl16}, {ws}, {sbase} offen offset:{off} sc1")]
    def kvr(hh): return KVR[(hh & 3)*8:(hh & 3)*8+8]
    def head_loads(hh): return ld(kvr(hh)[0:4], skv, hh*2048) + ld(kvr(hh)[4:8], skv, hh*2048 + 1024) + ld(PQ[hh*4:hh*4+4], spq, hh*1024)
    for hh in range(4): k.run(head_loads(hh))
    vxc = v(4, 2)
    a.wait(tok['u', 4*NS1 - 1])
    a(f"s_waitcnt lgkmcnt(0)\ns_barrier\nv_lshrrev_b32 {t2}, 5, {lane}\nv_lshlrev_b32 {t2}, 30, {t2}\nv_lshl_add_u32 {t2}, {lane}, 7, {t2}")
    a(f"buffer_load_dwordx2 {vxc}, {t2}, {ws}, {sflb} offen sc1")
    def store(text): return a("\n".join(l + " sc1" for l in text.split('\n')))
    ACCS = [ACC, KVR]
    def p2_units(side):
        def cvt_kv(hh): return [f"v_cvt_pk_bf16_f32 {KZ[hh*4+r]}, {kvr(hh)[2*r]}, {kvr(hh)[2*r+1]}" for r in range(4)]
        def om(n): return f"v_mfma_f32_32x32x16_bf16 {D[(n&1)*16:(n&1)*16+16]}, {KZ[(n&7)*4:(n&7)*4+4]}, {PQ[n*4:n*4+4]}, 0"
        def pm(n, t):
            d = ACCS[n >> 3][t*16:t*16+16]
            return f"v_mfma_f32_32x32x16_bf16 {d}, {WO[((n&7)*2+t)*4:((n&7)*2+t)*4+4]}, {OF[(n&1)*4:(n&1)*4+4]}, {d if n & 7 else 0}"
        k.run(cvt_kv(0)); a(om(0)); k.run(cvt_kv(1))
        for n in range(16):
            d = D[(n&1)*16:(n&1)*16+16]; o = OF[(n&1)*4:(n&1)*4+4]
            ex = list(side(n)); per = -(-len(ex) // 3)
            cv = cvt_kv(n+2) if n + 2 < 8 else []
            if n + 1 < 16: a(om(n+1))
            k.run(ex[:per])
            a(f"v_add_f32 {d[8]}, {se6}, {d[8]}\nv_rcp_f32 {d[8]}, {d[8]}")
            k.run(cv[:2])
            if n > 0: a(pm(n-1, 0))
            k.run(ex[per:2*per])
            for r in range(5): a(f"v_mul_f32 {d[r]}, {d[r]}, {d[8]}")
            if n > 0: a(pm(n-1, 1))
            k.run(ex[2*per:])
            for r in range(5, 8): a(f"v_mul_f32 {d[r]}, {d[r]}, {d[8]}")
            for r in range(4): a(f"v_cvt_pk_bf16_f32 {o[r]}, {d[2*r]}, {d[2*r+1]}")
            k.run(cv[2:])
            if n == 7: k.stamp('p2a')
        a(pm(15, 0)); a(pm(15, 1))
    def red_w(acc, base): return [f"ds_write_b128 {vrw[r-1]}, {acc[r*8+q*4:r*8+q*4+4]} offset:{base + q*1024}" for r in (1, 2, 3) for q in range(2)]
    def red_r(tm, base): return [f"ds_read_b128 {tm[(r-1)*8+q*4:(r-1)*8+q*4+4]}, {vrr} offset:{base + r*2048 + q*1024}" for r in (1, 2, 3) for q in range(2)]
    HBs = [v(32, 8), v(24, 8)]
    def flag(sync):
        k.nlab += 1; n = k.nlab
        a(f"s_cmp_lg_u32 {sw}, 3\ns_cbranch_scc1 L_nf{n}")
        a.hidden(f"""s_lshl_b32 {st0}, {sj}, 7
s_add_u32 {st0}, {st0}, {sflb}
s_cmp_eq_u32 {sxcc}, {0 if LFLAG else sxcc}
s_cbranch_scc1 L_ff{n}
buffer_store_dword {vone}, {vlz}, {ws}, {st0} offen offset:{sync*1024}
s_branch L_nf{n}
L_ff{n}:
buffer_store_dword {vone}, {vlz}, {ws}, {st0} offen offset:{sync*1024} sc1
L_nf{n}:""")
    def fload(sync): return f"buffer_load_dword {vfl}, {vfA}, {ws}, {sflb} offen offset:{sync*1024} sc1"
    def fcheck(sync): k.check(f"v_cmp_ne_u32 vcc, 0, {vfl}", 0xff, fload(sync), st1)
    pqB = [ld(PQ[(8+hh)*4:(8+hh)*4+4], spq, 32768 + hh*1024) for hh in range(8)]
    RA = R47 if NS1 == 2 else R8
    W2A = ag(192, 64); W2V = v(48, 112); vw2 = v(14, 2)
    def w2frag(n, t): i = n*2 + t; return W2V[i*4:i*4+4] if i < 28 else W2A[(i-28)*4:(i-28)*4+4]
    def w2list(ns):
        o = []
        for n in ns:
            if n % 2 == 0: o += its(f"s_add_u32 {so2}, {sw2}, {n*2048}")
            o += [k.vm(f"buffer_load_dwordx4 {w2frag(n, t)}, {vw2[t]}, {ws}, {so2} offen offset:{(n & 1)*2048} sc1") for t in range(2)]
        return o
    W2L = w2list(range(22))
    a(f"""s_and_b32 {st0}, {sw}, 1
s_lshl_b32 {st0}, {st0}, 8
s_lshr_b32 {st1}, {sw}, 1
s_lshl_b32 {st1}, {st1}, 10
s_add_u32 {st0}, {st0}, {st1}
v_xor_b32 {vw2[0]}, {st0}, {vl16}
v_xor_b32 {vw2[1]}, 1024, {vw2[0]}""")
    shs = srd['x'][3]; sst = su_ = S.alloc(); vsl = v(12)
    RWA = red_w(ACC, 0)
    def side(n):
        o = head_loads(n+4) if n < 4 else pqB[(n-4)*2] + pqB[(n-4)*2+1] if n < 8 else take(UC, 3)
        if n < 8: o += RA[3*n:3*n+3]
        elif NS1 == 4: o += R12[3*(n-8):3*(n-8)+3]
        if n >= 10: o.append(RWA[n-10])
        if n == 13: o += its(f"""s_lshl_b32 {shs}, {srb}, 16
s_add_u32 {shs}, {shs}, {sw12}
s_add_u32 {shs}, {shs}, {WS_H}
s_lshl_b32 {sst}, {srb}, 14
s_add_u32 {sst}, {sst}, {sw12}
s_add_u32 {sst}, {sst}, {WS_ST}""")
        if n == 14: o.append(It(f"v_cmp_eq_u32 vcc, {sxcc}, {vxc[1]}\ns_nop 1\ns_cmp_eq_u32 vcc_lo, -1\ns_cselect_b32 {sxcc}, 1, 0\ns_add_u32 {st1}, {shb}, 32768"))
        return o
    assert NS1 >= 3
    p2_units(side)
    k.stamp('p2b')
    TA = D[0:24]; TB = WO[0:24]; XU = WO[24:40]; stt = WO[40:44]
    for r in range(8): a(f"v_lshlrev_b32 {XU[2*r]}, 16, {xres[r]}\nv_and_b32 {XU[2*r+1]}, 0xffff0000, {xres[r]}")
    k.run(red_w(KVR, 32768))
    for H in range(2):
        for e in range(0, 8, 2): a(f"v_pk_add_f32 {ACCS[H][e:e+2]}, {ACCS[H][e:e+2]}, {XU[8*H+e:8*H+e+2]}")
    a.wait(tok['u', 15])
    a("s_waitcnt lgkmcnt(0)\ns_barrier")
    k.run(red_r(TA, 0) + red_r(TB, 32768))
    for r in range(4): a(f"v_mov_b32 {stt[r]}, 0")
    for H, tm_ in ((0, TA), (1, TB)):
        own = ACCS[H]; h4 = OF[H*4:H*4+4]
        for r in range(3):
            for e in range(0, 8, 2): a(f"v_pk_add_f32 {own[e:e+2]}, {own[e:e+2]}, {tm_[r*8+e:r*8+e+2]}")
        for r in range(4): a(f"v_cvt_pk_bf16_f32 {h4[r]}, {own[2*r]}, {own[2*r+1]}")
        store(f"buffer_store_dwordx4 {h4}, {vh}, {ws}, {(shb, st1)[H]} offen")
    for r in range(4):
        for H in range(2): a(f"v_dot2_f32_bf16 {stt[2*H]}, {OF[H*4+r]}, {sones}, {stt[2*H]}\nv_dot2_f32_bf16 {stt[2*H+1]}, {OF[H*4+r]}, {OF[H*4+r]}, {stt[2*H+1]}")
    for r in range(2): a(f"v_lshlrev_b32 {HBs[0][2*r]}, 16, {OF[r]}\nv_and_b32 {HBs[0][2*r+1]}, 0xffff0000, {OF[r]}")
    a(f"v_permlane32_swap_b32 {stt[0]}, {stt[2]}\nv_permlane32_swap_b32 {stt[1]}, {stt[3]}\nv_pk_add_f32 {stt[0:2]}, {stt[0:2]}, {stt[2:4]}")
    tok['h', 0] = store(f"buffer_store_dwordx2 {stt[0:2]}, {vst}, {ws}, {sstb} offen")
    k.stamp('pubb')
    if NS1 < 4: k.run(R12)
    b1r = v(160, 6); b2 = v(166, 4); vb = v(170, 2)
    vsw = v(13); vrn = v(3); vgb = v(20, 2); tm = v(212, 12); b1f = v(236, 12)
    for r in range(2, 8): a(f"v_lshlrev_b32 {HBs[r >> 2][2*(r&3)]}, 16, {OF[r]}\nv_and_b32 {HBs[r >> 2][2*(r&3)+1]}, 0xffff0000, {OF[r]}")
    a(f"v_lshrrev_b32 {vb[0]}, 4, {lane}\nv_lshlrev_b32 {vb[0]}, 3, {vb[0]}\nv_lshrrev_b32 {vb[1]}, 5, {lane}\nv_lshlrev_b32 {vb[1]}, 3, {vb[1]}\ns_lshl_b32 {st0}, {sc0}, 5\ns_lshl_b32 {st1}, {shead}, 5")
    for i in range(3): a(f"buffer_load_dwordx2 {b1r[2*i:2*i+2]}, {vb[0]}, {srd['b1']}, {st0} offen offset:{i*128}")
    for e in range(2): a(f"buffer_load_dwordx2 {b2[2*e:2*e+2]}, {vb[1]}, {srd['b2']}, {st1} offen offset:{e*16}")
    setup = its(f"""v_and_b32 {vsw}, 56, {lane}
v_and_b32 {vsl}, 7, {lane}
v_mul_u32_u24 {vsl}, 1088, {vsl}
v_add_u32 {vsl}, {vsl}, {vsw}
s_lshl_b32 {st0}, {sw}, 6
s_add_u32 {st1}, {st0}, {SL}
v_add_u32 {vsl}, {st1}, {vsl}
s_add_u32 {st0}, {st0}, {RB}
v_add_u32 {vsw}, {st0}, {vsw}
v_mov_b32 {vgb[0]}, {f32(GB)}
v_mov_b32 {vgb[1]}, {f32(GB)}
v_and_b32 {vrn}, 15, {lane}
v_lshlrev_b32 {vrn}, 3, {vrn}
v_add_u32 {vrn}, {RB}, {vrn}""")
    k.pack(csm(KC, 16), [take(W2L, W2N[0]), setup], False, vgap=4)
    a.wait(tok['h', 0]); a("s_barrier"); flag(0)
    k.stamp('ack')
    for r in range(4): a(f"v_lshlrev_b32 {tm[2*r]}, 16, {b2[r]}\nv_and_b32 {tm[2*r+1]}, 0xffff0000, {b2[r]}")
    for H in range(2):
        for e in range(0, 8, 2): a(f"v_pk_add_f32 {HBs[H][e:e+2]}, {HBs[H][e:e+2]}, {tm[e:e+2]}")
    for i in range(3):
        for h in range(2): a(f"v_lshlrev_b32 {b1f[i*4+2*h]}, 16, {b1r[2*i+h]}\nv_and_b32 {b1f[i*4+2*h+1]}, 0xffff0000, {b1r[2*i+h]}")
    a(fload(0)); fcheck(0)
    k.stamp('s2')
    def dma_h(tt):
        return (its(f"s_add_u32 m0, {sw12}, {tt*16384}\ns_add_u32 {ssoff}, {shs}, {tt*16384}")
                + [k.vm(f"buffer_load_dwordx4 {vl16}, {ws}, {ssoff} offen offset:{i*1024} sc1 lds", ('ht', tt)) for i in range(4)])
    svs = [v(200, 8), v(152, 8)]
    def stat_reads(H): return [f"ds_read_b64 {svs[H][2*q:2*q+2]}, {vsl} offset:{H*8704 + q*256}" for q in range(4)]
    SD = its(f"s_mul_i32 {st0}, {sw}, 4352")
    for q in range(4): SD += its(f"s_add_u32 m0, {st0}, {SL + q*64}") + [k.vm(f"buffer_load_dwordx4 {vl16}, {ws}, {sst} offen offset:{q*1024} sc1 lds", ('st', 0))]
    k.run(dma_h(0) + SD + dma_h(1))
    HL = dma_h(2) + dma_h(3)
    k.run(take(HL, NHL))
    acc3 = v(160, 24); hf = v(184, 16); pk = v(200, 12); rn = v(248, 8)
    def stat_math():
        L = []
        for H in range(2):
            s = svs[H]
            L.append([f"v_add_f32 {s[d_+e]}, {s[d_+e]}, {s[o_+e]}" for d_, o_ in ((0, 2), (4, 6), (0, 4)) for e in range(2)]
                     + [x for d in (DPP_X1, DPP_X2, DPP_HM) for x in (f"v_add_f32 {s[0]}, {s[0]}, {s[0]} {d}", f"v_add_f32 {s[1]}, {s[1]}, {s[1]} {d}")]
                     + f"""v_mul_f32 {s[0]}, {f32(1/512)}, {s[0]}
v_mul_f32 {s[1]}, {f32(1/512)}, {s[1]}
v_fma_f32 {s[1]}, -{s[0]}, {s[0]}, {s[1]}
v_max_f32 {s[1]}, 0, {s[1]}
v_add_f32 {s[2]}, {seps}, {s[1]}
v_rsq_f32 {s[2]}, {s[2]}
v_mul_f32 {s[3]}, {s[2]}, {s[2]}
v_fma_f32 {s[3]}, {s[3]}, {s[1]}, {seps}
v_rsq_f32 {s[3]}, {s[3]}
v_mul_f32 {s[2]}, {s[2]}, {s[3]}
v_mul_f32 {s[3]}, -{s[2]}, {s[0]}
ds_write_b64 {vsw}, {s[2:4]} offset:{H*256}""".split('\n'))
        return [z for xy in zip(*L) for z in xy]
    def epi1(tt):
        ac = acc3[(tt&1)*12:(tt&1)*12+12]; p = rn[tt*2:tt*2+2]
        for e in range(0, 12, 2): a(f"v_pk_fma_f32 {tm[e:e+2]}, {p}, {cs[e:e+2]}, {b1f[e:e+2]} op_sel:[1,0,0]")
        for e in range(0, 12, 2): a(f"v_pk_fma_f32 {ac[e:e+2]}, {p}, {ac[e:e+2]}, {tm[e:e+2]} op_sel_hi:[0,1,1]")
        for e in range(0, 12, 2): a(f"v_pk_mul_f32 {tm[e:e+2]}, {ac[e:e+2]}, {ac[e:e+2]}")
        for e in range(0, 12, 2): a(f"v_pk_fma_f32 {tm[e:e+2]}, {tm[e:e+2]}, {sgab}, {vgb}")
        for e in range(0, 12, 2): a(f"v_pk_mul_f32 {tm[e:e+2]}, {tm[e:e+2]}, {ac[e:e+2]}")
    def epi2(tt, packed=False):
        add = [f"v_pk_add_f32 {tm[e:e+2]}, {tm[e:e+2]}, 1.0 op_sel_hi:[1,0]" for e in range(0, 12, 2)] if packed else [f"v_add_f32 {tm[e]}, 1.0, {tm[e]}" for e in range(12)]
        return [f"v_exp_f32 {tm[e]}, {tm[e]}" for e in range(12)] + add + [f"v_rcp_f32 {tm[e]}, {tm[e]}" for e in range(12)]
    def epi3(tt):
        ac = acc3[(tt&1)*12:(tt&1)*12+12]
        for e in range(0, 12, 2): a(f"v_pk_mul_f32 {ac[e:e+2]}, {ac[e:e+2]}, {tm[e:e+2]}")
        for i in range(3):
            for h in range(2): a(f"v_cvt_pk_bf16_f32 {pk[i*4+(tt&1)*2+h]}, {ac[i*4+2*h]}, {ac[i*4+2*h+1]}")
        if tt & 1:
            for i in range(3):
                for h in range(2): a(f"v_permlane16_swap_b32 {pk[i*4+h]}, {pk[i*4+2+h]}")
            if tt == 3: a(f"s_add_u32 {shh[0]}, {shh[0]}, {88*1024}\ns_add_u32 {shh[1]}, {shh[1]}, {88*1024}")
            tok['hh', tt >> 1] = store("\n".join(f"buffer_store_dwordx4 {pk[i*4:i*4+4]}, {vl16}, {ws}, {shh[min(i, 1)]} offen offset:{i*1024}" for i in range(3)))
    def rd(n): return f"ds_read_b128 {hf[(n&3)*4:(n&3)*4+4]}, {vl16} offset:{n*1024}"
    def rnrd(tt): return f"ds_read_b64 {rn[tt*2:tt*2+2]}, {vrn} offset:{tt*128}"
    a.wait(tok['ht', 0]); a("s_barrier")
    for n in range(3): a(rd(n))
    k.stamp('t0')
    def bar(*keys, more=None):
        def f():
            k.stamp('x%s%s' % keys[0])
            for key in keys: a.wait(tok[key])
            k.stamp('y%s%s' % keys[0])
            a("s_barrier")
            k.stamp('z%s%s' % keys[0])
            if more: more()
        return It(f, cost=2, kind='salu')
    for tt in range(4):
        mf = []; rq = []
        for ks in range(16):
            n = tt*16 + ks
            for i in range(3):
                d = acc3[(tt&1)*12+i*4:(tt&1)*12+i*4+4]
                mf.append(f"v_mfma_f32_16x16x32_bf16 {d}, {w1[(ks*3+i)*4:(ks*3+i)*4+4]}, {hf[(n&3)*4:(n&3)*4+4]}, {d if ks else 0}")
            if tt == 0 and ks == SK:
                x = bar(('st', 0)); x.after = 3*ks - 2; rq.append(x)
                rq += [It(y, after=3*ks - 1) for y in stat_reads(0) + stat_reads(1)]
            if ks == 13 and tt in (1, 2):
                x = bar(('ht', tt+1)); x.after = 3*ks - 2; rq.append(x)
            if n + 3 < 64 and not (tt == 0 and ks >= 13): rq.append(It(rd(n + 3) + "\ns_waitcnt lgkmcnt(2)", cost=3 if tt in (1, 3) else 2, after=3*ks, by=3*ks + 6))
        vq = take(W2L, W2N[tt+1])
        if tt == 0: vq = HL + vq
        fq = []
        if tt == 0:
            fq = [It(x, after=3*SK + 4) for x in stat_math()]
            fq += [It(lambda: (a.wait(tok['ht', 1]), a("s_waitcnt lgkmcnt(0)\ns_barrier")), cost=3, kind='salu', after=46)] + [rnrd(0), rd(16), rd(17), rd(18), rnrd(1), rnrd(2), rnrd(3)]
        if tt == 2:
            for x in vq: x.after = G2
        if tt == 3: vq = take(vq, 4) + [k.vm(fload(2), after=F5)] + vq
        k.pack(mf, [rq, vq, fq, epi2(tt-1) if tt in (1, 3) else []], False, vgap=VG3)
        k.stamp('m%d' % tt)
        if tt == 3: break
        if tt == 1:
            epi3(0); k.run(take(W2L, 1)); epi1(1); k.run(take(W2L, 1)); k.run(epi2(1, True)); epi3(1)

        else:
            epi1(tt)
        if tt == 2: k.emit(bar(('hh', 0), more=lambda: flag(2)))
        k.stamp('e%d' % tt)
    HH = ag(0, 176); acc4 = v(160, 64); tm4 = v(224, 24); ob = v(248, 4)
    vo = v(12); sob = shb; so4 = srd['x'][3]; send4 = srd['x'][1]
    def ld_hh(H):
        o = []
        for n in range(22):
            if n % 4 == 0: o += its(f"s_add_u32 {so4}, {shv}, {H*88*1024 + n*1024}")
            o.append(k.vm(f"buffer_load_dwordx4 {HH[(H*22+n)*4:(H*22+n)*4+4]}, {vl16}, {ws}, {so4} offen offset:{(n % 4)*1024} sc1"))
        return o
    def p4_mf(H):
        o = []
        for n in range(22):
            for t in range(2):
                d = acc4[H*32+t*16:H*32+t*16+16]
                o.append(f"v_mfma_f32_32x32x16_bf16 {d}, {w2frag(n, t)}, {HH[(H*22+n)*4:(H*22+n)*4+4]}, {d if n else 0}")
        return o
    def p4_epi(H, packed):
        own = acc4[H*32:H*32+8]; o = []
        if packed:
            o += [f"v_pk_add_f32 {own[e:e+2]}, {own[e:e+2]}, {HBs[H][e:e+2]}" for e in range(0, 8, 2)]
            o += [f"v_pk_add_f32 {own[e:e+2]}, {own[e:e+2]}, {tm4[r*8+e:r*8+e+2]}" for r in range(3) for e in range(0, 8, 2)]
        else:
            o += [f"v_add_f32 {own[e]}, {own[e]}, {HBs[H][e]}" for e in range(8)]
            o += [f"v_add_f32 {own[e]}, {own[e]}, {tm4[r*8+e]}" for r in range(3) for e in range(8)]
        o += [f"v_cvt_pk_bf16_f32 {ob[r]}, {own[2*r]}, {own[2*r+1]}" for r in range(4)]
        o += [f"v_permlane32_swap_b32 {ob[h]}, {ob[2+h]}" for h in range(2)]
        if H: o.append(f"s_add_u32 {sob}, {sob}, 32768")
        o.append(f"buffer_store_dwordx4 {ob}, {vo}, {srd['out']}, {sob} offen {OUTP}")
        return o
    LA = ld_hh(0); LB = ld_hh(1)
    class Rec:
        def __init__(s): s.l = []
        def __call__(s, t): s.l += [x for x in t.split('\n') if x.strip()]
    real = a; a = Rec(); epi3(2); epi1(3); tail = a.l + epi2(3, True); a = real
    fcheck(2)
    step = len(tail) // NLA
    for i, x in enumerate(tail):
        if i % step == 0 and i // step < NLA: k.run(take(LA, 1))
        a(x)
    epi3(3)
    k.stamp('p3e')
    a(f"""v_and_b32 {t0}, 31, {lane}
v_lshlrev_b32 {vo}, 10, {t0}
v_lshrrev_b32 {t0}, 5, {lane}
v_lshl_add_u32 {vo}, {t0}, 4, {vo}
s_lshl_b32 {sob}, {srb}, 16
s_lshl_b32 {st0}, {shead}, 5
s_add_u32 {sob}, {sob}, {st0}""")
    if FAKEOUT: a(f"v_lshrrev_b32 {t0}, 3, {lane}\nv_lshlrev_b32 {vo}, 10, {t0}\nv_and_b32 {t0}, 7, {lane}\nv_lshl_add_u32 {vo}, {t0}, 4, {vo}\ns_lshl_b32 {sob}, {srb}, 16\ns_lshl_b32 {st0}, {sj}, 7\ns_add_u32 {sob}, {sob}, {st0}\ns_lshl_b32 {st0}, {sw}, 13\ns_add_u32 {sob}, {sob}, {st0}")
    nleft = len([x for x in W2L if x.kind == 'vmem']); assert nleft <= 8, nleft; print('W2 left', nleft, file=sys.stderr)
    mfa = p4_mf(0)
    assert F4c <= 2*NLA
    k.run(mfa[:F4])
    k.pack(mfa[F4:F4b], [LA + W2L], True)
    k.emit(bar(('hh', 1), more=lambda: flag(3)))
    k.run(mfa[F4b:F4c])
    a(fload(3)); fcheck(3)
    k.stamp('s3b')
    k.pack(mfa[F4c:], [take(LB, (44 - F4c) // 2)], True, reserve=lambda i: 1, vgap=2)
    k.stamp('p4a')
    for x in red_w(acc4[0:32], 0):
        a(x); k.run(take(LB, 1))
    a("s_waitcnt lgkmcnt(0)\ns_barrier")
    mfb = p4_mf(1); rwb = red_w(acc4[32:64], 32768)
    mfb = mfb[:44-2*TL] + mfb[45-2*TL::2] + mfb[44-2*TL::2]
    k.pack(mfb[:44-TL+2], [LB, red_r(tm4, 0), [It(x, after=8) for x in p4_epi(0, False)]], True, reserve=lambda i: 1, vgap=2)
    for i, m in enumerate(mfb[44-TL+2:]):
        a(m); k.run(rwb[2+i:3+i] if i < 4 else [])
    k.stamp('p4b')
    k.run(rwb[2+TL-2:] + rwb[:2])
    a("s_waitcnt lgkmcnt(0)\ns_barrier")
    k.run(red_r(tm4, 32768))
    k.run(p4_epi(1, True))
    if STAMPS:
        a("s_waitcnt vmcnt(0)"); STAMPS.append('end'); k.stamp('end')
        t = f"s_memrealtime {rt[2:4]}\ns_waitcnt lgkmcnt(0)\nv_mov_b32 {t0}, {sw}\nv_lshlrev_b32 {t0}, 28, {t0}\ns_lshl_b32 {st0}, s2, 6\ns_add_u32 {st0}, {st0}, {WS_DBG}\n"
        for i in range(1, len(k.stamped)):
            t += f"s_sub_u32 {st1}, {k.str_[2*i]}, {k.str_[0]}\nv_mov_b32 {t1}, {st1}\nbuffer_store_dword {t1}, {t0}, {ws}, {st0} offen offset:{4*i}\n"
        t += f"v_mov_b32 {t1}, {rt[0]}\nbuffer_store_dword {t1}, {t0}, {ws}, {st0} offen offset:56\n"
        t += f"v_mov_b32 {t1}, {rt[2]}\nbuffer_store_dword {t1}, {t0}, {ws}, {st0} offen offset:60\n"
        a.hidden(t)
        print('stamps:', k.stamped[1:], file=sys.stderr)
    a("L_end:\ns_endpgm")
    return a.finish(), S.peak

def place_hops(body):
    import subprocess, re
    lines = body.split('\n'); m = lines.index('L_main:')
    tail = [l for l in lines[m+1:] if l.strip()]
    txt = '.amdgcn_target "amdgcn-amd-amdhsa--gfx950"\n.text\n' + '\n'.join(tail) + '\n'
    open('_h.s', 'w').write(txt)
    subprocess.run(['clang', '-x', 'assembler', '-target', 'amdgcn-amd-amdhsa', '-mcpu=gfx950', '-c', '_h.s', '-o', '_h.o'], check=True)
    dis = subprocess.run(['llvm-objdump', '-d', '--mcpu=gfx950', '_h.o'], capture_output=True, text=True).stdout
    addr = [int(x, 16) for x in re.findall(r'// ([0-9A-F]{12}):', dis)]
    ins = [i for i, l in enumerate(tail) if not l.endswith(':')]
    assert len(addr) == len(ins)
    out = []; nh = 0; pos = dict(zip(ins, addr)); hops = []
    for i, l in enumerate(tail):
        if i in pos and pos[i] + 4*nh >= 4096*nh:
            hops.append(len(out)); out.append(None); nh += 1
        out.append(l)
    assert 4 <= nh <= 8, nh
    for h, at in enumerate(hops): out[at] = f"L_hop{h}:\n    s_cbranch_execz {'L_hop%d' % (h + 4) if h + 4 < nh else 'L_back'}"
    return '\n'.join(lines[:m+1] + out) + '\n'

def assemble():
    hdr = open('cdna_kernels/' + NAME + '.s.ref').read().split('; Override')[0]
    body, sp = kernel()
    print('sgpr', sp, 'lines', body.count('\n'), 'nops', body.count('s_nop'), file=sys.stderr)
    n = NAME + '_kernel'
    if HOP: body = place_hops(body)
    return (hdr + "; @launch grid=(256,1,1) block=(256,1,1) lds=163840\n" + '.amdgcn_target "amdgcn-amd-amdhsa--gfx950"\n.text\n'
            + f".globl {n}\n.p2align 8\n.type {n},@function\n{n}:\n{body}" + '.section .rodata,"a"\n.p2align 6\n' + descriptor(n, 512, 256))

if __name__ == '__main__':
    for x in sys.argv[3:]: exec(x)
    if len(sys.argv) > 2 and sys.argv[2] != '-': STAMPS = sys.argv[2].split(',')
    open(sys.argv[1], 'w').write(assemble())
```

```python
from asmlib import *
import struct, sys
def f32(x): return '0x%08x' % struct.unpack('<I', struct.pack('<f', x))[0]
NAME = 'sequential_preLN__linear_attn_block__mixer_channel_mlp__prompt'
WS_PQ = 0
WS_W2 = WS_PQ + (2 << 20)
WS_KV = WS_W2 + 8 * 88 * 2048
WS_H  = WS_KV + 65536
WS_ST = WS_H + (2 << 20)
WS_HH = WS_ST + 32 * 16384
WS_FL = WS_HH + 32 * 2 * 88 * 1024
WS_END = WS_FL + 32 * 4096
WS_DBG = WS_END
OOB = 0x7ff00000
LOG2E = 1.4426950408889634; LN2 = 0.6931471805599453
GA = -2 * 0.7978845608028654 * 0.044715 * LOG2E
GB = -2 * 0.7978845608028654 * LOG2E
KA = dict(x=0, wqkv=8, wo=16, w1=32, b1=40, w2=48, b2=56, out=64, dbg=72, ws=80)
SZ = dict(x=2048*512*2, wqkv=512*1536*2, wo=512*512*2, w1=512*1376*2, b1=1376*2, w2=1376*512*2, b2=512*2,
          out=2048*512*2, dbg=256, ws=WS_END + 16384)
DPP_X1 = 'quad_perm:[1,0,3,2] row_mask:0xf bank_mask:0xf'
DPP_X2 = 'quad_perm:[2,3,0,1] row_mask:0xf bank_mask:0xf'
DPP_HM = 'row_half_mirror row_mask:0xf bank_mask:0xf'
SPIN = 0x40000
STAMPS = None
D1 = 2
D2 = 1
AH = 10
VG1 = 4
FA = 6
F3 = 40
F4 = 20; F4b = 26; F4c = 32; TL = 5
EARLY = 1
UBA = 1
PACE = 1
LOCH = 1
HOP = 1
EXCL = 1
LAT = 1
XT = 0
NB = (0, 6, 6, 0, 0, 4); NQ = 2; AT0 = 6; PRE1 = 2
RTS = 0
DX = 1; RT = 6; QL = 0; QD = 10
NHL = 4; SK = 5; FAKEOUT = 0
HA = 1; FH = 12
W2P = 8
G2 = 26; F5 = 26; NLA = 16; OUTP = ''
FB1 = 48
NOW2 = 0; NOW1 = 0
red_w_last = None
NU_ARR = 8
PRE = 2
NS1 = 3
W2N = (8, 7, 11, 6, 10)
W2E = 2
VG3 = 4
HW = 4
T1 = ()
T2 = 0
LFLAG = 1

def v(b, n=1): return R('v', b, n)
def ag(b, n=1): return R('a', b, n)

class It:
    def __init__(self, x, cost=None, kind=None, after=0, by=None):
        self.x = x; self.after = after; self.by = by
        self.dw = 2 if isinstance(x, str) and 'b128' in x.split()[0] else 1
        if kind is None:
            mn = x.split()[0]
            kind = ('trans' if mn.startswith(TRANS) else 'valu' if mn.startswith('v_') else 'ds' if mn.startswith('ds_')
                    else 'vmem' if mn.startswith(('buffer', 'global')) else 'salu')
        self.kind = kind
        self.cost = cost if cost is not None else {'trans': 2, 'valu': 1, 'ds': 1, 'vmem': 3, 'salu': 1}.get(kind, 1)
def its(text, after=0): return [It(l.strip(), after=after) for l in text.split('\n') if l.strip()]

class K:
    def __init__(self):
        self.a = Asm(); self.S = Regs('s', 4, 102); self.nlab = 0
        self.stamped = []; self.tok = {}
    def emit(self, x):
        if isinstance(x, It): x = x.x
        if callable(x): return x()
        return self.a(x)
    def run(self, items):
        for x in items: self.emit(x)
    def vm(self, text, key=None, after=0):
        def f():
            t = self.a(text)
            if key is not None: self.tok[key] = t
        return It(f, kind='vmem', after=after)
    def pack(self, mf, queues, big, reserve=None, vgap=0, excl=False):
        qs = [[x if isinstance(x, It) else It(x) for x in q] for q in queues]
        cap, vcap, dcap = (7, 6, 4) if big else (3, 2, 2)
        lastv = -99
        for i, m in enumerate(mf):
            for q in qs:
                late = [n for n, x in enumerate(q) if x.by is not None and x.by <= i]
                if late:
                    assert all(x.after < i for x in q[:late[-1] + 1])
                    self.run(q[:late[-1] + 1]); del q[:late[-1] + 1]
            self.emit(m)
            s = cap - (reserve(i) if reserve else 0); vs = vcap; d = dcap
            if excl:
                hit = [q for q in qs if q and q[0].kind == 'vmem' and q[0].after <= i and i - lastv >= vgap]
                nds = sum(x.kind == 'ds' for q in qs for x in q)
                if hit and nds < len(mf) - i - 2:
                    self.emit(hit[0].pop(0)); lastv = i; continue
            for q in qs:
                while q:
                    x = q[0]
                    if x.after > i or x.cost > s: break
                    if x.kind in ('valu', 'trans') and x.cost > vs: break
                    if x.kind == 'ds' and (x.dw > d or (excl and d < dcap)): break
                    if x.kind == 'vmem' and excl: break
                    if x.kind == 'vmem' and i - lastv < vgap: break
                    q.pop(0); self.emit(x); s -= x.cost
                    if x.kind in ('valu', 'trans'): vs -= x.cost
                    if x.kind == 'trans' and not big: s = 0
                    if x.kind == 'ds': d -= x.dw
                    if x.kind == 'vmem': lastv = i
        left = sum(len(q) for q in qs)
        for q in qs: self.run(q)
        return left
    def stamp(self, name):
        if STAMPS and name in STAMPS:
            n = len(self.stamped); self.stamped.append(name)
            self.a.hidden(f"{'s_memrealtime' if RTS else 's_memtime'} {self.str_[2*n:2*n+2]}")
    def check(self, cmp_, mask, reload, st1):
        a = self.a; self.nlab += 1; n = self.nlab
        a(cmp_)
        a(f"s_cmp_eq_u32 vcc_lo, {mask}\ns_cbranch_scc1 L_ok{n}")
        a.hidden(f"""s_mov_b32 {st1}, 0
L_spin{n}:
{reload}
s_add_u32 {st1}, {st1}, 1
s_waitcnt vmcnt(0)
{cmp_}
s_cmp_ge_u32 {st1}, {SPIN}
s_cbranch_scc1 L_ok{n}
s_nop 1
s_cmp_eq_u32 vcc_lo, {mask}
s_cbranch_scc0 L_spin{n}
L_ok{n}:""")

def kernel():
    k = K(); a = k.a; S = k.S; tok = k.tok
    a("s_cmp_ge_u32 s2, 256\ns_cbranch_scc1 L_end")
    if STAMPS:
        k.str_ = S.alloc(2*len(STAMPS) + 4, 4); rt = S.alloc(4, 4)
        a.hidden(f"s_memrealtime {rt[0:2]}")
        STAMPS.insert(0, 'start')
    k.stamp('start')
    srd = {}
    for n in ['x', 'wqkv', 'ws', 'dbg', 'wo', 'w1', 'w2', 'b1', 'b2', 'out']: srd[n] = S.alloc(4)
    for n in ['x', 'wqkv']: a(f"s_load_dwordx2 {srd[n][0:2]}, s[0:1], {KA[n]}")
    for n in ['x', 'wqkv']: a(f"s_mov_b32 {srd[n][2]}, {SZ[n]}\ns_mov_b32 {srd[n][3]}, 0x00020000")
    ws = srd['ws']
    st0, st1, ssoff, sw, sj, srb, shead, sj1, srb1, shead1 = [S.alloc() for _ in range(10)]
    sxb, swb, sw10, sw11, sw12, srot, sc_x, sc_w, sw6k = [S.alloc() for _ in range(9)]
    lane, vl16, t0, t1, t2, t3 = v(1), v(2), v(4), v(5), v(6), v(7)
    vxd = v(8, 2); vwd = v(10, 2)
    a(f"""v_and_b32 {lane}, 63, v0
v_lshrrev_b32 {t0}, 6, v0
v_readfirstlane_b32 {sw}, {t0}
s_and_b32 {sj1}, s2, 1
s_lshl_b32 {sj1}, {sj1}, 2
s_bfe_u32 {st0}, s2, 0x20003
s_add_u32 {sj1}, {sj1}, {st0}
s_bfe_u32 {srb1}, s2, 0x20001
s_lshl_b32 {srb1}, {srb1}, 3
s_lshr_b32 {st0}, s2, 5
s_add_u32 {srb1}, {srb1}, {st0}
v_lshrrev_b32 {t0}, 3, {lane}
v_and_b32 {t1}, 7, {lane}
v_xor_b32 {t2}, {t0}, {t1}
v_lshlrev_b32 {t2}, 4, {t2}
v_lshl_add_u32 {vxd[0]}, {t0}, 10, {t2}
v_add_u32 {vxd[1]}, 7168, {vxd[0]}
v_bfe_u32 {t2}, {lane}, 4, 1
s_and_b32 {st0}, {sw}, 1
s_lshl_b32 {st0}, {st0}, 1
v_or_b32 {t2}, {st0}, {t2}
v_lshrrev_b32 {t3}, 1, {t1}
v_xor_b32 {t2}, {t2}, {t3}
v_lshlrev_b32 {t2}, 5, {t2}
v_and_b32 {t3}, 1, {lane}
v_lshl_add_u32 {t2}, {t3}, 4, {t2}
v_mul_u32_u24 {vwd[0]}, 3072, {t0}
v_add_u32 {vwd[0]}, {vwd[0]}, {t2}
v_add_u32 {vwd[1]}, 98304, {vwd[0]}
s_lshl_b32 {sxb}, {srb1}, 16
s_lshl_b32 {st0}, {sw}, 14
s_add_u32 {sxb}, {sxb}, {st0}
s_mul_i32 {swb}, {sw}, {8*3072}
s_lshl_b32 {st0}, {sj1}, 7
s_add_u32 {swb}, {swb}, {st0}
s_lshl_b32 {sw10}, {sw}, 10
s_lshl_b32 {sw11}, {sw}, 11
s_lshl_b32 {sw12}, {sw}, 12
s_mul_i32 {sw6k}, {sw}, 6144
s_add_u32 {srot}, {srb1}, {sj1}
s_and_b32 {srot}, {srot}, {D1 - 1}
s_mul_i32 {srot}, {srot}, {8 // D1}""")
    if DX == 1: a(f"s_bfe_u32 {st0}, s2, 0x20001\ns_add_u32 {srot}, {srot}, {st0}\ns_and_b32 {st0}, s2, 1\ns_lshl_b32 {st0}, {st0}, 1\ns_add_u32 {srot}, {srot}, {st0}")
    if DX == 2: a(f"s_bfe_u32 {st0}, s2, 0x10001\ns_add_u32 {srot}, {srot}, {st0}")
    if DX == 3: a(f"s_bfe_u32 {st0}, s2, 0x20001\ns_lshl_b32 {st0}, {st0}, 1\ns_add_u32 {srot}, {srot}, {st0}\ns_and_b32 {st0}, s2, 1\ns_add_u32 {srot}, {srot}, {st0}")
    WB = 65536; PB = WB + 3 * 24576; XR = PB + 8192
    def X(c):
        return (its(f"s_add_u32 {sc_x}, {srot}, {c}\ns_and_b32 {sc_x}, {sc_x}, 7\ns_lshl_b32 {sc_x}, {sc_x}, 7\ns_add_u32 {sc_x}, {sc_x}, {sxb}\ns_add_u32 m0, {sw11}, {c*8192}")
                + [k.vm(f"buffer_load_dwordx4 {vxd[o]}, {srd['x']}, {sc_x} offen offset:{o*1024} lds", ('x', c)) for o in range(2)])
    def wrot(c, add): return f"s_add_u32 {sc_w}, {srot}, {c}\ns_and_b32 {sc_w}, {sc_w}, 7\ns_mul_i32 {sc_w}, {sc_w}, {64*3072}\ns_add_u32 {sc_w}, {sc_w}, {swb}\n" + (f"s_add_u32 {sc_w}, {sc_w}, {add}\n" if add else "")
    def W(c):
        o = its(wrot(c, 0))
        for h in range(2):
            o += its(f"s_add_u32 m0, {sw6k}, {WB + (c % 3)*24576 + h*3072}")
            o += [k.vm(f"buffer_load_dwordx4 {vwd[h]}, {srd['wqkv']}, {sc_w} offen offset:{p*1024} lds", ('w', c)) for p in range(3)]
        return o
    def w_lds(ks, p): return ((ks // 2) % 3) * 24576 + (ks & 1) * 3072 + p * 1024
    def take(lst, nv):
        o = []
        while lst and nv:
            x = lst.pop(0); o.append(x)
            if x.kind == 'vmem': nv -= 1
        return o
    def hops(r):
        a.hidden(f"s_mov_b64 exec, 0\n" + "".join(f"s_cmp_eq_u32 {sw}, {w}\ns_cbranch_scc1 L_hop{3*r + w}\n" for w in range(3)) + f"L_back{r}:\ns_mov_b64 exec, -1")
    a("s_waitcnt lgkmcnt(0)"); k.stamp('karg')
    k.run(X(0) + W(0))
    if XT:
        a(f"v_lshrrev_b32 {t0}, 4, {lane}\nv_lshlrev_b32 {t0}, 24, {t0}\nv_lshl_add_u32 {t0}, {lane}, 7, {t0}\ns_lshl_b32 {st0}, s2, 13\ns_add_u32 {st0}, {st0}, {sw11}")
        a(f"buffer_load_dword v0, {t0}, {srd['x']}, {st0} offen").wr = set()
    if XT > 1:
        a(f"v_max_u32 {t0}, 11, {lane}\nv_subrev_u32 {t0}, 11, {t0}\nv_lshlrev_b32 {t0}, 24, {t0}\nv_lshl_add_u32 {t0}, {lane}, 7, {t0}\ns_lshl_b32 {st0}, s2, 2\ns_add_u32 {st0}, {st0}, {sw}\ns_mul_i32 {st0}, {st0}, 1536")
        a(f"buffer_load_dword v0, {t0}, {srd['wqkv']}, {st0} offen").wr = set()
    for n in srd:
        if n not in ('x', 'wqkv'): a(f"s_load_dwordx2 {srd[n][0:2]}, s[0:1], {KA[n]}")
    W1_ = W(1)
    k.run(X(1) + (take(W1_, PRE1)))
    for n in srd:
        if n not in ('x', 'wqkv'): a(f"s_mov_b32 {srd[n][2]}, {SZ[n]}\ns_mov_b32 {srd[n][3]}, 0x00020000")
    skvb, sflb, spsrc, sxr, sdst, sones, seps = [S.alloc() for _ in range(7)]
    vz = v(44, 4); ones = v(40, 4); sxcc = S.alloc()
    a(f"s_getreg_b32 {sxcc}, hwreg(HW_REG_XCC_ID)\ns_and_b32 {sxcc}, {sxcc}, 15\ns_add_u32 {sxcc}, {sxcc}, 1")
    a(f"""s_bfe_u32 {sj}, s2, 0x30003
s_and_b32 {srb}, s2, 7
s_lshl_b32 {srb}, {srb}, 2
s_lshr_b32 {st0}, s2, 6
s_add_u32 {srb}, {srb}, {st0}
s_lshl_b32 {shead}, {sj}, 2
s_add_u32 {shead}, {shead}, {sw}
s_lshl_b32 {shead1}, {sj1}, 2
s_add_u32 {shead1}, {shead1}, {sw}
s_lshl_b32 {skvb}, {shead1}, 11
s_add_u32 {skvb}, {skvb}, {WS_KV}
s_lshl_b32 {sflb}, {srb}, 12
s_add_u32 {sflb}, {sflb}, {WS_FL}
v_lshlrev_b32 {vl16}, 4, {lane}""")
    for r in range(4): a(f"v_mov_b32 {vz[r]}, 0")
    a("s_waitcnt lgkmcnt(0)")
    a(f"s_cmp_ge_u32 s2, 8\ns_cbranch_scc1 L_nozero")
    a.hidden(f"""s_lshl_b32 {st0}, s2, 2
s_add_u32 {st0}, {st0}, {sw}
s_lshl_b32 {st0}, {st0}, 11
s_add_u32 {st0}, {st0}, {WS_KV}
buffer_store_dwordx4 {vz}, {vl16}, {ws}, {st0} offen sc1
buffer_store_dwordx4 {vz}, {vl16}, {ws}, {st0} offen offset:1024 sc1
L_nozero:""")
    a(f"s_cmp_lg_u32 {sw}, 1\ns_cbranch_scc1 L_nofl")
    a.hidden(f"""s_lshl_b32 {st0}, {sj}, 7
s_add_u32 {st0}, {st0}, {sflb}
v_lshrrev_b32 {t0}, 2, {lane}
v_lshlrev_b32 {t0}, 26, {t0}
v_lshl_add_u32 {t0}, {lane}, 10, {t0}
v_mov_b32 {t1}, {sxcc}
buffer_store_dwordx4 {vz}, {t0}, {ws}, {st0} offen sc1
buffer_store_dword {t1}, {t0}, {ws}, {st0} offen offset:16 sc1
L_nofl:""")
    k.stamp('issued')
    if HOP:
        hops(0)
    vxa = v(12, 2); vsa = v(14, 2); vwa = v(16, 2); vxr = v(18, 2); vroot = v(20); vrootA = v(21); vp = v(178, 2); vw1d = v(3)
    pa = v(32, 2); va = v(34, 6)
    SB = PB + 16384
    KS = SB + 2048
    a(f"""v_lshrrev_b32 {t0}, 4, {lane}
v_and_b32 {t1}, 7, {lane}
v_xor_b32 {t2}, {t0}, {t1}
v_lshlrev_b32 {t2}, 4, {t2}
v_lshl_add_u32 {t2}, {t1}, 7, {t2}
v_bfe_u32 {t3}, {lane}, 3, 1
v_lshl_add_u32 {vxa[0]}, {t3}, 10, {t2}
v_xor_b32 {vxa[1]}, 64, {vxa[0]}
v_add_u32 {vsa[0]}, {sw11}, {vxa[0]}
v_add_u32 {vsa[1]}, {sw11}, {vxa[1]}
v_and_b32 {t2}, 1, {t0}
v_lshl_or_b32 {t2}, {t2}, 1, {t3}
v_xor_b32 {t2}, {sw}, {t2}
v_lshlrev_b32 {t2}, 5, {t2}
v_and_b32 {t3}, 3, {lane}
v_lshl_add_u32 {t2}, {t3}, 3, {t2}
v_bfe_u32 {t3}, {lane}, 2, 2
v_lshl_add_u32 {t2}, {t3}, 7, {t2}
v_mul_u32_u24 {t3}, 6144, {t0}
v_add_u32 {t2}, {t2}, {t3}
v_add_u32 {vwa[0]}, {WB}, {t2}
s_mov_b32 {sones}, 0x3f803f80
v_mov_b32 {ones[0]}, {sones}
v_mov_b32 {ones[1]}, {sones}
v_mov_b32 {ones[2]}, {sones}
v_mov_b32 {ones[3]}, {sones}""")
    later = its(f"""s_lshl_b32 {st0}, {sw}, 1
v_xor_b32 {t2}, {st0}, {t1}
v_lshlrev_b32 {t2}, 4, {t2}
v_lshl_add_u32 {t2}, {t1}, 7, {t2}
v_bfe_u32 {t3}, {lane}, 3, 2
v_lshl_add_u32 {t2}, {t3}, 10, {t2}
v_lshrrev_b32 {t3}, 5, {lane}
v_lshl_add_u32 {t2}, {t3}, 3, {t2}
v_add_u32 {vxr[0]}, {XR}, {t2}
v_xor_b32 {vxr[1]}, 16, {vxr[0]}
s_mov_b32 {seps}, {f32(1e-5)}
v_lshlrev_b32 {vrootA}, 5, {lane}
s_mul_i32 {st0}, {sw}, 1536
s_add_u32 {st0}, {st0}, {KS}
v_add_u32 {va[0]}, {st0}, {vl16}
v_lshl_add_u32 {va[1]}, {t0}, 4, {st0}
v_lshlrev_b32 {va[3]}, 2, {lane}
v_add_u32 {va[2]}, {st0}, {va[3]}
v_and_b32 {t1}, 15, {lane}
v_lshl_add_u32 {va[4]}, {t1}, 2, {st0}
v_bfe_u32 {t2}, {lane}, 2, 1
v_lshlrev_b32 {t2}, 10, {t2}
v_bfe_u32 {t1}, {lane}, 3, 1
v_lshl_add_u32 {t2}, {t1}, 9, {t2}
v_and_b32 {t1}, 3, {lane}
v_lshl_add_u32 {t2}, {t1}, 2, {t2}
v_add_u32 {t2}, 256, {t2}
v_lshrrev_b32 {t1}, 4, {lane}
v_lshl_add_u32 {va[5]}, {t1}, 28, {t2}""")
    later += its(f"""s_lshr_b32 {st1}, s2, 3
s_and_b32 {st0}, s2, 7
s_lshl_b32 {spsrc}, {st1}, 16
s_lshl_b32 {sdst}, {st0}, 7
s_add_u32 {spsrc}, {spsrc}, {sdst}
s_lshl_b32 {sdst}, {sw}, 14
s_add_u32 {spsrc}, {spsrc}, {sdst}
s_mul_i32 {sdst}, {st0}, {88*2048}
s_lshl_b32 {st1}, {st1}, 11
s_add_u32 {sdst}, {sdst}, {st1}
s_mul_i32 {st1}, {sw}, {22*2048}
s_add_u32 {sdst}, {sdst}, {st1}
s_add_u32 {sdst}, {sdst}, {WS_W2}
""") + [It(f"s_cmp_lt_u32 s2, 176\ns_cselect_b32 {sdst}, {sdst}, {OOB}\ns_cselect_b32 {spsrc}, {spsrc}, {OOB}", cost=2)] + its(f"""
v_lshlrev_b32 {t0}, 10, {t3}
v_bfe_u32 {t1}, {lane}, 2, 2
v_lshl_add_u32 {t0}, {t1}, 7, {t0}
v_bfe_u32 {t1}, {lane}, 3, 1
v_lshlrev_b32 {t1}, 1, {t1}
v_bfe_u32 {t2}, {lane}, 4, 1
v_or_b32 {t1}, {t1}, {t2}
v_lshl_add_u32 {t0}, {t1}, 5, {t0}
v_and_b32 {t1}, 3, {lane}
v_lshl_add_u32 {t0}, {t1}, 3, {t0}
s_add_u32 {st1}, {sw11}, {PB}
v_add_u32 {pa[0]}, {st1}, {t0}
v_xor_b32 {pa[1]}, 64, {pa[0]}
v_lshrrev_b32 {t0}, 3, {lane}
v_lshlrev_b32 {t2}, 1, {t2}
v_bfe_u32 {t1}, {lane}, 1, 2
v_xor_b32 {t1}, {t1}, {t2}
v_lshlrev_b32 {t1}, 5, {t1}
v_and_b32 {t2}, 1, {lane}
v_lshl_add_u32 {t1}, {t2}, 4, {t1}
v_lshl_add_u32 {vp[0]}, {t0}, 10, {t1}
v_add_u32 {vp[1]}, 7168, {vp[0]}
s_lshr_b32 {st0}, {sw}, 1
s_lshl_b32 {st0}, {st0}, 5
v_xor_b32 {t1}, {st0}, {t1}
v_mul_u32_u24 {t0}, 2752, {t0}
v_add_u32 {vw1d}, {t0}, {t1}
s_lshl_b32 {sxr}, {srb}, 16
s_lshl_b32 {st0}, {sw}, 14
s_add_u32 {sxr}, {sxr}, {st0}
s_lshl_b32 {st0}, {sj}, 7
s_add_u32 {sxr}, {sxr}, {st0}""")
    PD = its(f"s_add_u32 m0, {sw11}, {PB}") + [k.vm(f"buffer_load_dwordx4 {vp[i]}, {srd['w2']}, {spsrc} offen offset:{i*1024} lds", 'p') for i in range(2)]
    XD = its(f"s_add_u32 m0, {sw11}, {XR}") + [k.vm(f"buffer_load_dwordx4 {vxd[i]}, {srd['x']}, {sxr} offen offset:{i*1024} lds", 'xr') for i in range(2)]
    def slot(ks): return ag((((ks // 2) - 2) % 6) * 40, 40)
    def xfrag(ks, tt): b = ((ks & 1)*4 + tt)*4; return slot(ks)[b:b+4]
    wf = v(48, 32)
    def wfrag(ks, p):
        if p == 0: return slot(ks)[32 + (ks & 1)*4:36 + (ks & 1)*4]
        b = ((ks & 3)*2 + p - 1)*4; return wf[b:b+4]
    def tr(dst, off): return [f"ds_read_b64_tr_b16 {dst[0:2]}, {vwa[0]} offset:{off}", f"ds_read_b64_tr_b16 {dst[2:4]}, {vwa[0]} offset:{off+512}"]
    def reads(c):
        o = []
        for ks in (2*c, 2*c+1):
            for p in (1, 2, 0): o += tr(wfrag(ks, p), w_lds(ks, p))
            for tt in range(4): o.append(f"ds_read_b128 {xfrag(ks, tt)}, {vxa[ks&1]} offset:{c*8192 + tt*2048}")
        return o
    sf = v(184, 16); acck = v(96, 16); accv = v(112, 16); accq = v(128, 16); csk = v(144, 4); csv = v(148, 4); csq = v(152, 4)
    rsum = v(156, 4); gram = v(160, 4); pf = v(164, 8); vsr = v(172, 4)
    nmv = v(184, 16); rlv = v(200, 16); rv = v(216, 16); qs = v(232, 8); tmp = v(240, 16)
    xres = v(24, 8)
    smA = S.alloc(2); smC = S.alloc(2)
    vt11 = v(176); vt4 = v(177)
    later = its(f"""v_lshlrev_b32 {vt4}, 7, {lane}
v_max_u32 {vt11}, 10, {lane}
v_subrev_u32 {vt11}, 10, {vt11}
v_lshl_add_u32 {vt11}, {vt11}, 24, {vt4}
v_lshrrev_b32 {vz[3]}, 2, {lane}
v_lshl_add_u32 {vt4}, {vz[3]}, 24, {vt4}""") + later
    vth = v(180); vtf = v(181)
    if LOCH:
        later += its(f"""s_lshl_b32 {st0}, {sw}, 14
s_lshl_b32 {st1}, {sj}, 11
s_add_u32 {st0}, {st0}, {st1}
v_lshl_add_u32 {vth}, {lane}, 7, {st0}
s_lshr_b32 {st0}, {sw}, 1
s_lshl_b32 {st0}, {st0}, 13
s_lshl_b32 {st1}, {sj}, 10
s_add_u32 {st0}, {st0}, {st1}
s_and_b32 {st1}, {sw}, 1
s_lshl_b32 {st1}, {st1}, 9
s_add_u32 {st0}, {st0}, {st1}
s_mul_i32 {st1}, {srb}, {65536 - 16384}
s_sub_u32 {st0}, {st0}, {st1}
s_add_u32 {st0}, {st0}, {WS_ST - WS_H - 16*128}
v_lshl_add_u32 {t0}, {lane}, 7, {st0}""") + [It(f"v_cmp_gt_u32 vcc, 16, {lane}\ns_nop 1\nv_cndmask_b32 {vth}, {t0}, {vth}, vcc\nv_cmp_gt_u32 vcc, 20, {lane}\nv_mov_b32 {t0}, {OOB}\ns_nop 0\nv_cndmask_b32 {vth}, {t0}, {vth}, vcc", cost=2, kind='salu')]
        later += its(f"""s_mul_i32 {st0}, {sw}, {22*1024}
s_mul_i32 {st1}, {sj}, 3072
s_add_u32 {st0}, {st0}, {st1}
v_max_u32 {t0}, 23, {lane}
v_subrev_u32 {t0}, 23, {t0}
v_lshlrev_b32 {t0}, 24, {t0}
v_lshl_add_u32 {t0}, {lane}, 7, {t0}
v_add_u32 {vtf}, {st0}, {t0}""")
    def touch(srd_, vaddr, pre):
        def f(): a(f"buffer_load_dword v0, {vaddr}, {srd_}, {ssoff} offen").wr = set()
        return [It(pre, cost=2), It(f, kind='vmem')]
    later += its(f"""s_mov_b32 {smA[0]}, 0xaaaaaaaa
s_mov_b32 {smA[1]}, 0xaaaaaaaa
s_mov_b32 {smC[0]}, 0xcccccccc
s_mov_b32 {smC[1]}, 0xcccccccc
v_and_b32 {t0}, 15, {lane}
v_lshlrev_b32 {vsr[3]}, 3, {t0}
v_lshlrev_b32 {t0}, 2, {t0}
s_lshl_b32 {st0}, {sw}, 6
v_add_u32 {vsr[0]}, {st0}, {t0}
v_lshlrev_b32 {vsr[1]}, 1, {vsr[0]}
v_lshrrev_b32 {vsr[2]}, 4, {lane}
v_lshlrev_b32 {vsr[2]}, 4, {vsr[2]}
v_add_u32 {vsr[0]}, {SB}, {vsr[0]}
v_add_u32 {vsr[1]}, {SB}, {vsr[1]}
v_add_u32 {vsr[2]}, {SB}, {vsr[2]}
v_add_u32 {vsr[3]}, {SB}, {vsr[3]}""")
    if LAT:
        h_ = len(later) // 2; k.run(later[:h_] + take(W1_, 2) + later[h_:]); later = []
    k.run(W1_)
    if HOP: a("s_branch L_main\n.p2align 12\nL_main:")
    a.wait(tok['w', 0]); a("s_barrier"); k.stamp('first')
    for r in reads(0): a(r)
    k.run(X(2) + W(2))
    swo = spsrc; sw14 = sxr; sc0 = sj1; sw1b = sxb; sinv = srd['wqkv'][2]; sw1o = srd['wqkv'][3]
    NEXT = its(f"""s_lshl_b32 {swo}, {sw}, 17
s_lshl_b32 {st0}, {sj}, 7
s_add_u32 {swo}, {swo}, {st0}
s_lshl_b32 {sw14}, {sw}, 14
s_mul_i32 {sc0}, {sj}, 12
s_add_u32 {sc0}, {sc0}, {sw}
s_mul_i32 {sw1b}, {sw}, {8*2752}
s_mul_i32 {st0}, {sj}, 384
s_add_u32 {sw1b}, {sw1b}, {st0}""") + [It(f"s_cmp_lt_u32 {sj}, 7\ns_cselect_b32 {sinv}, 0, {OOB}", cost=2)]
    WOD = []
    for g2 in range(8):
        WOD += its(f"s_add_u32 m0, {sw14}, {g2*2048}\ns_add_u32 {sc_x}, {swo}, {g2*16384}")
        WOD += [k.vm(f"buffer_load_dwordx4 {vp[i]}, {srd['wo']}, {sc_x} offen offset:{i*1024} lds", 'wo') for i in range(2)]
    UPOS = [WB + p*12288 for p in (4, 5, 0, 1, 2, 3, 6, 7)]
    def U(ks):
        o = its(f"s_add_u32 {sc_w}, {sw1b}, {ks*32*2752}\ns_add_u32 {sw1o}, {sc_w}, {sinv}")
        for s in range(3):
            o += its(f"s_add_u32 m0, {sw10}, {UPOS[ks & 7] + s*4096 - s*128}")
            o.append(k.vm(f"buffer_load_dwordx4 {vw1d}, {srd['w1']}, {sw1o if s else sc_w} offen offset:{s*128} lds", ('u', ks)))
        return o
    BULK = U(0) + U(1) + U(2) + U(3) + WOD + U(4) + U(5)
    assert NB[0] <= 6 and NB[0] + NB[1] <= 12
    QM = []
    stats_at = {0: (0, 1), 1: (2,), 2: (3,), 3: (4, 5), 4: (6,), 5: (7,)}
    rootld = f"buffer_load_dword {vroot}, {vrootA}, {srd['dbg']}, 0 offen sc1"
    for c in range(8):
        need_ = ([('w', c+1), ('x', c+1)] if c < 7 else []) + [('x', cc) for cc in stats_at.get(c, ())] + (['xr'] if c == 7 else [])
        k.stamp('j%d' % c)
        for key in need_: a.wait(tok[key])
        k.stamp('k%d' % c)
        a("s_waitcnt lgkmcnt(0)\ns_barrier")
        k.stamp('i%d' % c)
        if c == 1:
            a(f"s_cmp_ge_u32 s2, 8\ns_cbranch_scc1 L_noroot\ns_cmp_lg_u32 {sw}, 0\ns_cbranch_scc1 L_noroot")
            a.hidden(f"""s_lshl_b32 {ssoff}, s2, 5
v_lshlrev_b32 {vz[0]}, 24, {lane}
v_mov_b32 {vz[1]}, 1
buffer_store_dword {vz[1]}, {vz[0]}, {srd['dbg']}, {ssoff} offen sc1
L_noroot:""")
        mf = []
        for ks in (2*c, 2*c+1):
            for tt in range(4):
                for p, acc in ((1, acck), (2, accv)):
                    d = acc[tt*4:tt*4+4]
                    mf.append(f"v_mfma_f32_16x16x32_bf16 {d}, {xfrag(ks, tt)}, {wfrag(ks, p)}, {d if ks else 0}")
            for p, acc in ((1, csk), (2, csv)):
                mf.append(f"v_mfma_f32_16x16x32_bf16 {acc}, {ones}, {wfrag(ks, p)}, {acc if ks else 0}")
        for ks in (2*c, 2*c+1):
            dst = QM if c >= 8 - NQ else mf
            for tt in range(4):
                d = accq[tt*4:tt*4+4]
                dst.append(f"v_mfma_f32_16x16x32_bf16 {d}, {wfrag(ks, 0)}, {xfrag(ks, tt)}, {d if ks else 0}")
            dst.append(f"v_mfma_f32_16x16x32_bf16 {csq}, {wfrag(ks, 0)}, {ones}, {csq if ks else 0}")
        rd = []
        for i, cc in enumerate(stats_at.get(c, ())):
            for p in range(2):
                s_ = sf[(2*i+p)*4:(2*i+p)*4+4]; first = (cc == 0 and p == 0)
                rd.append(f"ds_read_b128 {s_}, {vsa[p]} offset:{cc*8192}")
                mf.append(f"v_mfma_f32_16x16x32_bf16 {rsum}, {s_}, {ones}, {0 if first else rsum}")
                mf.append(f"v_mfma_f32_16x16x32_bf16 {gram}, {s_}, {s_}, {0 if first else gram}")
        if c < 7: rd += reads(c+1)
        if c == 7:
            for tt in range(4):
                rd += [f"ds_read_b128 {nmv[tt*4:tt*4+4]}, {vsr[2]} offset:{tt*64}", f"ds_read_b128 {rlv[tt*4:tt*4+4]}, {vsr[2]} offset:{512 + tt*64}"]
            for tt in range(4):
                rd += [f"ds_read_b128 {rv[tt*4:tt*4+4]}, {vsr[2]} offset:{256 + tt*64}", f"ds_read_b64 {qs[tt*2:tt*2+2]}, {vsr[3]} offset:{768 + tt*128}"]
        if c == 7:
            rd += [f"ds_read_b64 {xres[4*H+2*e:4*H+2*e+2]}, {vxr[e]} offset:{H*4096}" for H in range(2) for e in range(2)]
            for n in range(2): rd += [f"ds_read_b64_tr_b16 {pf[n*4:n*4+2]}, {pa[n]}", f"ds_read_b64_tr_b16 {pf[n*4+2:n*4+4]}, {pa[n]} offset:512"]
        dm = {0: W(3) + X(3), 1: W(4) + X(4) + X(5), 2: W(5) + X(6), 3: W(6) + X(7), 4: W(7) + PD + XD,
              5: [k.vm(rootld)] + NEXT, 6: [], 7: []}[c]
        if c == HW:
            def f5():
                a(f"s_cmp_lg_u32 {sw}, 0\ns_cbranch_scc1 L_nob")
                a.hidden(f"s_mul_i32 {ssoff}, {sj}, 384\nbuffer_load_dword v0, {vt4}, {srd['b1']}, {ssoff} offen\ns_lshl_b32 {ssoff}, {sj}, 7\nbuffer_load_dword v0, {vt4}, {srd['b2']}, {ssoff} offen\nL_nob:")
            dm = (dm + touch(srd['w1'], vt11, f"s_lshl_b32 {ssoff}, s2, 2\ns_add_u32 {ssoff}, {ssoff}, {sw}\ns_mul_i32 {ssoff}, {ssoff}, {11*128}")
                  + touch(srd['wo'], vt4, f"s_lshl_b32 {ssoff}, s2, 2\ns_add_u32 {ssoff}, {ssoff}, {sw}\ns_lshl_b32 {ssoff}, {ssoff}, 9") + [It(f5, kind='vmem')])
            if LOCH & 1: dm += touch(ws, vth, f"s_lshl_b32 {ssoff}, {srb}, 16\ns_add_u32 {ssoff}, {ssoff}, {WS_H}")
            for H in range(2):
                if LOCH & (2 << H): dm += touch(ws, vtf, f"s_mul_i32 {ssoff}, {srb}, {2*88*1024}\ns_add_u32 {ssoff}, {ssoff}, {WS_HH + H*88*1024}")
        if c >= 5: dm = dm + take(BULK, NB[c-5])
        for x in dm:
            if x.kind == 'vmem': x.cost = 2
        vq = []
        if c == 6:
            vq = its(f"""v_cndmask_b32 {rsum[0]}, {rsum[0]}, {rsum[1]}, {smA}
v_cndmask_b32 {rsum[2]}, {rsum[2]}, {rsum[3]}, {smA}
v_cndmask_b32 {gram[0]}, {gram[0]}, {gram[1]}, {smA}
v_cndmask_b32 {gram[2]}, {gram[2]}, {gram[3]}, {smA}
v_cndmask_b32 {rsum[0]}, {rsum[0]}, {rsum[2]}, {smC}
v_cndmask_b32 {gram[0]}, {gram[0]}, {gram[2]}, {smC}
v_mul_f32 {rsum[0]}, {f32(-1/512)}, {rsum[0]}
v_mul_f32 {gram[0]}, {f32(1/512)}, {gram[0]}
v_fma_f32 {gram[0]}, -{rsum[0]}, {rsum[0]}, {gram[0]}
v_max_f32 {gram[0]}, 0, {gram[0]}
v_add_f32 {gram[0]}, {seps}, {gram[0]}
v_rsq_f32 {gram[0]}, {gram[0]}
v_mul_f32 {rsum[1]}, {f32(LOG2E)}, {gram[0]}""")
            vq.append(It(f"""s_mov_b32 exec_lo, 0x00f0000f
s_mov_b32 exec_hi, 0xf0000f00
ds_write_b32 {vsr[0]}, {rsum[0]} offset:0
ds_write_b32 {vsr[0]}, {gram[0]} offset:{256}
ds_write_b32 {vsr[0]}, {rsum[1]} offset:{512}
ds_write_b64 {vsr[1]}, {rsum[0:2]} offset:{768}
s_mov_b64 exec, -1""", cost=1, kind='salu'))
        if c < 4:
            n = len(later) if c == 3 else 40
            vq = later[:n]; later = later[n:]
        k.pack(mf, [rd, dm, vq] if c < 4 else [rd, vq, dm], False, vgap=VG1 if len([x for x in dm if x.kind == 'vmem'])*VG1 <= len(mf) else 3, excl=EXCL)
    k.stamp('pass1')
    sdel = smA; sln2 = smC
    a(f"s_mov_b32 {sdel[0]}, {f32(1e-6/LN2)}\ns_mov_b32 {sdel[1]}, {f32(1e-6/LN2)}\ns_mov_b32 {sln2[0]}, {f32(LN2)}\ns_mov_b32 {sln2[1]}, {f32(LN2)}")
    def phi_tail(acc, n):
        return ([f"v_exp_f32 {tmp[r]}, {acc[r]} clamp" for r in range(n)] + [f"v_max_f32 {acc[r]}, {sdel[0]}, {acc[r]}" for r in range(n)]
                + [f"v_pk_fma_f32 {acc[r:r+2]}, {acc[r:r+2]}, {sln2}, {tmp[r:r+2]}" for r in range(0, n, 2)])
    def weave(ops, nv):
        step = len(ops) // max(nv, 1)
        for i, x in enumerate(ops):
            if nv and i % step == step // 2 and i // step < nv: k.run(take(BULK, 1))
            a(x)
    pkf = v(48, 8); vf = v(56, 8)
    weave([f"v_pk_fma_f32 {acck[r:r+2]}, {nmv[r:r+2]}, {csk[0:2]}, {acck[r:r+2]}" for r in range(0, 16, 2)]
          + [f"v_pk_fma_f32 {acck[r:r+2]}, {acck[r:r+2]}, {rlv[r:r+2]}, {sdel}" for r in range(0, 16, 2)] + phi_tail(acck, 16)
          + [f"v_cvt_pk_bf16_f32 {pkf[r]}, {acck[2*r]}, {acck[2*r+1]}" for r in range(8)]
          + [f"v_pk_fma_f32 {accv[r:r+2]}, {nmv[r:r+2]}, {csv[0:2]}, {accv[r:r+2]}" for r in range(0, 16, 2)]
          + [f"v_pk_mul_f32 {accv[r:r+2]}, {accv[r:r+2]}, {rv[r:r+2]}" for r in range(0, 16, 2)]
          + [f"v_cvt_pk_bf16_f32 {vf[r]}, {accv[2*r]}, {accv[2*r+1]}" for r in range(8)], NB[3])
    dkv = v(64, 4); dz = v(68, 4); bn = v(72, 5)
    for h in range(2):
        a(f"v_mfma_f32_16x16x32_bf16 {dkv}, {pkf[h*4:h*4+4]}, {vf[h*4:h*4+4]}, {dkv if h else 0}")
        a(f"v_mfma_f32_16x16x32_bf16 {dz}, {pkf[h*4:h*4+4]}, {ones}, {dz if h else 0}")
    qops = []
    for tt in range(4): qops += [f"v_pk_fma_f32 {accq[tt*4+r:tt*4+r+2]}, {qs[tt*2:tt*2+2]}, {csq[r:r+2]}, {accq[tt*4+r:tt*4+r+2]} op_sel_hi:[0,1,1]" for r in (0, 2)]
    for tt in range(4): qops += [f"v_pk_fma_f32 {accq[tt*4+r:tt*4+r+2]}, {accq[tt*4+r:tt*4+r+2]}, {qs[tt*2:tt*2+2]}, {sdel} op_sel:[0,1,0]" for r in (0, 2)]
    qops += phi_tail(accq, 16)
    k.check(f"v_cmp_ne_u32 vcc, 0, {vroot}", 0xff, rootld, st1)
    a(f"ds_write_b128 {va[0]}, {dkv}\nds_write_b128 {va[1]}, {dz} offset:1024")
    for g in range(4): a(f"ds_read_b32 {bn[g]}, {va[2]} offset:{g*256}")
    a(f"ds_read_b32 {bn[4]}, {va[4]} offset:1024")
    at = [k.vm(f"buffer_atomic_add_f32 {bn[gg]}, {va[3]}, {ws}, {skvb} offen offset:{(gg&1)*1024 + (gg>>1)*512}", after=AT0) for gg in range(4)]
    at.append(k.vm(f"buffer_atomic_add_f32 {bn[4]}, {va[5]}, {ws}, {skvb} offen"))
    k.pack(QM, [at + take(BULK, NB[4])], False, vgap=4)
    weave(qops, NB[5])
    k.stamp('atom')
    a(f"s_lshl_b32 {st0}, {srb1}, 16\ns_lshl_b32 {st1}, {shead1}, 10\ns_add_u32 {st0}, {st0}, {st1}\ns_add_u32 {st0}, {st0}, {WS_PQ}\ns_add_u32 {st1}, {st0}, 32768")
    for t32 in range(2):
        d = v(80, 8)[t32*4:t32*4+4]
        for s in range(2):
            for h in range(2):
                a(f"v_cvt_pk_bf16_f32 {d[2*s+h]}, {accq[(2*t32+s)*4+2*h]}, {accq[(2*t32+s)*4+2*h+1]}")
        for h in range(2): a(f"v_permlane16_swap_b32 {d[h]}, {d[2+h]}")
        a(f"buffer_store_dwordx4 {d}, {vl16}, {ws}, {(st0, st1)[t32]} offen sc1")
    for n in range(2): tok['pq'] = a(f"buffer_store_dwordx4 {pf[n*4:n*4+4]}, {vl16}, {ws}, {sdst} offen offset:{n*1024} sc1")
    k.stamp('pqst')
    a("s_barrier")
    UL = BULK + U(6) + U(7)
    k.run(take(UL, NU_ARR // 2))
    vw1r = v(8, 2); vwr = v(12, 2); vcA = v(14); vc = v(15); vrw = v(16, 3); vrr = v(19); vh = v(20); vst = v(21); vone = v(22); vlz = v(23)
    vfA = v(10); vkv = v(11); vfl = v(4, 4)
    skv = srd['wqkv'][0]; spq = srd['wqkv'][1]; shb = srd['x'][0]; sstb = srd['x'][1]; se6 = sdst
    a(f"""v_bfe_u32 {t0}, {lane}, 4, 1
v_bfe_u32 {t1}, {lane}, 3, 1
v_lshl_or_b32 {t1}, {t1}, 1, {t0}
v_xor_b32 {t1}, {sw}, {t1}
v_lshlrev_b32 {t1}, 5, {t1}
v_and_b32 {t2}, 3, {lane}
v_lshl_add_u32 {t1}, {t2}, 3, {t1}
v_bfe_u32 {t2}, {lane}, 2, 2
v_lshl_add_u32 {t1}, {t2}, 7, {t1}
v_lshrrev_b32 {t3}, 5, {lane}
v_lshl_add_u32 {t1}, {t3}, 9, {t1}
v_add_u32 {vwr[0]}, {sw14}, {t1}
v_xor_b32 {vwr[1]}, 64, {vwr[0]}
v_lshl_add_u32 {t1}, {t0}, 11, {t1}
v_add_u32 {vw1r[0]}, {WB}, {t1}
v_add_u32 {vw1r[1]}, {WB + 49152}, {t1}
v_mov_b32 {vone}, 1
v_lshlrev_b32 {vlz}, 24, {lane}
v_lshlrev_b32 {t1}, 9, {lane}
v_lshl_add_u32 {vcA}, {t3}, 30, {t1}
v_lshlrev_b32 {vh}, 14, {t0}
v_lshl_add_u32 {vh}, {t3}, 9, {vh}
v_and_b32 {t1}, 15, {lane}
v_lshl_add_u32 {vh}, {t1}, 4, {vh}
v_and_b32 {t1}, 31, {lane}
v_lshlrev_b32 {t1}, 3, {t1}
v_lshl_add_u32 {vst}, {t3}, 13, {t1}
v_lshrrev_b32 {t0}, 3, {lane}
v_lshlrev_b32 {t0}, 26, {t0}
v_lshl_add_u32 {vfA}, {lane}, 7, {t0}
v_and_b32 {t0}, 31, {lane}
v_min_u32 {t0}, 16, {t0}
v_lshlrev_b32 {t0}, 4, {t0}
v_lshl_add_u32 {vkv}, {t3}, 9, {t0}""")
    k.run(take(UL, NU_ARR - NU_ARR // 2))
    for r in (1, 2, 3):
        a(f"s_xor_b32 {st0}, {sw}, {r}\ns_lshl_b32 {st0}, {st0}, 13\ns_add_u32 {st0}, {st0}, {r*2048}\nv_add_u32 {vrw[r-1]}, {st0}, {vl16}")
    a(f"""s_lshl_b32 {st0}, {sw}, 13
v_add_u32 {vrr}, {st0}, {vl16}
s_add_u32 {skv}, {sw14}, {WS_KV}
s_lshl_b32 {spq}, {srb}, 16
s_add_u32 {spq}, {spq}, {st0}
s_add_u32 {spq}, {spq}, {WS_PQ}
s_lshl_b32 {shb}, {srb}, 16
s_lshr_b32 {st0}, {shead}, 1
s_lshl_b32 {st0}, {st0}, 10
s_add_u32 {shb}, {shb}, {st0}
s_and_b32 {st0}, {sw}, 1
s_lshl_b32 {st0}, {st0}, 8
s_add_u32 {shb}, {shb}, {st0}
s_add_u32 {shb}, {shb}, {WS_H}
s_lshl_b32 {sstb}, {srb}, 14
s_lshl_b32 {st0}, {shead}, 8
s_add_u32 {sstb}, {sstb}, {st0}
s_add_u32 {sstb}, {sstb}, {WS_ST}
s_mov_b32 {se6}, {f32(1e-6)}
s_and_b32 {st0}, {srb1}, 3
s_lshl_b32 {st0}, {st0}, 9
s_add_u32 {st0}, {st0}, {skvb}""")
    a.wait(tok['pq'])
    a(f"buffer_atomic_add {vone}, {vlz}, {ws}, {st0} offen offset:384")
    k.stamp('arrive')
    WO = v(48, 64); KZ = v(112, 32); OF = v(144, 8); csa = v(40, 4)
    w1 = ag(0, 192)
    wor = []
    for hh in range(8):
        for t in range(2):
            d = WO[(hh*2+t)*4:(hh*2+t)*4+4]
            wor += [f"ds_read_b64_tr_b16 {d[0:2]}, {vwr[t]} offset:{hh*2048}", f"ds_read_b64_tr_b16 {d[2:4]}, {vwr[t]} offset:{hh*2048+1024}"]
    k.run(UL)
    sw2 = swo; send = sc_x; shh = [skvb, shead1]; so2 = swb; srot3 = srb1; sgab = smA; shv = srd['x'][2]
    RB = 65536; SL = RB + 4096
    a(f"""s_mul_i32 {st0}, {srb}, {2*88*1024}
s_mul_i32 {st1}, {sw}, {22*1024}
s_add_u32 {st0}, {st0}, {st1}
s_add_u32 {shv}, {st0}, {WS_HH}
s_mul_i32 {st1}, {sj}, 3072
s_add_u32 {shh[0]}, {shv}, {st1}
s_add_u32 {shh[1]}, {shh[0]}, {sinv}
s_mov_b32 {sgab[0]}, {f32(GA)}
s_mov_b32 {sgab[1]}, {f32(GA)}
s_mul_i32 {sw2}, {shead}, {22*2048}
s_add_u32 {sw2}, {sw2}, {WS_W2 if not NOW2 else OOB}
""")
    if HOP: hops(1)
    a.wait(tok['wo']); k.run(wor)
    def rd_w1(k0, k1):
        o = []
        for ks in range(k0, k1):
            for s in range(3):
                d = w1[(ks*3+s)*4:(ks*3+s)*4+4]; off = UPOS[ks & 7] - WB + s*4096
                b = vw1r[0] if off < 49152 else vw1r[1]; off %= 49152
                o += [f"ds_read_b64_tr_b16 {d[0:2]}, {b} offset:{off}", f"ds_read_b64_tr_b16 {d[2:4]}, {b} offset:{off + 1024}"]
        return o
    cload = f"buffer_load_dword {vc}, {vcA}, {ws}, {skv} offen offset:384 sc1"
    if NS1 == 2:
        a(cload)
        a.wait(tok['u', 3]); a("s_waitcnt lgkmcnt(0)\ns_barrier")
    cst = [v(44, 4), v(152, 4), v(156, 4)]; cs = v(224, 12)
    KC = 4 if NS1 == 2 else 8
    def csm(k0, k1):
        o = []
        for ks in range(k0, k1):
            for s in range(3):
                d = cst[s] if ks < KC else cs[s*4:s*4+4]
                o.append(f"v_mfma_f32_16x16x32_bf16 {d}, {w1[(ks*3+s)*4:(ks*3+s)*4+4]}, {csa}, {0 if ks == 0 else cst[s] if ks <= KC else d}")
        return o
    UB = U(8) + U(9) + U(10) + U(11); UC = U(12) + U(13) + U(14) + U(15); R47 = rd_w1(4, 8); R8 = rd_w1(8, 12); R12 = rd_w1(12, 16)
    if NS1 == 2: k.run(rd_w1(0, 4) + csm(0, 4))
    else:
        a.wait(tok['u', 1]); a("s_barrier"); k.run(rd_w1(0, 2))
        UU = UB + (UC if NS1 == 4 else [])
        for p in range(1, 2*NS1 - 3):
            if p < 4: a.wait(tok['u', 2*p + 1])
            a("s_waitcnt lgkmcnt(0)\ns_barrier")
            rr = rd_w1(2*p, 2*p + 2) if p < 4 else []; cc = csm(2*p - 2, 2*p) if p < 3 else []
            for i in range(6): k.run(take(UU, 1) + rr[2*i:2*i+2] + cc[i:i+1])
        if NS1 == 3:
            a.wait(tok['u', 7]); a("s_barrier"); k.run(rd_w1(6, 8))
        assert not UU
        UB = []; R47 = []
        if NS1 == 4: UC = []
        a(cload)
        k.run(csm(4, 8))
    k.stamp('w1a')
    k.check(f"v_cmp_eq_u32 vcc, 8, {vc}", -1, cload, st1)
    k.stamp('s1')
    PQ = ag(192, 64); ACC = v(160, 32); D = v(192, 32); KVR = v(224, 32)
    def ld(dst, sbase, off, vo_=vl16):
        o = []
        if off >= 4096: o = its(f"s_add_u32 {ssoff}, {sbase}, {off & ~4095}"); sbase = ssoff; off &= 4095
        return o + [k.vm(f"buffer_load_dwordx4 {dst}, {vo_}, {ws}, {sbase} offen offset:{off} sc1")]
    def kvr(hh): return KVR[(hh & 3)*8:(hh & 3)*8+8]
    def head_loads(hh): return ld(kvr(hh)[0:4], skv, hh*2048, vkv) + ld(kvr(hh)[4:8], skv, hh*2048 + 1024, vkv) + ld(PQ[hh*4:hh*4+4], spq, hh*1024)
    for hh in range(4): k.run(head_loads(hh))
    vxc = v(7)
    a.wait(tok['u', 4*NS1 - 1])
    a(f"s_waitcnt lgkmcnt(0)\ns_barrier\nv_lshrrev_b32 {t2}, 5, {lane}\nv_lshlrev_b32 {t2}, 30, {t2}\nv_lshl_add_u32 {t2}, {lane}, 7, {t2}")
    a(f"buffer_load_dword {vxc}, {t2}, {ws}, {sflb} offen offset:16 sc1")
    def store(text, near=False):
        if not near: return a("\n".join(l + " sc1" for l in text.split('\n')))
        k.nlab += 1; n = k.nlab
        a(f"s_cmp_eq_u32 {sxcc}, 0\ns_cbranch_scc1 L_far{n}")
        t = a(text)
        a.hidden(f"s_branch L_st{n}\nL_far{n}:\n" + "\n".join(l + " sc1" for l in text.split('\n')) + f"\nL_st{n}:")
        return t
    ACCS = [ACC, KVR]
    def p2_units(side):
        def cvt_kv(hh): return [f"v_cvt_pk_bf16_f32 {KZ[hh*4+r]}, {kvr(hh)[2*r]}, {kvr(hh)[2*r+1]}" for r in range(4)]
        def om(n): return f"v_mfma_f32_32x32x16_bf16 {D[(n&1)*16:(n&1)*16+16]}, {KZ[(n&7)*4:(n&7)*4+4]}, {PQ[n*4:n*4+4]}, 0"
        def pm(n, t):
            d = ACCS[n >> 3][t*16:t*16+16]
            return f"v_mfma_f32_32x32x16_bf16 {d}, {WO[((n&7)*2+t)*4:((n&7)*2+t)*4+4]}, {OF[(n&1)*4:(n&1)*4+4]}, {d if n & 7 else 0}"
        k.run(cvt_kv(0)); a(om(0)); k.run(cvt_kv(1))
        for n in range(16):
            d = D[(n&1)*16:(n&1)*16+16]; o = OF[(n&1)*4:(n&1)*4+4]
            ex = list(side(n)); per = -(-len(ex) // 3)
            cv = cvt_kv(n+2) if n + 2 < 8 else []
            if n + 1 < 16: a(om(n+1))
            k.run(ex[:per])
            a(f"v_add_f32 {d[8]}, {se6}, {d[8]}\nv_rcp_f32 {d[8]}, {d[8]}")
            k.run(cv[:2])
            if n > 0: a(pm(n-1, 0))
            k.run(ex[per:2*per])
            for r in range(5): a(f"v_mul_f32 {d[r]}, {d[r]}, {d[8]}")
            if n > 0: a(pm(n-1, 1))
            k.run(ex[2*per:])
            for r in range(5, 8): a(f"v_mul_f32 {d[r]}, {d[r]}, {d[8]}")
            for r in range(4): a(f"v_cvt_pk_bf16_f32 {o[r]}, {d[2*r]}, {d[2*r+1]}")
            k.run(cv[2:])
            if n == 7: k.stamp('p2a')
        a(pm(15, 0)); a(pm(15, 1))
    def red_w(acc, base): return [f"ds_write_b128 {vrw[r-1]}, {acc[r*8+q*4:r*8+q*4+4]} offset:{base + q*1024}" for r in (1, 2, 3) for q in range(2)]
    def red_r(tm, base): return [f"ds_read_b128 {tm[(r-1)*8+q*4:(r-1)*8+q*4+4]}, {vrr} offset:{base + r*2048 + q*1024}" for r in (1, 2, 3) for q in range(2)]
    HBs = [v(32, 8), v(24, 8)]
    sfo = S.alloc()
    a(f"s_lshl_b32 {sfo}, {shead}, 5\ns_and_b32 {sfo}, {sfo}, 0x380\ns_lshl_b32 {st0}, {sw}, 2\ns_add_u32 {sfo}, {sfo}, {st0}\ns_add_u32 {sfo}, {sfo}, {sflb}")
    def flag(sync, key):
        k.nlab += 1; n = k.nlab
        a.wait(tok[key])
        a(f"s_cmp_eq_u32 {sxcc}, {0 if LFLAG else sxcc}\ns_cbranch_scc1 L_ff{n}")
        a(f"buffer_store_dword {vone}, {vlz}, {ws}, {sfo} offen offset:{sync*1024}")
        a.hidden(f"s_branch L_nf{n}\nL_ff{n}:\nbuffer_store_dword {vone}, {vlz}, {ws}, {sfo} offen offset:{sync*1024} sc1\nL_nf{n}:")
    def fload(sync): return f"buffer_load_dwordx4 {vfl}, {vfA}, {ws}, {sflb} offen offset:{sync*1024} sc1"
    def fcheck(sync): k.check(f"v_and_b32 {vfl[0]}, {vfl[0]}, {vfl[1]}\nv_and_b32 {vfl[2]}, {vfl[2]}, {vfl[3]}\nv_and_b32 {vfl[0]}, {vfl[0]}, {vfl[2]}\nv_cmp_ne_u32 vcc, 0, {vfl[0]}", 0xff, fload(sync), st1)
    pqB = [ld(PQ[(8+hh)*4:(8+hh)*4+4], spq, 32768 + hh*1024) for hh in range(8)]
    RA = R47 if NS1 == 2 else R8
    W2A = ag(192, 64); W2V = v(48, 112); vw2 = v(14, 2)
    def w2frag(n, t): i = n*2 + t; return W2V[i*4:i*4+4] if i < 28 else W2A[(i-28)*4:(i-28)*4+4]
    def w2list(ns):
        o = []
        for n in ns:
            if n % 2 == 0: o += its(f"s_add_u32 {so2}, {sw2}, {n*2048}")
            o += [k.vm(f"buffer_load_dwordx4 {w2frag(n, t)}, {vw2[t]}, {ws}, {so2} offen offset:{(n & 1)*2048} sc1") for t in range(2)]
        return o
    W2L = w2list(range(22))
    a(f"""s_and_b32 {st0}, {sw}, 1
s_lshl_b32 {st0}, {st0}, 8
s_lshr_b32 {st1}, {sw}, 1
s_lshl_b32 {st1}, {st1}, 10
s_add_u32 {st0}, {st0}, {st1}
v_xor_b32 {vw2[0]}, {st0}, {vl16}
v_xor_b32 {vw2[1]}, 1024, {vw2[0]}""")
    shs = srd['x'][3]; sst = su_ = S.alloc(); vsl = v(12)
    RWA = red_w(ACC, 0)
    def side(n):
        o = head_loads(n+4) if n < 4 else pqB[(n-4)*2] + pqB[(n-4)*2+1] if n < 8 else take(UC, 3)
        if n < 8: o += RA[3*n:3*n+3]
        elif NS1 == 4: o += R12[3*(n-8):3*(n-8)+3]
        if n >= 10: o.append(RWA[n-10])
        if n == 13: o += its(f"""s_lshl_b32 {shs}, {srb}, 16
s_add_u32 {shs}, {shs}, {sw12}
s_add_u32 {shs}, {shs}, {WS_H}
s_lshl_b32 {sst}, {srb}, 14
s_add_u32 {sst}, {sst}, {sw12}
s_add_u32 {sst}, {sst}, {WS_ST}""")
        if n == 14: o.append(It(f"v_cmp_eq_u32 vcc, {sxcc}, {vxc}\ns_nop 1\ns_cmp_eq_u32 vcc_lo, -1\ns_cselect_b32 {sxcc}, 1, 0\ns_add_u32 {st1}, {shb}, 32768"))
        return o
    assert NS1 >= 3
    p2_units(side)
    k.stamp('p2b')
    TA = D[0:24]; TB = WO[0:24]; XU = WO[24:40]; stt = WO[40:44]
    ops = [x for r in range(8) for x in (f"v_lshlrev_b32 {XU[2*r]}, 16, {xres[r]}", f"v_and_b32 {XU[2*r+1]}, 0xffff0000, {xres[r]}")]
    ops += [f"v_pk_add_f32 {ACCS[H][e:e+2]}, {ACCS[H][e:e+2]}, {XU[8*H+e:8*H+e+2]}" for H in range(2) for e in range(0, 8, 2)] + [f"v_mov_b32 {stt[r]}, 0" for r in range(4)]
    k.run(ops[:8]); rw = red_w(KVR, 32768)
    for i in range(6): k.run([rw[i]] + ops[8+4*i:12+4*i])
    a.wait(tok['u', 15])
    a("s_waitcnt lgkmcnt(0)\ns_barrier")
    k.run(red_r(TA, 0) + red_r(TB, 32768))
    for H, tm_ in ((0, TA), (1, TB)):
        own = ACCS[H]; h4 = OF[H*4:H*4+4]
        for r in range(3):
            for e in range(0, 8, 2): a(f"v_pk_add_f32 {own[e:e+2]}, {own[e:e+2]}, {tm_[r*8+e:r*8+e+2]}")
        for r in range(4): a(f"v_cvt_pk_bf16_f32 {h4[r]}, {own[2*r]}, {own[2*r+1]}")
        store(f"buffer_store_dwordx4 {h4}, {vh}, {ws}, {(shb, st1)[H]} offen", LOCH & 1)
    for r in range(4):
        for H in range(2): a(f"v_dot2_f32_bf16 {stt[2*H]}, {OF[H*4+r]}, {sones}, {stt[2*H]}\nv_dot2_f32_bf16 {stt[2*H+1]}, {OF[H*4+r]}, {OF[H*4+r]}, {stt[2*H+1]}")
    for r in range(2): a(f"v_lshlrev_b32 {HBs[0][2*r]}, 16, {OF[r]}\nv_and_b32 {HBs[0][2*r+1]}, 0xffff0000, {OF[r]}")
    a(f"v_permlane32_swap_b32 {stt[0]}, {stt[2]}\nv_permlane32_swap_b32 {stt[1]}, {stt[3]}\nv_pk_add_f32 {stt[0:2]}, {stt[0:2]}, {stt[2:4]}")
    tok['h', 0] = store(f"buffer_store_dwordx2 {stt[0:2]}, {vst}, {ws}, {sstb} offen", LOCH & 1)
    k.stamp('pubb')
    if NS1 < 4: k.run(R12)
    b1r = v(160, 6); b2 = v(166, 4); vb = v(170, 2)
    vsw = v(13); vrn = v(3); vgb = v(20, 2); tm = v(212, 12); b1f = v(236, 12)
    for r in range(2, 8): a(f"v_lshlrev_b32 {HBs[r >> 2][2*(r&3)]}, 16, {OF[r]}\nv_and_b32 {HBs[r >> 2][2*(r&3)+1]}, 0xffff0000, {OF[r]}")
    a(f"v_lshrrev_b32 {vb[0]}, 4, {lane}\nv_lshlrev_b32 {vb[0]}, 3, {vb[0]}\nv_lshrrev_b32 {vb[1]}, 5, {lane}\nv_lshlrev_b32 {vb[1]}, 3, {vb[1]}\ns_lshl_b32 {st0}, {sc0}, 5\ns_lshl_b32 {st1}, {shead}, 5")
    for i in range(3): a(f"buffer_load_dwordx2 {b1r[2*i:2*i+2]}, {vb[0]}, {srd['b1']}, {st0} offen offset:{i*128}")
    for e in range(2): a(f"buffer_load_dwordx2 {b2[2*e:2*e+2]}, {vb[1]}, {srd['b2']}, {st1} offen offset:{e*16}")
    setup = its(f"""v_and_b32 {vsw}, 56, {lane}
v_and_b32 {vsl}, 7, {lane}
v_mul_u32_u24 {vsl}, 1088, {vsl}
v_add_u32 {vsl}, {vsl}, {vsw}
s_lshl_b32 {st0}, {sw}, 6
s_add_u32 {st1}, {st0}, {SL}
v_add_u32 {vsl}, {st1}, {vsl}
s_add_u32 {st0}, {st0}, {RB}
v_add_u32 {vsw}, {st0}, {vsw}
v_mov_b32 {vgb[0]}, {f32(GB)}
v_mov_b32 {vgb[1]}, {f32(GB)}
v_and_b32 {vrn}, 15, {lane}
v_lshlrev_b32 {vrn}, 3, {vrn}
v_add_u32 {vrn}, {RB}, {vrn}""")
    k.pack(csm(KC, 16), [take(W2L, W2N[0]), setup], False, vgap=4)
    flag(0, ('h', 0)); a("s_barrier")
    k.stamp('ack')
    for r in range(4): a(f"v_lshlrev_b32 {tm[2*r]}, 16, {b2[r]}\nv_and_b32 {tm[2*r+1]}, 0xffff0000, {b2[r]}")
    for H in range(2):
        for e in range(0, 8, 2): a(f"v_pk_add_f32 {HBs[H][e:e+2]}, {HBs[H][e:e+2]}, {tm[e:e+2]}")
    for i in range(3):
        for h in range(2): a(f"v_lshlrev_b32 {b1f[i*4+2*h]}, 16, {b1r[2*i+h]}\nv_and_b32 {b1f[i*4+2*h+1]}, 0xffff0000, {b1r[2*i+h]}")
    a(fload(0)); fcheck(0)
    k.stamp('s2')
    def dma_h(tt):
        return (its(f"s_add_u32 m0, {sw12}, {tt*16384}\ns_add_u32 {ssoff}, {shs}, {tt*16384}")
                + [k.vm(f"buffer_load_dwordx4 {vl16}, {ws}, {ssoff} offen offset:{i*1024} sc1 lds", ('ht', tt)) for i in range(4)])
    svs = [v(200, 8), v(152, 8)]
    def stat_reads(H): return [f"ds_read_b64 {svs[H][2*q:2*q+2]}, {vsl} offset:{H*8704 + q*256}" for q in range(4)]
    SD = its(f"s_mul_i32 {st0}, {sw}, 4352")
    for q in range(4): SD += its(f"s_add_u32 m0, {st0}, {SL + q*64}") + [k.vm(f"buffer_load_dwordx4 {vl16}, {ws}, {sst} offen offset:{q*1024} sc1 lds", ('st', 0))]
    k.run(dma_h(0) + SD + dma_h(1))
    HL = dma_h(2) + dma_h(3)
    k.run(take(HL, NHL))
    acc3 = v(160, 24); hf = v(184, 16); pk = v(200, 12); rn = v(248, 8)
    def stat_math():
        L = []
        for H in range(2):
            s = svs[H]
            L.append([f"v_add_f32 {s[d_+e]}, {s[d_+e]}, {s[o_+e]}" for d_, o_ in ((0, 2), (4, 6), (0, 4)) for e in range(2)]
                     + [x for d in (DPP_X1, DPP_X2, DPP_HM) for x in (f"v_add_f32 {s[0]}, {s[0]}, {s[0]} {d}", f"v_add_f32 {s[1]}, {s[1]}, {s[1]} {d}")]
                     + f"""v_mul_f32 {s[0]}, {f32(1/512)}, {s[0]}
v_mul_f32 {s[1]}, {f32(1/512)}, {s[1]}
v_fma_f32 {s[1]}, -{s[0]}, {s[0]}, {s[1]}
v_max_f32 {s[1]}, 0, {s[1]}
v_add_f32 {s[2]}, {seps}, {s[1]}
v_rsq_f32 {s[2]}, {s[2]}
v_mul_f32 {s[3]}, {s[2]}, {s[2]}
v_fma_f32 {s[3]}, {s[3]}, {s[1]}, {seps}
v_rsq_f32 {s[3]}, {s[3]}
v_mul_f32 {s[2]}, {s[2]}, {s[3]}
v_mul_f32 {s[3]}, -{s[2]}, {s[0]}
ds_write_b64 {vsw}, {s[2:4]} offset:{H*256}""".split('\n'))
        return [z for xy in zip(*L) for z in xy]
    def epi1(tt):
        ac = acc3[(tt&1)*12:(tt&1)*12+12]; p = rn[tt*2:tt*2+2]
        for e in range(0, 12, 2): a(f"v_pk_fma_f32 {tm[e:e+2]}, {p}, {cs[e:e+2]}, {b1f[e:e+2]} op_sel:[1,0,0]")
        for e in range(0, 12, 2): a(f"v_pk_fma_f32 {ac[e:e+2]}, {p}, {ac[e:e+2]}, {tm[e:e+2]} op_sel_hi:[0,1,1]")
        for e in range(0, 12, 2): a(f"v_pk_mul_f32 {tm[e:e+2]}, {ac[e:e+2]}, {ac[e:e+2]}")
        for e in range(0, 12, 2): a(f"v_pk_fma_f32 {tm[e:e+2]}, {tm[e:e+2]}, {sgab}, {vgb}")
        for e in range(0, 12, 2): a(f"v_pk_mul_f32 {tm[e:e+2]}, {tm[e:e+2]}, {ac[e:e+2]}")
    def epi2(tt, packed=False):
        add = [f"v_pk_add_f32 {tm[e:e+2]}, {tm[e:e+2]}, 1.0 op_sel_hi:[1,0]" for e in range(0, 12, 2)] if packed else [f"v_add_f32 {tm[e]}, 1.0, {tm[e]}" for e in range(12)]
        return [f"v_exp_f32 {tm[e]}, {tm[e]}" for e in range(12)] + add + [f"v_rcp_f32 {tm[e]}, {tm[e]}" for e in range(12)]
    def epi3(tt):
        ac = acc3[(tt&1)*12:(tt&1)*12+12]
        for e in range(0, 12, 2): a(f"v_pk_mul_f32 {ac[e:e+2]}, {ac[e:e+2]}, {tm[e:e+2]}")
        for i in range(3):
            for h in range(2): a(f"v_cvt_pk_bf16_f32 {pk[i*4+(tt&1)*2+h]}, {ac[i*4+2*h]}, {ac[i*4+2*h+1]}")
        if tt & 1:
            for i in range(3):
                for h in range(2): a(f"v_permlane16_swap_b32 {pk[i*4+h]}, {pk[i*4+2+h]}")
            if tt == 3: a(f"s_add_u32 {shh[0]}, {shh[0]}, {88*1024}\ns_add_u32 {shh[1]}, {shh[1]}, {88*1024}")
            tok['hh', tt >> 1] = store("\n".join(f"buffer_store_dwordx4 {pk[i*4:i*4+4]}, {vl16}, {ws}, {shh[min(i, 1)]} offen offset:{i*1024}" for i in range(3)), LOCH & (2 << (tt >> 1)))
    def rd(n): return f"ds_read_b128 {hf[(n&3)*4:(n&3)*4+4]}, {vl16} offset:{n*1024}"
    def rnrd(tt): return f"ds_read_b64 {rn[tt*2:tt*2+2]}, {vrn} offset:{tt*128}"
    a.wait(tok['ht', 0]); a("s_barrier")
    for n in range(3): a(rd(n))
    k.stamp('t0')
    def bar(*keys, more=None):
        def f():
            k.stamp('x%s%s' % keys[0])
            for key in keys: a.wait(tok[key])
            k.stamp('y%s%s' % keys[0])
            a("s_barrier")
            k.stamp('z%s%s' % keys[0])
            if more: more()
        return It(f, cost=2, kind='salu')
    for tt in range(4):
        mf = []; rq = []
        for ks in range(16):
            n = tt*16 + ks
            for i in range(3):
                d = acc3[(tt&1)*12+i*4:(tt&1)*12+i*4+4]
                mf.append(f"v_mfma_f32_16x16x32_bf16 {d}, {w1[(ks*3+i)*4:(ks*3+i)*4+4]}, {hf[(n&3)*4:(n&3)*4+4]}, {d if ks else 0}")
            if tt == 0 and ks == SK:
                x = bar(('st', 0)); x.after = 3*ks - 2; rq.append(x)
                rq += [It(y, after=3*ks - 1) for y in stat_reads(0) + stat_reads(1)]
            if ks == 13 and tt in (1, 2):
                x = bar(('ht', tt+1)); x.after = 3*ks - 2; rq.append(x)
            if n + 3 < 64 and not (tt == 0 and ks >= 13): rq.append(It(rd(n + 3) + "\ns_waitcnt lgkmcnt(2)", cost=3 if tt in (1, 3) else 2, after=3*ks, by=3*ks + 6))
        vq = take(W2L, W2N[tt+1])
        if tt == 0: vq = HL + vq
        fq = []
        if tt == 0:
            fq = [It(x, after=3*SK + 4) for x in stat_math()]
            fq += [It(lambda: (a.wait(tok['ht', 1]), a("s_waitcnt lgkmcnt(0)\ns_barrier")), cost=3, kind='salu', after=46)] + [rnrd(0), rd(16), rd(17), rd(18), rnrd(1), rnrd(2), rnrd(3)]
        if tt == 2:
            for x in vq: x.after = G2
        if tt == 3: vq = take(vq, 4) + [k.vm(fload(2), after=F5)] + vq
        k.pack(mf, [rq, vq, fq, epi2(tt-1) if tt in (1, 3) else []], False, vgap=VG3)
        k.stamp('m%d' % tt)
        if tt == 3: break
        if tt == 1:
            epi3(0); k.run(take(W2L, 1)); epi1(1); k.run(take(W2L, 1)); k.run(epi2(1, True)); epi3(1)

        else:
            epi1(tt)
        if tt == 2: flag(2, ('hh', 0))
        k.stamp('e%d' % tt)
    HH = ag(0, 176); acc4 = v(160, 64); tm4 = v(224, 24); ob = v(248, 4)
    vo = v(12); sob = shb; so4 = srd['x'][3]; send4 = srd['x'][1]
    def ld_hh(H):
        o = []
        for n in range(22):
            if n % 4 == 0: o += its(f"s_add_u32 {so4}, {shv}, {H*88*1024 + n*1024}")
            o.append(k.vm(f"buffer_load_dwordx4 {HH[(H*22+n)*4:(H*22+n)*4+4]}, {vl16}, {ws}, {so4} offen offset:{(n % 4)*1024} sc1"))
        return o
    def p4_mf(H):
        o = []
        for n in range(22):
            for t in range(2):
                d = acc4[H*32+t*16:H*32+t*16+16]
                o.append(f"v_mfma_f32_32x32x16_bf16 {d}, {w2frag(n, t)}, {HH[(H*22+n)*4:(H*22+n)*4+4]}, {d if n else 0}")
        return o
    def p4_epi(H, packed):
        own = acc4[H*32:H*32+8]; o = []
        if packed:
            o += [f"v_pk_add_f32 {own[e:e+2]}, {own[e:e+2]}, {HBs[H][e:e+2]}" for e in range(0, 8, 2)]
            o += [f"v_pk_add_f32 {own[e:e+2]}, {own[e:e+2]}, {tm4[r*8+e:r*8+e+2]}" for r in range(3) for e in range(0, 8, 2)]
        else:
            o += [f"v_add_f32 {own[e]}, {own[e]}, {HBs[H][e]}" for e in range(8)]
            o += [f"v_add_f32 {own[e]}, {own[e]}, {tm4[r*8+e]}" for r in range(3) for e in range(8)]
        o += [f"v_cvt_pk_bf16_f32 {ob[r]}, {own[2*r]}, {own[2*r+1]}" for r in range(4)]
        o += [f"v_permlane32_swap_b32 {ob[h]}, {ob[2+h]}" for h in range(2)]
        if H: o.append(f"s_add_u32 {sob}, {sob}, 32768")
        o.append(f"buffer_store_dwordx4 {ob}, {vo}, {srd['out']}, {sob} offen {OUTP}")
        return o
    LA = ld_hh(0); LB = ld_hh(1)
    class Rec:
        def __init__(s): s.l = []
        def __call__(s, t): s.l += [x for x in t.split('\n') if x.strip()]
    real = a; a = Rec(); epi3(2); epi1(3); tail = a.l + epi2(3, True); a = real
    fcheck(2)
    step = len(tail) // NLA
    for i, x in enumerate(tail):
        if i % step == 0 and i // step < NLA: k.run(take(LA, 1))
        a(x)
    epi3(3)
    k.stamp('p3e')
    a(f"""v_and_b32 {vo}, 31, {lane}
v_lshlrev_b32 {vo}, 10, {vo}
v_lshrrev_b32 {v(13)}, 5, {lane}
v_lshl_add_u32 {vo}, {v(13)}, 4, {vo}
s_lshl_b32 {sob}, {srb}, 16
s_lshl_b32 {st0}, {shead}, 5
s_add_u32 {sob}, {sob}, {st0}""")
    if FAKEOUT: a(f"v_lshrrev_b32 {t0}, 3, {lane}\nv_lshlrev_b32 {vo}, 10, {t0}\nv_and_b32 {t0}, 7, {lane}\nv_lshl_add_u32 {vo}, {t0}, 4, {vo}\ns_lshl_b32 {sob}, {srb}, 16\ns_lshl_b32 {st0}, {sj}, 7\ns_add_u32 {sob}, {sob}, {st0}\ns_lshl_b32 {st0}, {sw}, 13\ns_add_u32 {sob}, {sob}, {st0}")
    nleft = len([x for x in W2L if x.kind == 'vmem']); assert nleft <= 8, nleft; print('W2 left', nleft, file=sys.stderr)
    mfa = p4_mf(0)
    assert F4c <= 2*NLA
    k.run(mfa[:F4])
    k.pack(mfa[F4:F4b], [LA + W2L], True)
    flag(3, ('hh', 1))
    k.run(mfa[F4b:F4c])
    a(fload(3)); fcheck(3)
    k.stamp('s3b')
    k.pack(mfa[F4c:], [take(LB, (44 - F4c) // 2)], True, reserve=lambda i: 1, vgap=2)
    k.stamp('p4a')
    for x in red_w(acc4[0:32], 0):
        a(x); k.run(take(LB, 1))
    a("s_waitcnt lgkmcnt(0)\ns_barrier")
    mfb = p4_mf(1); rwb = red_w(acc4[32:64], 32768)
    mfb = mfb[:44-2*TL] + mfb[45-2*TL::2] + mfb[44-2*TL::2]
    k.pack(mfb[:44-TL+2], [LB, red_r(tm4, 0), [It(x, after=8) for x in p4_epi(0, False)]], True, reserve=lambda i: 1, vgap=2)
    for i, m in enumerate(mfb[44-TL+2:]):
        a(m); k.run(rwb[2+i:3+i] if i < 4 else [])
    k.stamp('p4b')
    k.run(rwb[2+TL-2:] + rwb[:2])
    a("s_waitcnt lgkmcnt(0)\ns_barrier")
    k.run(red_r(tm4, 32768))
    k.run(p4_epi(1, True))
    if STAMPS:
        a("s_waitcnt vmcnt(0)"); STAMPS.append('end'); k.stamp('end')
        t = f"s_memrealtime {rt[2:4]}\ns_waitcnt lgkmcnt(0)\nv_mov_b32 {t0}, {sw}\nv_lshlrev_b32 {t0}, 28, {t0}\ns_lshl_b32 {st0}, s2, 6\ns_add_u32 {st0}, {st0}, {WS_DBG}\n"
        for i in range(1, len(k.stamped)):
            t += f"s_sub_u32 {st1}, {k.str_[2*i]}, {k.str_[0]}\nv_mov_b32 {t1}, {st1}\nbuffer_store_dword {t1}, {t0}, {ws}, {st0} offen offset:{4*i}\n"
        t += f"v_mov_b32 {t1}, {rt[0]}\nbuffer_store_dword {t1}, {t0}, {ws}, {st0} offen offset:56\n"
        t += f"v_mov_b32 {t1}, {rt[2]}\nbuffer_store_dword {t1}, {t0}, {ws}, {st0} offen offset:60\n"
        a.hidden(t)
        print('stamps:', k.stamped[1:], file=sys.stderr)
    a("L_end:\ns_endpgm")
    return a.finish(), S.peak

def place_hops(body):
    import subprocess, re
    lines = body.split('\n'); m = lines.index('L_main:')
    tail = [l for l in lines[m+1:] if l.strip()]
    txt = '.amdgcn_target "amdgcn-amd-amdhsa--gfx950"\n.text\nL_hop3:\nL_hop4:\nL_hop5:\n' + '\n'.join(tail) + '\n'
    open('_h.s', 'w').write(txt)
    subprocess.run(['clang', '-x', 'assembler', '-target', 'amdgcn-amd-amdhsa', '-mcpu=gfx950', '-c', '_h.s', '-o', '_h.o'], check=True)
    dis = subprocess.run(['llvm-objdump', '-d', '--mcpu=gfx950', '_h.o'], capture_output=True, text=True).stdout
    addr = [int(x, 16) for x in re.findall(r'// ([0-9A-F]{12}):', dis)]
    ins = [i for i, l in enumerate(tail) if not l.endswith(':')]
    assert len(addr) == len(ins)
    out = []; nh = 0; pos = dict(zip(ins, addr)); hops = []
    for i, l in enumerate(tail):
        if i in pos and pos[i] + 4*nh >= 4096*nh:
            hops.append(len(out)); out.append(None); nh += 1
        out.append(l)
    assert 5 <= nh <= 6, nh
    for h, at in enumerate(hops): out[at] = f"L_hop{h}:\n    s_cbranch_execz L_back{h // 3}"
    if nh == 5: out.insert(hops[4], "L_hop5:")
    return '\n'.join(lines[:m+1] + out) + '\n'

def assemble():
    hdr = open('cdna_kernels/' + NAME + '.s.ref').read().split('; Override')[0]
    body, sp = kernel()
    print('sgpr', sp, 'lines', body.count('\n'), 'nops', body.count('s_nop'), file=sys.stderr)
    n = NAME + '_kernel'
    if HOP: body = place_hops(body)
    return (hdr + "; @launch grid=(256,1,1) block=(256,1,1) lds=163840\n" + '.amdgcn_target "amdgcn-amd-amdhsa--gfx950"\n.text\n'
            + f".globl {n}\n.p2align 8\n.type {n},@function\n{n}:\n{body}" + '.section .rodata,"a"\n.p2align 6\n' + descriptor(n, 512, 256))

if __name__ == '__main__':
    for x in sys.argv[3:]: exec(x)
    if len(sys.argv) > 2 and sys.argv[2] != '-': STAMPS = sys.argv[2].split(',')
    open(sys.argv[1], 'w').write(assemble())
```

```python
from asmlib import *
import struct, sys
def f32(x): return '0x%08x' % struct.unpack('<I', struct.pack('<f', x))[0]
NAME = 'sequential_preLN__linear_attn_block__mixer_channel_mlp__prompt'
WS_PQ = 0
WS_W2 = WS_PQ + (2 << 20)
WS_KV = WS_W2 + 8 * 88 * 2048
WS_CN = WS_KV + 65536
WS_H  = WS_CN + 32768
WS_ST = WS_H + (2 << 20)
WS_HH = WS_ST + 32 * 16384
WS_FL = WS_HH + 32 * 2 * 88 * 1024
WS_END = WS_FL + 32 * 4096
WS_DBG = WS_END
OOB = 0x7ff00000
LOG2E = 1.4426950408889634; LN2 = 0.6931471805599453
GA = -2 * 0.7978845608028654 * 0.044715 * LOG2E
GB = -2 * 0.7978845608028654 * LOG2E
KA = dict(x=0, wqkv=8, wo=16, w1=32, b1=40, w2=48, b2=56, out=64, dbg=72, ws=80)
SZ = dict(x=2048*512*2, wqkv=512*1536*2, wo=512*512*2, w1=512*1376*2, b1=1376*2, w2=1376*512*2, b2=512*2,
          out=2048*512*2, dbg=256, ws=WS_END + 16384)
DPP_X1 = 'quad_perm:[1,0,3,2] row_mask:0xf bank_mask:0xf'
DPP_X2 = 'quad_perm:[2,3,0,1] row_mask:0xf bank_mask:0xf'
DPP_HM = 'row_half_mirror row_mask:0xf bank_mask:0xf'
SPIN = 0x40000
STAMPS = None
D1 = 2
D2 = 1
AH = 10
VG1 = 4
FA = 6
F3 = 40
F4 = 20; F4b = 26; F4c = 32; TL = 5
EARLY = 1
UBA = 1
PACE = 1
R3 = 1; QX = 0; RW = 1
BK1 = 0; BK2 = 0
TLB = 0
W2Q = 1; W2R = 4
LOCH = 0
EARLYX = 0
HOP = 1
EXCL = 1
LAT = 1
XT = 0
NB = (3, 6, 6, 0, 0, 4); NQ = 2; AT0 = 3; PRE1 = 2
RTS = 0
DX = 1; RT = 6; QL = 0; QD = 10
NHL = 8; SK = 5; FAKEOUT = 0
HA = 1; FH = 12
W2P = 8
G2 = 26; F5 = 26; NLA = 16; OUTP = ''
FB1 = 48
NOW2 = 0; NOW1 = 0
red_w_last = None
NU_ARR = 8
PRE = 2
NS1 = 3
W2N = (2, 7, 11, 5, 9)
W2E = 2
VG3 = 4
HW = 4
T1 = ()
T2 = 0
LFLAG = 1

def v(b, n=1): return R('v', b, n)
def ag(b, n=1): return R('a', b, n)

class It:
    def __init__(self, x, cost=None, kind=None, after=0, by=None):
        self.x = x; self.after = after; self.by = by
        self.dw = 2 if isinstance(x, str) and 'b128' in x.split()[0] else 1
        if kind is None:
            mn = x.split()[0]
            kind = ('trans' if mn.startswith(TRANS) else 'valu' if mn.startswith('v_') else 'ds' if mn.startswith('ds_')
                    else 'vmem' if mn.startswith(('buffer', 'global')) else 'salu')
        self.kind = kind
        self.cost = cost if cost is not None else {'trans': 2, 'valu': 1, 'ds': 1, 'vmem': 3, 'salu': 1}.get(kind, 1)
def its(text, after=0): return [It(l.strip(), after=after) for l in text.split('\n') if l.strip()]

class K:
    def __init__(self):
        self.a = Asm(); self.S = Regs('s', 4, 102); self.nlab = 0
        self.stamped = []; self.tok = {}
    def emit(self, x):
        if isinstance(x, It): x = x.x
        if callable(x): return x()
        return self.a(x)
    def run(self, items):
        for x in items: self.emit(x)
    def vm(self, text, key=None, after=0):
        def f():
            t = self.a(text)
            if key is not None: self.tok[key] = t
        return It(f, kind='vmem', after=after)
    def pack(self, mf, queues, big, reserve=None, vgap=0, excl=False):
        qs = [[x if isinstance(x, It) else It(x) for x in q] for q in queues]
        cap, vcap, dcap = (7, 6, 4) if big else (3, 2, 2)
        lastv = -99
        for i, m in enumerate(mf):
            for q in qs:
                late = [n for n, x in enumerate(q) if x.by is not None and x.by <= i]
                if late:
                    assert all(x.after < i for x in q[:late[-1] + 1])
                    self.run(q[:late[-1] + 1]); del q[:late[-1] + 1]
            self.emit(m)
            s = cap - (reserve(i) if reserve else 0); vs = vcap; d = dcap
            if excl:
                hit = [q for q in qs if q and q[0].kind == 'vmem' and q[0].after <= i and i - lastv >= vgap]
                nds = sum(x.kind == 'ds' for q in qs for x in q)
                if hit and nds < len(mf) - i - 2:
                    self.emit(hit[0].pop(0)); lastv = i; continue
            for q in qs:
                while q:
                    x = q[0]
                    if x.after > i or x.cost > s: break
                    if x.kind in ('valu', 'trans') and x.cost > vs: break
                    if x.kind == 'ds' and (x.dw > d or (excl and d < dcap)): break
                    if x.kind == 'vmem' and excl: break
                    if x.kind == 'vmem' and i - lastv < vgap: break
                    q.pop(0); self.emit(x); s -= x.cost
                    if x.kind in ('valu', 'trans'): vs -= x.cost
                    if x.kind == 'trans' and not big: s = 0
                    if x.kind == 'ds': d -= x.dw
                    if x.kind == 'vmem': lastv = i
        left = sum(len(q) for q in qs)
        for q in qs: self.run(q)
        return left
    def stamp(self, name):
        if STAMPS and name in STAMPS:
            n = len(self.stamped); self.stamped.append(name)
            self.a.hidden(f"{'s_memrealtime' if RTS else 's_memtime'} {self.str_[2*n:2*n+2]}")
    def check(self, cmp_, mask, reload, st1, back=0):
        a = self.a; self.nlab += 1; n = self.nlab
        a(cmp_)
        a(f"s_cmp_eq_u32 vcc_lo, {mask}\ns_cbranch_scc1 L_ok{n}")
        a.hidden(f"""s_mov_b32 {st1}, 0
L_spin{n}:
{'s_sleep %d' % back if back else ''}
{reload}
s_add_u32 {st1}, {st1}, 1
s_waitcnt vmcnt(0)
{cmp_}
s_cmp_ge_u32 {st1}, {SPIN}
s_cbranch_scc1 L_ok{n}
s_nop 1
s_cmp_eq_u32 vcc_lo, {mask}
s_cbranch_scc0 L_spin{n}
L_ok{n}:""")

def kernel():
    k = K(); a = k.a; S = k.S; tok = k.tok
    a("s_cmp_ge_u32 s2, 256\ns_cbranch_scc1 L_end")
    if STAMPS:
        k.str_ = S.alloc(2*len(STAMPS) + 4, 4); rt = S.alloc(4, 4)
        a.hidden(f"s_memrealtime {rt[0:2]}")
        STAMPS.insert(0, 'start')
    k.stamp('start')
    srd = {}
    for n in ['x', 'wqkv', 'ws', 'dbg', 'wo', 'w1', 'w2', 'b1', 'b2', 'out']: srd[n] = S.alloc(4)
    for n in ['x', 'wqkv']: a(f"s_load_dwordx2 {srd[n][0:2]}, s[0:1], {KA[n]}")
    for n in ['x', 'wqkv']: a(f"s_mov_b32 {srd[n][2]}, {SZ[n]}\ns_mov_b32 {srd[n][3]}, 0x00020000")
    ws = srd['ws']
    st0, st1, ssoff, sw, sj, srb, shead, sj1, srb1, shead1 = [S.alloc() for _ in range(10)]
    sxb, swb, sw10, sw11, sw12, srot, sc_x, sc_w, sw6k = [S.alloc() for _ in range(9)]
    lane, vl16, t0, t1, t2, t3 = v(1), v(2), v(4), v(5), v(6), v(7)
    vxd = v(8, 2); vwd = v(10, 2)
    a(f"""v_and_b32 {lane}, 63, v0
v_lshrrev_b32 {t0}, 6, v0
v_readfirstlane_b32 {sw}, {t0}
s_and_b32 {sj1}, s2, 1
s_lshl_b32 {sj1}, {sj1}, 2
s_bfe_u32 {st0}, s2, 0x20003
s_add_u32 {sj1}, {sj1}, {st0}
s_bfe_u32 {srb1}, s2, 0x20001
s_lshl_b32 {srb1}, {srb1}, 3
s_lshr_b32 {st0}, s2, 5
s_add_u32 {srb1}, {srb1}, {st0}
v_lshrrev_b32 {t0}, 3, {lane}
v_and_b32 {t1}, 7, {lane}
v_xor_b32 {t2}, {t0}, {t1}
v_lshlrev_b32 {t2}, 4, {t2}
v_lshl_add_u32 {vxd[0]}, {t0}, 10, {t2}
v_add_u32 {vxd[1]}, 7168, {vxd[0]}
v_bfe_u32 {t2}, {lane}, 4, 1
s_and_b32 {st0}, {sw}, 1
s_lshl_b32 {st0}, {st0}, 1
v_or_b32 {t2}, {st0}, {t2}
v_lshrrev_b32 {t3}, 1, {t1}
v_xor_b32 {t2}, {t2}, {t3}
v_lshlrev_b32 {t2}, 5, {t2}
v_and_b32 {t3}, 1, {lane}
v_lshl_add_u32 {t2}, {t3}, 4, {t2}
v_mul_u32_u24 {vwd[0]}, 3072, {t0}
v_add_u32 {vwd[0]}, {vwd[0]}, {t2}
v_add_u32 {vwd[1]}, 98304, {vwd[0]}
s_lshl_b32 {sxb}, {srb1}, 16
s_lshl_b32 {st0}, {sw}, 14
s_add_u32 {sxb}, {sxb}, {st0}
s_mul_i32 {swb}, {sw}, {8*3072}
s_lshl_b32 {st0}, {sj1}, 7
s_add_u32 {swb}, {swb}, {st0}
s_lshl_b32 {sw10}, {sw}, 10
s_lshl_b32 {sw11}, {sw}, 11
s_lshl_b32 {sw12}, {sw}, 12
s_mul_i32 {sw6k}, {sw}, 6144
s_add_u32 {srot}, {srb1}, {sj1}
s_and_b32 {srot}, {srot}, {D1 - 1}
s_mul_i32 {srot}, {srot}, {8 // D1}""")
    if DX == 1: a(f"s_bfe_u32 {st0}, s2, 0x20001\ns_add_u32 {srot}, {srot}, {st0}\ns_and_b32 {st0}, s2, 1\ns_lshl_b32 {st0}, {st0}, 1\ns_add_u32 {srot}, {srot}, {st0}")
    if DX == 2: a(f"s_bfe_u32 {st0}, s2, 0x10001\ns_add_u32 {srot}, {srot}, {st0}")
    if DX == 3: a(f"s_bfe_u32 {st0}, s2, 0x20001\ns_lshl_b32 {st0}, {st0}, 1\ns_add_u32 {srot}, {srot}, {st0}\ns_and_b32 {st0}, s2, 1\ns_add_u32 {srot}, {srot}, {st0}")
    if R3: a(f"s_cmp_eq_u32 {sj1}, 3\ns_cselect_b32 {srot}, {srb1}, {srot}")
    sqd = S.alloc(); ssq = S.alloc()
    a(f"s_xor_b32 {sqd}, {sj1}, {QX}\ns_sub_u32 {sqd}, {sqd}, {sj1}\ns_lshl_b32 {sqd}, {sqd}, 7")
    WB = 65536; PB = WB + 3 * 24576; XR = PB + 8192
    def X(c):
        return (its(f"s_add_u32 {sc_x}, {srot}, {c}\ns_and_b32 {sc_x}, {sc_x}, 7\ns_lshl_b32 {sc_x}, {sc_x}, 7\ns_add_u32 {sc_x}, {sc_x}, {sxb}\ns_add_u32 m0, {sw11}, {c*8192}")
                + [k.vm(f"buffer_load_dwordx4 {vxd[o]}, {srd['x']}, {sc_x} offen offset:{o*1024} lds", ('x', c)) for o in range(2)])
    def wrot(c, add): return f"s_add_u32 {sc_w}, {srot}, {c}\ns_and_b32 {sc_w}, {sc_w}, 7\ns_mul_i32 {sc_w}, {sc_w}, {64*3072}\ns_add_u32 {sc_w}, {sc_w}, {swb}\n" + (f"s_add_u32 {sc_w}, {sc_w}, {add}\n" if add else "")
    def W(c):
        o = its(wrot(c, 0) + f"s_add_u32 {ssq}, {sc_w}, {sqd}")
        for h in range(2):
            o += its(f"s_add_u32 m0, {sw6k}, {WB + (c % 3)*24576 + h*3072}")
            o += [k.vm(f"buffer_load_dwordx4 {vwd[h]}, {srd['wqkv']}, {sc_w if p else ssq} offen offset:{p*1024} lds", ('w', c)) for p in range(3)]
        return o
    def w_lds(ks, p): return ((ks // 2) % 3) * 24576 + (ks & 1) * 3072 + p * 1024
    def take(lst, nv):
        o = []
        while lst and nv:
            x = lst.pop(0); o.append(x)
            if x.kind == 'vmem': nv -= 1
        return o
    def hops(r):
        a.hidden(f"s_mov_b64 exec, 0\n" + "".join(f"s_cmp_eq_u32 {sw}, {w}\ns_cbranch_scc1 L_hop{3*r + w}\n" for w in range(3)) + f"L_back{r}:\ns_mov_b64 exec, -1")
    a("s_waitcnt lgkmcnt(0)"); k.stamp('karg')
    k.run(X(0) + W(0))
    if XT:
        a(f"v_lshrrev_b32 {t0}, 4, {lane}\nv_lshlrev_b32 {t0}, 24, {t0}\nv_lshl_add_u32 {t0}, {lane}, 7, {t0}\ns_lshl_b32 {st0}, s2, 13\ns_add_u32 {st0}, {st0}, {sw11}")
        a(f"buffer_load_dword v0, {t0}, {srd['x']}, {st0} offen").wr = set()
    if XT > 1:
        a(f"v_max_u32 {t0}, 11, {lane}\nv_subrev_u32 {t0}, 11, {t0}\nv_lshlrev_b32 {t0}, 24, {t0}\nv_lshl_add_u32 {t0}, {lane}, 7, {t0}\ns_lshl_b32 {st0}, s2, 2\ns_add_u32 {st0}, {st0}, {sw}\ns_mul_i32 {st0}, {st0}, 1536")
        a(f"buffer_load_dword v0, {t0}, {srd['wqkv']}, {st0} offen").wr = set()
    for n in srd:
        if n not in ('x', 'wqkv'): a(f"s_load_dwordx2 {srd[n][0:2]}, s[0:1], {KA[n]}")
    W1_ = W(1)
    k.run(X(1) + (take(W1_, PRE1)))
    for n in srd:
        if n not in ('x', 'wqkv'): a(f"s_mov_b32 {srd[n][2]}, {SZ[n]}\ns_mov_b32 {srd[n][3]}, 0x00020000")
    skvb, sflb, spsrc, sxr, sdst, sones, seps = [S.alloc() for _ in range(7)]
    vz = v(44, 4); ones = v(40, 4); sxcc = S.alloc()
    a(f"s_getreg_b32 {sxcc}, hwreg(HW_REG_XCC_ID)\ns_and_b32 {sxcc}, {sxcc}, 15\ns_add_u32 {sxcc}, {sxcc}, 1")
    a(f"""s_bfe_u32 {sj}, s2, 0x30003
s_and_b32 {srb}, s2, 7
s_lshl_b32 {srb}, {srb}, 2
s_lshr_b32 {st0}, s2, 6
s_add_u32 {srb}, {srb}, {st0}
s_lshl_b32 {shead}, {sj}, 2
s_add_u32 {shead}, {shead}, {sw}
s_lshl_b32 {shead1}, {sj1}, 2
s_add_u32 {shead1}, {shead1}, {sw}
s_lshl_b32 {skvb}, {shead1}, 11
s_add_u32 {skvb}, {skvb}, {WS_KV}
s_lshl_b32 {sflb}, {srb}, 12
s_add_u32 {sflb}, {sflb}, {WS_FL}
v_lshlrev_b32 {vl16}, 4, {lane}""")
    for r in range(4): a(f"v_mov_b32 {vz[r]}, 0")
    a("s_waitcnt lgkmcnt(0)")
    szr = S.alloc()
    a(f"s_lshr_b32 {szr}, s2, 3\ns_and_b32 {st0}, s2, 7\ns_cselect_b32 {szr}, 8, {szr}" if EARLYX else f"s_mov_b32 {szr}, s2")
    a(f"s_cmp_ge_u32 {szr}, 8\ns_cbranch_scc1 L_nozero")
    a.hidden(f"""s_lshl_b32 {st0}, {szr}, 2
s_add_u32 {st0}, {st0}, {sw}
s_lshl_b32 {st0}, {st0}, 11
s_add_u32 {st0}, {st0}, {WS_KV}
buffer_store_dwordx4 {vz}, {vl16}, {ws}, {st0} offen sc1
buffer_store_dwordx4 {vz}, {vl16}, {ws}, {st0} offen offset:1024 sc1
s_sub_u32 {st0}, {st0}, {WS_KV}
s_lshr_b32 {st0}, {st0}, 1
s_add_u32 {st0}, {st0}, {WS_CN}
buffer_store_dwordx4 {vz}, {vl16}, {ws}, {st0} offen sc1
L_nozero:""")
    a(f"s_cmp_lg_u32 {sw}, 1\ns_cbranch_scc1 L_nofl")
    a.hidden(f"""s_lshl_b32 {st0}, {sj}, 7
s_add_u32 {st0}, {st0}, {sflb}
v_lshrrev_b32 {t0}, 2, {lane}
v_lshlrev_b32 {t0}, 26, {t0}
v_lshl_add_u32 {t0}, {lane}, 10, {t0}
v_mov_b32 {t1}, {sxcc}
buffer_store_dwordx4 {vz}, {t0}, {ws}, {st0} offen sc1
buffer_store_dword {t1}, {t0}, {ws}, {st0} offen offset:16 sc1
L_nofl:""")
    k.stamp('issued')
    if HOP:
        hops(0)
    vxa = v(12, 2); vsa = v(14, 2); vwa = v(16, 2); vxr = v(18, 2); vroot = v(20); vrootA = v(21); vp = v(178, 2); vw1d = v(3)
    pa = v(32, 2); va = v(34, 6)
    SB = PB + 16384
    KS = SB + 2048
    a(f"""v_lshrrev_b32 {t0}, 4, {lane}
v_and_b32 {t1}, 7, {lane}
v_xor_b32 {t2}, {t0}, {t1}
v_lshlrev_b32 {t2}, 4, {t2}
v_lshl_add_u32 {t2}, {t1}, 7, {t2}
v_bfe_u32 {t3}, {lane}, 3, 1
v_lshl_add_u32 {vxa[0]}, {t3}, 10, {t2}
v_xor_b32 {vxa[1]}, 64, {vxa[0]}
v_add_u32 {vsa[0]}, {sw11}, {vxa[0]}
v_add_u32 {vsa[1]}, {sw11}, {vxa[1]}
v_and_b32 {t2}, 1, {t0}
v_lshl_or_b32 {t2}, {t2}, 1, {t3}
v_xor_b32 {t2}, {sw}, {t2}
v_lshlrev_b32 {t2}, 5, {t2}
v_and_b32 {t3}, 3, {lane}
v_lshl_add_u32 {t2}, {t3}, 3, {t2}
v_bfe_u32 {t3}, {lane}, 2, 2
v_lshl_add_u32 {t2}, {t3}, 7, {t2}
v_mul_u32_u24 {t3}, 6144, {t0}
v_add_u32 {t2}, {t2}, {t3}
v_add_u32 {vwa[0]}, {WB}, {t2}
s_mov_b32 {sones}, 0x3f803f80
v_mov_b32 {ones[0]}, {sones}
v_mov_b32 {ones[1]}, {sones}
v_mov_b32 {ones[2]}, {sones}
v_mov_b32 {ones[3]}, {sones}""")
    later = its(f"""s_lshl_b32 {st0}, {sw}, 1
v_xor_b32 {t2}, {st0}, {t1}
v_lshlrev_b32 {t2}, 4, {t2}
v_lshl_add_u32 {t2}, {t1}, 7, {t2}
v_bfe_u32 {t3}, {lane}, 3, 2
v_lshl_add_u32 {t2}, {t3}, 10, {t2}
v_lshrrev_b32 {t3}, 5, {lane}
v_lshl_add_u32 {t2}, {t3}, 3, {t2}
v_add_u32 {vxr[0]}, {XR}, {t2}
v_xor_b32 {vxr[1]}, 16, {vxr[0]}
s_mov_b32 {seps}, {f32(1e-5)}
v_lshlrev_b32 {vrootA}, 5, {lane}
s_mul_i32 {st0}, {sw}, 1536
s_add_u32 {st0}, {st0}, {KS}
v_add_u32 {va[0]}, {st0}, {vl16}
v_lshl_add_u32 {va[1]}, {t0}, 4, {st0}
v_lshlrev_b32 {va[3]}, 2, {lane}
v_add_u32 {va[2]}, {st0}, {va[3]}
v_and_b32 {t1}, 15, {lane}
v_lshl_add_u32 {va[4]}, {t1}, 2, {st0}
v_bfe_u32 {t2}, {lane}, 2, 1
v_lshlrev_b32 {t2}, 10, {t2}
v_bfe_u32 {t1}, {lane}, 3, 1
v_lshl_add_u32 {t2}, {t1}, 9, {t2}
v_and_b32 {t1}, 3, {lane}
v_lshl_add_u32 {t2}, {t1}, 2, {t2}
v_add_u32 {t2}, 256, {t2}
v_lshrrev_b32 {t1}, 4, {lane}
v_lshl_add_u32 {va[5]}, {t1}, 28, {t2}""")
    su = S.alloc()
    if EARLYX:
        later += [It(f"""s_lshr_b32 {st1}, s2, 3
s_and_b32 {st0}, s2, 7
s_lshl_b32 {su}, {st1}, 2
s_add_u32 {su}, {su}, {st0}
s_cmp_lt_u32 {st0}, 4
s_cselect_b32 {su}, {su}, 255
s_add_u32 {ssoff}, {st1}, 128
s_cmp_eq_u32 {st0}, 7
s_cselect_b32 {su}, {ssoff}, {su}
s_add_u32 {ssoff}, {st1}, 160
s_cmp_eq_u32 {st0}, 6
s_cselect_b32 {su}, {ssoff}, {su}""", cost=3)]
    else: later += its(f"s_mov_b32 {su}, s2")
    later += its(f"""s_lshr_b32 {st1}, {su}, 3
s_and_b32 {st0}, {su}, 7
s_lshl_b32 {spsrc}, {st1}, 16
s_lshl_b32 {sdst}, {st0}, 7
s_add_u32 {spsrc}, {spsrc}, {sdst}
s_lshl_b32 {sdst}, {sw}, 14
s_add_u32 {spsrc}, {spsrc}, {sdst}
s_mul_i32 {sdst}, {st0}, {88*2048}
s_lshl_b32 {st1}, {st1}, 11
s_add_u32 {sdst}, {sdst}, {st1}
s_mul_i32 {st1}, {sw}, {22*2048}
s_add_u32 {sdst}, {sdst}, {st1}
s_add_u32 {sdst}, {sdst}, {WS_W2}
""") + [It(f"s_cmp_lt_u32 {su}, 176\ns_cselect_b32 {sdst}, {sdst}, {OOB}\ns_cselect_b32 {spsrc}, {spsrc}, {OOB}", cost=2)] + its(f"""
v_lshlrev_b32 {t0}, 10, {t3}
v_bfe_u32 {t1}, {lane}, 2, 2
v_lshl_add_u32 {t0}, {t1}, 7, {t0}
v_bfe_u32 {t1}, {lane}, 3, 1
v_lshlrev_b32 {t1}, 1, {t1}
v_bfe_u32 {t2}, {lane}, 4, 1
v_or_b32 {t1}, {t1}, {t2}
v_lshl_add_u32 {t0}, {t1}, 5, {t0}
v_and_b32 {t1}, 3, {lane}
v_lshl_add_u32 {t0}, {t1}, 3, {t0}
s_add_u32 {st1}, {sw11}, {PB}
v_add_u32 {pa[0]}, {st1}, {t0}
v_xor_b32 {pa[1]}, 64, {pa[0]}
v_lshrrev_b32 {t0}, 3, {lane}
v_lshlrev_b32 {t2}, 1, {t2}
v_bfe_u32 {t1}, {lane}, 1, 2
v_xor_b32 {t1}, {t1}, {t2}
v_lshlrev_b32 {t1}, 5, {t1}
v_and_b32 {t2}, 1, {lane}
v_lshl_add_u32 {t1}, {t2}, 4, {t1}
v_lshl_add_u32 {vp[0]}, {t0}, 10, {t1}
v_add_u32 {vp[1]}, 7168, {vp[0]}
s_lshr_b32 {st0}, {sw}, 1
s_lshl_b32 {st0}, {st0}, 5
v_xor_b32 {t1}, {st0}, {t1}
v_mul_u32_u24 {t0}, 2752, {t0}
v_add_u32 {vw1d}, {t0}, {t1}
s_lshl_b32 {sxr}, {srb}, 16
s_lshl_b32 {st0}, {sw}, 14
s_add_u32 {sxr}, {sxr}, {st0}
s_lshl_b32 {st0}, {sj}, 7
s_add_u32 {sxr}, {sxr}, {st0}""")
    def pd():
        a(f"s_cmp_ge_u32 {su}, 176\ns_cbranch_scc1 L_nopd")
        a.hidden(f"s_add_u32 m0, {sw11}, {PB}\ns_nop 0\n" + "".join(f"buffer_load_dwordx4 {vp[i]}, {srd['w2']}, {spsrc} offen offset:{i*1024} lds\n" for i in range(2)) + "L_nopd:")
    PD = [It(pd, kind='vmem')]
    XD = its(f"s_add_u32 m0, {sw11}, {XR}") + [k.vm(f"buffer_load_dwordx4 {vxd[i]}, {srd['x']}, {sxr} offen offset:{i*1024} lds", 'xr') for i in range(2)]
    def slot(ks): return ag((((ks // 2) - 2) % 6) * 40, 40)
    def xfrag(ks, tt): b = ((ks & 1)*4 + tt)*4; return slot(ks)[b:b+4]
    wf = v(48, 32)
    def wfrag(ks, p):
        if p == 0: return slot(ks)[32 + (ks & 1)*4:36 + (ks & 1)*4]
        b = ((ks & 3)*2 + p - 1)*4; return wf[b:b+4]
    def tr(dst, off): return [f"ds_read_b64_tr_b16 {dst[0:2]}, {vwa[0]} offset:{off}", f"ds_read_b64_tr_b16 {dst[2:4]}, {vwa[0]} offset:{off+512}"]
    def reads(c):
        o = []
        for ks in (2*c, 2*c+1):
            for p in (1, 2, 0): o += tr(wfrag(ks, p), w_lds(ks, p))
            for tt in range(4): o.append(f"ds_read_b128 {xfrag(ks, tt)}, {vxa[ks&1]} offset:{c*8192 + tt*2048}")
        return o
    sf = v(184, 16); acck = v(96, 16); accv = v(112, 16); accq = v(128, 16); csk = v(144, 4); csv = v(148, 4); csq = v(152, 4)
    rsum = v(156, 4); gram = v(160, 4); pf = v(164, 8); vsr = v(172, 4)
    nmv = v(184, 16); rlv = v(200, 16); rv = v(216, 16); qs = v(232, 8); tmp = v(240, 16)
    xres = v(24, 8)
    smA = S.alloc(2); smC = S.alloc(2)
    vt11 = v(176); vt4 = v(177); vt8 = v(182); NT1, NT0 = (22, 8) if EARLYX else (11, 4)
    later = its(f"""v_lshlrev_b32 {vt4}, 7, {lane}
v_max_u32 {vt11}, {NT1 - 1}, {lane}
v_subrev_u32 {vt11}, {NT1 - 1}, {vt11}
v_lshl_add_u32 {vt11}, {vt11}, 24, {vt4}
v_lshrrev_b32 {vt8}, {3 if EARLYX else 2}, {lane}
v_lshl_add_u32 {vt8}, {vt8}, 24, {vt4}
v_lshrrev_b32 {vz[3]}, 2, {lane}
v_lshl_add_u32 {vt4}, {vz[3]}, 24, {vt4}""") + later
    vth = v(180); vtf = v(181)
    if LOCH:
        later += its(f"""s_lshl_b32 {st0}, {sw}, 14
s_lshl_b32 {st1}, {sj}, 11
s_add_u32 {st0}, {st0}, {st1}
v_lshl_add_u32 {vth}, {lane}, 7, {st0}
s_lshr_b32 {st0}, {sw}, 1
s_lshl_b32 {st0}, {st0}, 13
s_lshl_b32 {st1}, {sj}, 10
s_add_u32 {st0}, {st0}, {st1}
s_and_b32 {st1}, {sw}, 1
s_lshl_b32 {st1}, {st1}, 9
s_add_u32 {st0}, {st0}, {st1}
s_mul_i32 {st1}, {srb}, {65536 - 16384}
s_sub_u32 {st0}, {st0}, {st1}
s_add_u32 {st0}, {st0}, {WS_ST - WS_H - 16*128}
v_lshl_add_u32 {t0}, {lane}, 7, {st0}""") + [It(f"v_cmp_gt_u32 vcc, 16, {lane}\ns_nop 1\nv_cndmask_b32 {vth}, {t0}, {vth}, vcc\nv_cmp_gt_u32 vcc, 20, {lane}\nv_mov_b32 {t0}, {OOB}\ns_nop 0\nv_cndmask_b32 {vth}, {t0}, {vth}, vcc", cost=2, kind='salu')]
        later += its(f"""s_mul_i32 {st0}, {sw}, {22*1024}
s_mul_i32 {st1}, {sj}, 3072
s_add_u32 {st0}, {st0}, {st1}
v_max_u32 {t0}, 23, {lane}
v_subrev_u32 {t0}, 23, {t0}
v_lshlrev_b32 {t0}, 24, {t0}
v_lshl_add_u32 {t0}, {lane}, 7, {t0}
v_add_u32 {vtf}, {st0}, {t0}""")
    def touch(srd_, vaddr, pre):
        def f(): a(f"buffer_load_dword v0, {vaddr}, {srd_}, {ssoff} offen").wr = set()
        return [It(pre, cost=2), It(f, kind='vmem')]
    later += its(f"""s_mov_b32 {smA[0]}, 0xaaaaaaaa
s_mov_b32 {smA[1]}, 0xaaaaaaaa
s_mov_b32 {smC[0]}, 0xcccccccc
s_mov_b32 {smC[1]}, 0xcccccccc
v_and_b32 {t0}, 15, {lane}
v_lshlrev_b32 {vsr[3]}, 3, {t0}
v_lshlrev_b32 {t0}, 2, {t0}
s_lshl_b32 {st0}, {sw}, 6
v_add_u32 {vsr[0]}, {st0}, {t0}
v_lshlrev_b32 {vsr[1]}, 1, {vsr[0]}
v_lshrrev_b32 {vsr[2]}, 4, {lane}
v_lshlrev_b32 {vsr[2]}, 4, {vsr[2]}
v_add_u32 {vsr[0]}, {SB}, {vsr[0]}
v_add_u32 {vsr[1]}, {SB}, {vsr[1]}
v_add_u32 {vsr[2]}, {SB}, {vsr[2]}
v_add_u32 {vsr[3]}, {SB}, {vsr[3]}""")
    if LAT:
        h_ = len(later) // 2; k.run(later[:h_] + take(W1_, 2) + later[h_:]); later = []
    k.run(W1_)
    if HOP: a("s_branch L_main\n.p2align 12\nL_main:")
    a.wait(tok['w', 0]); a("s_barrier"); k.stamp('first')
    for r in reads(0): a(r)
    k.run(X(2) + W(2))
    swo = spsrc; sw14 = sxr; sc0 = sj1; sw1b = sxb; sinv = srd['wqkv'][2]; sw1o = srd['wqkv'][3]
    NEXT = its(f"""s_lshl_b32 {swo}, {sw}, 17
s_lshl_b32 {st0}, {sj}, 7
s_add_u32 {swo}, {swo}, {st0}
s_lshl_b32 {sw14}, {sw}, 14
s_mul_i32 {sc0}, {sj}, 12
s_add_u32 {sc0}, {sc0}, {sw}
s_mul_i32 {sw1b}, {sw}, {8*2752}
s_mul_i32 {st0}, {sj}, 384
s_add_u32 {sw1b}, {sw1b}, {st0}""") + [It(f"s_cmp_lt_u32 {sj}, 7\ns_cselect_b32 {sinv}, 0, {OOB}", cost=2),
        It(f"s_and_b32 {sqd}, {srb}, 3\ns_lshl_b32 {sqd}, {sqd}, 1\ns_cmp_eq_u32 {sj}, {3 if RW else 99}\ns_cselect_b32 {sqd}, {sqd}, 0", cost=3)]
    WOD = []
    for g2 in range(8):
        WOD += its(f"s_add_u32 {ssq}, {sqd}, {g2}\ns_and_b32 {ssq}, {ssq}, 7\ns_lshl_b32 {sc_x}, {ssq}, 14\ns_add_u32 {sc_x}, {sc_x}, {swo}\ns_lshl_b32 {ssq}, {ssq}, 11\ns_add_u32 m0, {ssq}, {sw14}")
        WOD += [k.vm(f"buffer_load_dwordx4 {vp[i]}, {srd['wo']}, {sc_x} offen offset:{i*1024} lds", 'wo') for i in range(2)]
    UPOS = [WB + p*12288 for p in (4, 5, 0, 1, 2, 3, 6, 7)]
    def U(ks):
        o = its(f"s_add_u32 {sc_w}, {sw1b}, {ks*32*2752}\ns_add_u32 {sw1o}, {sc_w}, {sinv}")
        for s in range(3):
            o += its(f"s_add_u32 m0, {sw10}, {UPOS[ks & 7] + s*4096 - s*128}")
            o.append(k.vm(f"buffer_load_dwordx4 {vw1d}, {srd['w1']}, {sw1o if s else sc_w} offen offset:{s*128} lds", ('u', ks)))
        return o
    BULK = U(0) + U(1) + U(2) + U(3) + WOD + U(4) + U(5)
    assert NB[0] <= 6 and NB[0] + NB[1] <= 12
    QM = []
    stats_at = {0: (0, 1), 1: (2,), 2: (3,), 3: (4, 5), 4: (6,), 5: (7,)}
    rootld = f"buffer_load_dword {vroot}, {vrootA}, {srd['dbg']}, 0 offen sc1"
    for c in range(8):
        need_ = ([('w', c+1), ('x', c+1)] if c < 7 else []) + [('x', cc) for cc in stats_at.get(c, ())] + (['xr'] if c == 7 else [])
        k.stamp('j%d' % c)
        for key in need_: a.wait(tok[key])
        k.stamp('k%d' % c)
        a("s_waitcnt lgkmcnt(0)\ns_barrier")
        k.stamp('i%d' % c)
        if c == 1:
            a(f"s_cmp_ge_u32 {szr}, 8\ns_cbranch_scc1 L_noroot\ns_cmp_lg_u32 {sw}, 0\ns_cbranch_scc1 L_noroot")
            a.hidden(f"""s_lshl_b32 {ssoff}, {szr}, 5
v_lshlrev_b32 {vz[0]}, 24, {lane}
v_mov_b32 {vz[1]}, 1
buffer_store_dword {vz[1]}, {vz[0]}, {srd['dbg']}, {ssoff} offen sc1
L_noroot:""")
        mf = []
        for ks in (2*c, 2*c+1):
            for tt in range(4):
                for p, acc in ((1, acck), (2, accv)):
                    d = acc[tt*4:tt*4+4]
                    mf.append(f"v_mfma_f32_16x16x32_bf16 {d}, {xfrag(ks, tt)}, {wfrag(ks, p)}, {d if ks else 0}")
            for p, acc in ((1, csk), (2, csv)):
                mf.append(f"v_mfma_f32_16x16x32_bf16 {acc}, {ones}, {wfrag(ks, p)}, {acc if ks else 0}")
        for ks in (2*c, 2*c+1):
            dst = QM if c >= 8 - NQ else mf
            for tt in range(4):
                d = accq[tt*4:tt*4+4]
                dst.append(f"v_mfma_f32_16x16x32_bf16 {d}, {wfrag(ks, 0)}, {xfrag(ks, tt)}, {d if ks else 0}")
            dst.append(f"v_mfma_f32_16x16x32_bf16 {csq}, {wfrag(ks, 0)}, {ones}, {csq if ks else 0}")
        rd = []
        for i, cc in enumerate(stats_at.get(c, ())):
            for p in range(2):
                s_ = sf[(2*i+p)*4:(2*i+p)*4+4]; first = (cc == 0 and p == 0)
                rd.append(f"ds_read_b128 {s_}, {vsa[p]} offset:{cc*8192}")
                mf.append(f"v_mfma_f32_16x16x32_bf16 {rsum}, {s_}, {ones}, {0 if first else rsum}")
                mf.append(f"v_mfma_f32_16x16x32_bf16 {gram}, {s_}, {s_}, {0 if first else gram}")
        if c < 7: rd += reads(c+1)
        if c == 7:
            for tt in range(4):
                rd += [f"ds_read_b128 {nmv[tt*4:tt*4+4]}, {vsr[2]} offset:{tt*64}", f"ds_read_b128 {rlv[tt*4:tt*4+4]}, {vsr[2]} offset:{512 + tt*64}"]
            for tt in range(4):
                rd += [f"ds_read_b128 {rv[tt*4:tt*4+4]}, {vsr[2]} offset:{256 + tt*64}", f"ds_read_b64 {qs[tt*2:tt*2+2]}, {vsr[3]} offset:{768 + tt*128}"]
        if c == 7:
            rd += [f"ds_read_b64 {xres[4*H+2*e:4*H+2*e+2]}, {vxr[e]} offset:{H*4096}" for H in range(2) for e in range(2)]
            for n in range(2): rd += [f"ds_read_b64_tr_b16 {pf[n*4:n*4+2]}, {pa[n]}", f"ds_read_b64_tr_b16 {pf[n*4+2:n*4+4]}, {pa[n]} offset:512"]
        dm = {0: W(3) + X(3), 1: W(4) + X(4) + X(5), 2: W(5) + X(6), 3: W(6) + X(7), 4: W(7) + PD + XD,
              5: [k.vm(rootld)] + NEXT, 6: [], 7: []}[c]
        if c == HW:
            def f5():
                a(f"s_cmp_lg_u32 {sw}, 0\ns_cbranch_scc1 L_nob")
                a.hidden(f"s_mul_i32 {ssoff}, {sj}, 384\nbuffer_load_dword v0, {vt4}, {srd['b1']}, {ssoff} offen\ns_lshl_b32 {ssoff}, {sj}, 7\nbuffer_load_dword v0, {vt4}, {srd['b2']}, {ssoff} offen\n"
                         + (f"v_lshlrev_b32 {vth}, 20, {lane}\nbuffer_load_dword v0, {vth}, {ws}, 0 offen\nbuffer_load_dword v0, {vth}, {srd['out']}, 0 offen\n" if TLB else "") + "L_nob:")
            def f6():
                if EARLYX: a("s_bitcmp1_b32 s2, 2\ns_cbranch_scc1 L_nohw")
                idx = f"s_lshr_b32 {ssoff}, s2, 3\ns_lshl_b32 {ssoff}, {ssoff}, 2\ns_and_b32 {st0}, s2, 3\ns_add_u32 {ssoff}, {ssoff}, {st0}\n" if EARLYX else f"s_mov_b32 {ssoff}, s2\n"
                a.hidden(idx + f"s_lshl_b32 {ssoff}, {ssoff}, 2\ns_add_u32 {st0}, {ssoff}, {sw}\ns_mul_i32 {ssoff}, {st0}, {NT1*128}\nbuffer_load_dword v0, {vt11}, {srd['w1']}, {ssoff} offen\n"
                         + f"s_mul_i32 {ssoff}, {st0}, {NT0*128}\nbuffer_load_dword v0, {vt8}, {srd['wo']}, {ssoff} offen\nL_nohw:")
            dm = dm + [It(f6, kind='vmem'), It(f5, kind='vmem')]
            if LOCH & 1: dm += touch(ws, vth, f"s_lshl_b32 {ssoff}, {srb}, 16\ns_add_u32 {ssoff}, {ssoff}, {WS_H}")
            for H in range(2):
                if LOCH & (2 << H): dm += touch(ws, vtf, f"s_mul_i32 {ssoff}, {srb}, {2*88*1024}\ns_add_u32 {ssoff}, {ssoff}, {WS_HH + H*88*1024}")
        if c >= 5: dm = dm + take(BULK, NB[c-5])
        for x in dm:
            if x.kind == 'vmem': x.cost = 2
        vq = []
        if c == 6:
            vq = its(f"""v_cndmask_b32 {rsum[0]}, {rsum[0]}, {rsum[1]}, {smA}
v_cndmask_b32 {rsum[2]}, {rsum[2]}, {rsum[3]}, {smA}
v_cndmask_b32 {gram[0]}, {gram[0]}, {gram[1]}, {smA}
v_cndmask_b32 {gram[2]}, {gram[2]}, {gram[3]}, {smA}
v_cndmask_b32 {rsum[0]}, {rsum[0]}, {rsum[2]}, {smC}
v_cndmask_b32 {gram[0]}, {gram[0]}, {gram[2]}, {smC}
v_mul_f32 {rsum[0]}, {f32(-1/512)}, {rsum[0]}
v_mul_f32 {gram[0]}, {f32(1/512)}, {gram[0]}
v_fma_f32 {gram[0]}, -{rsum[0]}, {rsum[0]}, {gram[0]}
v_max_f32 {gram[0]}, 0, {gram[0]}
v_add_f32 {gram[0]}, {seps}, {gram[0]}
v_rsq_f32 {gram[0]}, {gram[0]}
v_mul_f32 {rsum[1]}, {f32(LOG2E)}, {gram[0]}""")
            vq.append(It(f"""s_mov_b32 exec_lo, 0x00f0000f
s_mov_b32 exec_hi, 0xf0000f00
ds_write_b32 {vsr[0]}, {rsum[0]} offset:0
ds_write_b32 {vsr[0]}, {gram[0]} offset:{256}
ds_write_b32 {vsr[0]}, {rsum[1]} offset:{512}
ds_write_b64 {vsr[1]}, {rsum[0:2]} offset:{768}
s_mov_b64 exec, -1""", cost=1, kind='salu'))
        if c < 4:
            n = len(later) if c == 3 else 40
            vq = later[:n]; later = later[n:]
        k.pack(mf, [rd, dm, vq] if c < 4 else [rd, vq, dm], False, vgap=VG1 if len([x for x in dm if x.kind == 'vmem'])*VG1 <= len(mf) else 3, excl=EXCL)
    k.stamp('pass1')
    sdel = smA; sln2 = smC
    a(f"s_mov_b32 {sdel[0]}, {f32(1e-6/LN2)}\ns_mov_b32 {sdel[1]}, {f32(1e-6/LN2)}\ns_mov_b32 {sln2[0]}, {f32(LN2)}\ns_mov_b32 {sln2[1]}, {f32(LN2)}")
    def phi_tail(acc, n):
        return ([f"v_exp_f32 {tmp[r]}, {acc[r]} clamp" for r in range(n)] + [f"v_max_f32 {acc[r]}, {sdel[0]}, {acc[r]}" for r in range(n)]
                + [f"v_pk_fma_f32 {acc[r:r+2]}, {acc[r:r+2]}, {sln2}, {tmp[r:r+2]}" for r in range(0, n, 2)])
    def weave(ops, nv):
        step = len(ops) // max(nv, 1)
        for i, x in enumerate(ops):
            if nv and i % step == step // 2 and i // step < nv: k.run(take(BULK, 1))
            a(x)
    pkf = v(48, 8); vf = v(56, 8)
    weave([f"v_pk_fma_f32 {acck[r:r+2]}, {nmv[r:r+2]}, {csk[0:2]}, {acck[r:r+2]}" for r in range(0, 16, 2)]
          + [f"v_pk_fma_f32 {acck[r:r+2]}, {acck[r:r+2]}, {rlv[r:r+2]}, {sdel}" for r in range(0, 16, 2)] + phi_tail(acck, 16)
          + [f"v_cvt_pk_bf16_f32 {pkf[r]}, {acck[2*r]}, {acck[2*r+1]}" for r in range(8)]
          + [f"v_pk_fma_f32 {accv[r:r+2]}, {nmv[r:r+2]}, {csv[0:2]}, {accv[r:r+2]}" for r in range(0, 16, 2)]
          + [f"v_pk_mul_f32 {accv[r:r+2]}, {accv[r:r+2]}, {rv[r:r+2]}" for r in range(0, 16, 2)]
          + [f"v_cvt_pk_bf16_f32 {vf[r]}, {accv[2*r]}, {accv[2*r+1]}" for r in range(8)], NB[3])
    dkv = v(64, 4); dz = v(68, 4); bn = v(72, 5)
    for h in range(2):
        a(f"v_mfma_f32_16x16x32_bf16 {dkv}, {pkf[h*4:h*4+4]}, {vf[h*4:h*4+4]}, {dkv if h else 0}")
        a(f"v_mfma_f32_16x16x32_bf16 {dz}, {pkf[h*4:h*4+4]}, {ones}, {dz if h else 0}")
    qops = []
    for tt in range(4): qops += [f"v_pk_fma_f32 {accq[tt*4+r:tt*4+r+2]}, {qs[tt*2:tt*2+2]}, {csq[r:r+2]}, {accq[tt*4+r:tt*4+r+2]} op_sel_hi:[0,1,1]" for r in (0, 2)]
    for tt in range(4): qops += [f"v_pk_fma_f32 {accq[tt*4+r:tt*4+r+2]}, {accq[tt*4+r:tt*4+r+2]}, {qs[tt*2:tt*2+2]}, {sdel} op_sel:[0,1,0]" for r in (0, 2)]
    qops += phi_tail(accq, 16)
    k.check(f"v_cmp_ne_u32 vcc, 0, {vroot}", 0xff, rootld, st1)
    a(f"ds_write_b128 {va[0]}, {dkv}\nds_write_b128 {va[1]}, {dz} offset:1024")
    for g in range(4): a(f"ds_read_b32 {bn[g]}, {va[2]} offset:{g*256}")
    a(f"ds_read_b32 {bn[4]}, {va[4]} offset:1024")
    at = [k.vm(f"buffer_atomic_add_f32 {bn[gg]}, {va[3]}, {ws}, {skvb} offen offset:{(gg&1)*1024 + (gg>>1)*512}", after=AT0) for gg in range(4)]
    at.append(k.vm(f"buffer_atomic_add_f32 {bn[4]}, {va[5]}, {ws}, {skvb} offen"))
    k.pack(QM, [at + take(BULK, NB[4])], False, vgap=4)
    weave(qops, NB[5])
    k.stamp('atom')
    a(f"s_lshl_b32 {st0}, {srb1}, 16\ns_xor_b32 {st1}, {shead1}, {4*QX}\ns_lshl_b32 {st1}, {st1}, 10\ns_add_u32 {st0}, {st0}, {st1}\ns_add_u32 {st0}, {st0}, {WS_PQ}\ns_add_u32 {st1}, {st0}, 32768")
    for t32 in range(2):
        d = v(80, 8)[t32*4:t32*4+4]
        for s in range(2):
            for h in range(2):
                a(f"v_cvt_pk_bf16_f32 {d[2*s+h]}, {accq[(2*t32+s)*4+2*h]}, {accq[(2*t32+s)*4+2*h+1]}")
        for h in range(2): a(f"v_permlane16_swap_b32 {d[h]}, {d[2+h]}")
        if t32 == 1:
            a(f"s_cmp_ge_u32 {su}, 176\ns_cbranch_scc1 L_nops")
            a.hidden("".join(f"buffer_store_dwordx4 {pf[n*4:n*4+4]}, {vl16}, {ws}, {sdst} offen offset:{n*1024} sc1\n" for n in range(2)) + "L_nops:")
        tok['pq'] = a(f"buffer_store_dwordx4 {d}, {vl16}, {ws}, {(st0, st1)[t32]} offen sc1")
    k.stamp('pqst')
    a("s_barrier")
    UL = BULK + U(6) + U(7)
    k.run(take(UL, NU_ARR // 2))
    vw1r = v(8, 2); vwr = v(12, 2); vcA = v(14); vc = v(15); vrw = v(16, 3); vrr = v(19); vh = v(20); vst = v(21); vone = v(22); vlz = v(23)
    vfA = v(10); vkv = v(11); vfl = v(4, 4)
    skv = srd['wqkv'][0]; spq = srd['wqkv'][1]; shb = srd['x'][0]; sstb = srd['x'][1]; se6 = sdst; scn = sw6k
    a(f"""v_bfe_u32 {t0}, {lane}, 4, 1
v_bfe_u32 {t1}, {lane}, 3, 1
v_lshl_or_b32 {t1}, {t1}, 1, {t0}
v_xor_b32 {t1}, {sw}, {t1}
v_lshlrev_b32 {t1}, 5, {t1}
v_and_b32 {t2}, 3, {lane}
v_lshl_add_u32 {t1}, {t2}, 3, {t1}
v_bfe_u32 {t2}, {lane}, 2, 2
v_lshl_add_u32 {t1}, {t2}, 7, {t1}
v_lshrrev_b32 {t3}, 5, {lane}
v_lshl_add_u32 {t1}, {t3}, 9, {t1}
v_add_u32 {vwr[0]}, {sw14}, {t1}
v_xor_b32 {vwr[1]}, 64, {vwr[0]}
v_lshl_add_u32 {t1}, {t0}, 11, {t1}
v_add_u32 {vw1r[0]}, {WB}, {t1}
v_add_u32 {vw1r[1]}, {WB + 49152}, {t1}
v_mov_b32 {vone}, 1
v_lshlrev_b32 {vlz}, 24, {lane}
v_lshlrev_b32 {t1}, 8, {lane}
v_lshl_add_u32 {vcA}, {t3}, 30, {t1}
v_lshlrev_b32 {vh}, 14, {t0}
v_lshl_add_u32 {vh}, {t3}, 9, {vh}
v_and_b32 {t1}, 15, {lane}
v_lshl_add_u32 {vh}, {t1}, 4, {vh}
v_and_b32 {t1}, 31, {lane}
v_lshlrev_b32 {t1}, 3, {t1}
v_lshl_add_u32 {vst}, {t3}, 13, {t1}
v_lshrrev_b32 {t0}, 3, {lane}
v_lshlrev_b32 {t0}, 26, {t0}
v_lshl_add_u32 {vfA}, {lane}, 7, {t0}
v_and_b32 {t0}, 31, {lane}
v_min_u32 {t0}, 16, {t0}
v_lshlrev_b32 {t0}, 4, {t0}
v_lshl_add_u32 {vkv}, {t3}, 9, {t0}""")
    k.run(take(UL, NU_ARR - NU_ARR // 2))
    for r in (1, 2, 3):
        a(f"s_xor_b32 {st0}, {sw}, {r}\ns_lshl_b32 {st0}, {st0}, 13\ns_add_u32 {st0}, {st0}, {r*2048}\nv_add_u32 {vrw[r-1]}, {st0}, {vl16}")
    a(f"""s_lshl_b32 {st0}, {sw}, 13
v_add_u32 {vrr}, {st0}, {vl16}
s_add_u32 {skv}, {sw14}, {WS_KV}
s_lshl_b32 {spq}, {srb}, 16
s_add_u32 {spq}, {spq}, {st0}
s_add_u32 {spq}, {spq}, {WS_PQ}
s_lshl_b32 {shb}, {srb}, 16
s_lshr_b32 {st0}, {shead}, 1
s_lshl_b32 {st0}, {st0}, 10
s_add_u32 {shb}, {shb}, {st0}
s_and_b32 {st0}, {sw}, 1
s_lshl_b32 {st0}, {st0}, 8
s_add_u32 {shb}, {shb}, {st0}
s_add_u32 {shb}, {shb}, {WS_H}
s_lshl_b32 {sstb}, {srb}, 14
s_lshl_b32 {st0}, {shead}, 8
s_add_u32 {sstb}, {sstb}, {st0}
s_add_u32 {sstb}, {sstb}, {WS_ST}
s_mov_b32 {se6}, {f32(1e-6)}
s_and_b32 {st0}, {srb1}, 3
s_lshl_b32 {st1}, {shead1}, 2
s_add_u32 {st0}, {st0}, {st1}
s_lshl_b32 {st0}, {st0}, 8
s_add_u32 {st0}, {st0}, {WS_CN}
s_lshl_b32 {scn}, {sw}, 13
s_add_u32 {scn}, {scn}, {WS_CN}""")
    a.wait(tok['pq'])
    a(f"buffer_atomic_add {vone}, {vlz}, {ws}, {st0} offen")
    k.stamp('arrive')
    WO = v(48, 64); KZ = v(112, 32); OF = v(144, 8); csa = v(40, 4)
    w1 = ag(0, 192)
    wor = []
    for hh in range(8):
        for t in range(2):
            d = WO[(hh*2+t)*4:(hh*2+t)*4+4]
            wor += [f"ds_read_b64_tr_b16 {d[0:2]}, {vwr[t]} offset:{hh*2048}", f"ds_read_b64_tr_b16 {d[2:4]}, {vwr[t]} offset:{hh*2048+1024}"]
    k.run(UL)
    sw2 = swo; send = sc_x; shh = [skvb, shead1]; so2 = swb; srot3 = srb1; sgab = smA; shv = srd['x'][2]
    RB = 65536; SL = RB + 4096
    a(f"""s_mul_i32 {st0}, {srb}, {2*88*1024}
s_mul_i32 {st1}, {sw}, {22*1024}
s_add_u32 {st0}, {st0}, {st1}
s_add_u32 {shv}, {st0}, {WS_HH}
s_mul_i32 {st1}, {sj}, 3072
s_add_u32 {shh[0]}, {shv}, {st1}
s_add_u32 {shh[1]}, {shh[0]}, {sinv}
s_mov_b32 {sgab[0]}, {f32(GA)}
s_mov_b32 {sgab[1]}, {f32(GA)}
s_mul_i32 {sw2}, {shead}, {22*2048}
s_add_u32 {sw2}, {sw2}, {WS_W2 if not NOW2 else OOB}
""")
    if HOP: hops(1)
    a.wait(tok['wo']); k.run(wor)
    def rd_w1(k0, k1):
        o = []
        for ks in range(k0, k1):
            for s in range(3):
                d = w1[(ks*3+s)*4:(ks*3+s)*4+4]; off = UPOS[ks & 7] - WB + s*4096
                b = vw1r[0] if off < 49152 else vw1r[1]; off %= 49152
                o += [f"ds_read_b64_tr_b16 {d[0:2]}, {b} offset:{off}", f"ds_read_b64_tr_b16 {d[2:4]}, {b} offset:{off + 1024}"]
        return o
    cload = f"buffer_load_dword {vc}, {vcA}, {ws}, {scn} offen sc1"
    if NS1 == 2:
        a(cload)
        a.wait(tok['u', 3]); a("s_waitcnt lgkmcnt(0)\ns_barrier")
    cst = [v(44, 4), v(152, 4), v(156, 4)]; cs = v(224, 12)
    KC = 4 if NS1 == 2 else 8
    def csm(k0, k1):
        o = []
        for ks in range(k0, k1):
            for s in range(3):
                d = cst[s] if ks < KC else cs[s*4:s*4+4]
                o.append(f"v_mfma_f32_16x16x32_bf16 {d}, {w1[(ks*3+s)*4:(ks*3+s)*4+4]}, {csa}, {0 if ks == 0 else cst[s] if ks <= KC else d}")
        return o
    UB = U(8) + U(9) + U(10) + U(11); UC = U(12) + U(13) + U(14) + U(15); R47 = rd_w1(4, 8); R8 = rd_w1(8, 12); R12 = rd_w1(12, 16)
    if NS1 == 2: k.run(rd_w1(0, 4) + csm(0, 4))
    else:
        a.wait(tok['u', 1]); a("s_barrier"); k.run(rd_w1(0, 2))
        UU = UB + (UC if NS1 == 4 else [])
        for p in range(1, 2*NS1 - 3):
            if p < 4: a.wait(tok['u', 2*p + 1])
            a("s_waitcnt lgkmcnt(0)\ns_barrier")
            rr = rd_w1(2*p, 2*p + 2) if p < 4 else []; cc = csm(2*p - 2, 2*p) if p < 3 else []
            for i in range(6): k.run(take(UU, 1) + rr[2*i:2*i+2] + cc[i:i+1])
        if NS1 == 3:
            a.wait(tok['u', 7]); a("s_barrier"); k.run(rd_w1(6, 8))
        assert not UU
        UB = []; R47 = []
        if NS1 == 4: UC = []
        a(cload)
        k.run(csm(4, 8))
    k.stamp('w1a')
    k.check(f"v_cmp_eq_u32 vcc, 8, {vc}", -1, cload, st1, BK1)
    k.stamp('s1')
    PQ = ag(192, 64); ACC = v(160, 32); D = v(192, 32); KVR = v(224, 32)
    def ld(dst, sbase, off, vo_=vl16):
        o = []
        if off >= 4096: o = its(f"s_add_u32 {ssoff}, {sbase}, {off & ~4095}"); sbase = ssoff; off &= 4095
        return o + [k.vm(f"buffer_load_dwordx4 {dst}, {vo_}, {ws}, {sbase} offen offset:{off} sc1")]
    def kvr(hh): return KVR[(hh & 3)*8:(hh & 3)*8+8]
    def head_loads(hh): return ld(kvr(hh)[0:4], skv, hh*2048, vkv) + ld(kvr(hh)[4:8], skv, hh*2048 + 1024, vkv) + ld(PQ[hh*4:hh*4+4], spq, hh*1024)
    for hh in range(4): k.run(head_loads(hh))
    vxc = v(7)
    a.wait(tok['u', 4*NS1 - 1])
    a(f"s_waitcnt lgkmcnt(0)\ns_barrier\nv_lshrrev_b32 {t2}, 5, {lane}\nv_lshlrev_b32 {t2}, 30, {t2}\nv_lshl_add_u32 {t2}, {lane}, 7, {t2}")
    a(f"buffer_load_dword {vxc}, {t2}, {ws}, {sflb} offen offset:16 sc1")
    def store(text, near=False):
        if not near: return a("\n".join(l + " sc1" for l in text.split('\n')))
        k.nlab += 1; n = k.nlab
        a(f"s_cmp_eq_u32 {sxcc}, 0\ns_cbranch_scc1 L_far{n}")
        t = a(text)
        a.hidden(f"s_branch L_st{n}\nL_far{n}:\n" + "\n".join(l + " sc1" for l in text.split('\n')) + f"\nL_st{n}:")
        return t
    ACCS = [ACC, KVR]
    def p2_units(side):
        def cvt_kv(hh): return [f"v_cvt_pk_bf16_f32 {KZ[hh*4+r]}, {kvr(hh)[2*r]}, {kvr(hh)[2*r+1]}" for r in range(4)]
        def om(n): return f"v_mfma_f32_32x32x16_bf16 {D[(n&1)*16:(n&1)*16+16]}, {KZ[(n&7)*4:(n&7)*4+4]}, {PQ[n*4:n*4+4]}, 0"
        def pm(n, t):
            d = ACCS[n >> 3][t*16:t*16+16]
            return f"v_mfma_f32_32x32x16_bf16 {d}, {WO[((n&7)*2+t)*4:((n&7)*2+t)*4+4]}, {OF[(n&1)*4:(n&1)*4+4]}, {d if n & 7 else 0}"
        k.run(cvt_kv(0)); a(om(0)); k.run(cvt_kv(1))
        for n in range(16):
            d = D[(n&1)*16:(n&1)*16+16]; o = OF[(n&1)*4:(n&1)*4+4]
            ex = list(side(n)); per = -(-len(ex) // 3)
            cv = cvt_kv(n+2) if n + 2 < 8 else []
            if n + 1 < 16: a(om(n+1))
            k.run(ex[:per])
            a(f"v_add_f32 {d[8]}, {se6}, {d[8]}\nv_rcp_f32 {d[8]}, {d[8]}")
            k.run(cv[:2])
            if n > 0: a(pm(n-1, 0))
            k.run(ex[per:2*per])
            for r in range(5): a(f"v_mul_f32 {d[r]}, {d[r]}, {d[8]}")
            if n > 0: a(pm(n-1, 1))
            k.run(ex[2*per:])
            for r in range(5, 8): a(f"v_mul_f32 {d[r]}, {d[r]}, {d[8]}")
            for r in range(4): a(f"v_cvt_pk_bf16_f32 {o[r]}, {d[2*r]}, {d[2*r+1]}")
            k.run(cv[2:])
            if n == 7: k.stamp('p2a')
        a(pm(15, 0)); a(pm(15, 1))
    def red_w(acc, base): return [f"ds_write_b128 {vrw[r-1]}, {acc[r*8+q*4:r*8+q*4+4]} offset:{base + q*1024}" for r in (1, 2, 3) for q in range(2)]
    def red_r(tm, base): return [f"ds_read_b128 {tm[(r-1)*8+q*4:(r-1)*8+q*4+4]}, {vrr} offset:{base + r*2048 + q*1024}" for r in (1, 2, 3) for q in range(2)]
    HBs = [v(32, 8), v(24, 8)]
    sfo = S.alloc()
    a(f"s_lshl_b32 {sfo}, {shead}, 5\ns_and_b32 {sfo}, {sfo}, 0x380\ns_lshl_b32 {st0}, {sw}, 2\ns_add_u32 {sfo}, {sfo}, {st0}\ns_add_u32 {sfo}, {sfo}, {sflb}")
    def flag(sync, key):
        k.nlab += 1; n = k.nlab
        a.wait(tok[key])
        a(f"s_cmp_eq_u32 {sxcc}, {0 if LFLAG else sxcc}\ns_cbranch_scc1 L_ff{n}")
        a(f"buffer_store_dword {vone}, {vlz}, {ws}, {sfo} offen offset:{sync*1024}")
        a.hidden(f"s_branch L_nf{n}\nL_ff{n}:\nbuffer_store_dword {vone}, {vlz}, {ws}, {sfo} offen offset:{sync*1024} sc1\nL_nf{n}:")
    def fload(sync): return f"buffer_load_dwordx4 {vfl}, {vfA}, {ws}, {sflb} offen offset:{sync*1024} sc1"
    def fcheck(sync): k.check(f"v_and_b32 {vfl[0]}, {vfl[0]}, {vfl[1]}\nv_and_b32 {vfl[2]}, {vfl[2]}, {vfl[3]}\nv_and_b32 {vfl[0]}, {vfl[0]}, {vfl[2]}\nv_cmp_ne_u32 vcc, 0, {vfl[0]}", 0xff, fload(sync), st1, BK2)
    pqB = [ld(PQ[(8+hh)*4:(8+hh)*4+4], spq, 32768 + hh*1024) for hh in range(8)]
    RA = R47 if NS1 == 2 else R8
    W2A = ag(192, 64); W2V = v(48, 112); vw2 = v(14, 2)
    def w2frag(n, t): i = n*2 + t; return W2V[i*4:i*4+4] if i < 28 else W2A[(i-28)*4:(i-28)*4+4]
    def w2list(ns):
        o = []
        for n in ns:
            if n % 2 == 0: o += its(f"s_add_u32 {so2}, {sw2}, {n*2048}")
            o += [k.vm(f"buffer_load_dwordx4 {w2frag(n, t)}, {vw2[t]}, {ws}, {so2} offen offset:{(n & 1)*2048} sc1") for t in range(2)]
        return o
    W2X = w2list(range(14, 14 + W2P // 2)); W2L = w2list([n for n in range(22) if not 14 <= n < 14 + W2P // 2])
    a(f"""s_and_b32 {st0}, {sw}, 1
s_lshl_b32 {st0}, {st0}, 8
s_lshr_b32 {st1}, {sw}, 1
s_lshl_b32 {st1}, {st1}, 10
s_add_u32 {st0}, {st0}, {st1}
v_xor_b32 {vw2[0]}, {st0}, {vl16}
v_xor_b32 {vw2[1]}, 1024, {vw2[0]}""")
    shs = srd['x'][3]; sst = su_ = S.alloc(); vsl = v(12)
    RWA = red_w(ACC, 0)
    def side(n):
        o = head_loads(n+4) if n < 4 else pqB[(n-4)*2] + pqB[(n-4)*2+1] if n < 8 else take(UC, 3) if UC else take(W2X, W2Q)
        if n < 8: o += RA[3*n:3*n+3]
        elif NS1 == 4: o += R12[3*(n-8):3*(n-8)+3]
        if n >= 10: o.append(RWA[n-10])
        if n == 13: o += its(f"""s_lshl_b32 {shs}, {srb}, 16
s_add_u32 {shs}, {shs}, {sw12}
s_add_u32 {shs}, {shs}, {WS_H}
s_lshl_b32 {sst}, {srb}, 14
s_add_u32 {sst}, {sst}, {sw12}
s_add_u32 {sst}, {sst}, {WS_ST}""")
        if n == 14: o.append(It(f"v_cmp_eq_u32 vcc, {sxcc}, {vxc}\ns_nop 1\ns_cmp_eq_u32 vcc_lo, -1\ns_cselect_b32 {sxcc}, 1, 0\ns_add_u32 {st1}, {shb}, 32768"))
        return o
    if NS1 == 2: UD = UC; UC = UB
    p2_units(side)
    k.stamp('p2b')
    TA = D[0:24]; TB = WO[0:24]; XU = WO[24:40]; stt = WO[40:44]
    ops = [x for r in range(8) for x in (f"v_lshlrev_b32 {XU[2*r]}, 16, {xres[r]}", f"v_and_b32 {XU[2*r+1]}, 0xffff0000, {xres[r]}")]
    ops += [f"v_pk_add_f32 {ACCS[H][e:e+2]}, {ACCS[H][e:e+2]}, {XU[8*H+e:8*H+e+2]}" for H in range(2) for e in range(0, 8, 2)] + [f"v_mov_b32 {stt[r]}, 0" for r in range(4)]
    k.run(ops[:8]); rw = red_w(KVR, 32768)
    for i in range(6): k.run([rw[i]] + ops[8+4*i:12+4*i] + (take(W2X, 1) if i < W2R else []))
    W2L = W2X + W2L
    a.wait(tok['u', 15 if NS1 > 2 else 11])
    a("s_waitcnt lgkmcnt(0)\ns_barrier")
    k.run(red_r(TA, 0) + red_r(TB, 32768))
    for H, tm_ in ((0, TA), (1, TB)):
        own = ACCS[H]; h4 = OF[H*4:H*4+4]
        for r in range(3):
            for e in range(0, 8, 2): a(f"v_pk_add_f32 {own[e:e+2]}, {own[e:e+2]}, {tm_[r*8+e:r*8+e+2]}")
        for r in range(4): a(f"v_cvt_pk_bf16_f32 {h4[r]}, {own[2*r]}, {own[2*r+1]}")
        store(f"buffer_store_dwordx4 {h4}, {vh}, {ws}, {(shb, st1)[H]} offen", LOCH & 1)
    for r in range(4):
        for H in range(2): a(f"v_dot2_f32_bf16 {stt[2*H]}, {OF[H*4+r]}, {sones}, {stt[2*H]}\nv_dot2_f32_bf16 {stt[2*H+1]}, {OF[H*4+r]}, {OF[H*4+r]}, {stt[2*H+1]}")
    for r in range(2): a(f"v_lshlrev_b32 {HBs[0][2*r]}, 16, {OF[r]}\nv_and_b32 {HBs[0][2*r+1]}, 0xffff0000, {OF[r]}")
    a(f"v_permlane32_swap_b32 {stt[0]}, {stt[2]}\nv_permlane32_swap_b32 {stt[1]}, {stt[3]}\nv_pk_add_f32 {stt[0:2]}, {stt[0:2]}, {stt[2:4]}")
    tok['h', 0] = store(f"buffer_store_dwordx2 {stt[0:2]}, {vst}, {ws}, {sstb} offen", LOCH & 1)
    k.stamp('pubb')
    if NS1 == 3: k.run(R12)
    if NS1 == 2: k.run(R8)
    b1r = v(160, 6); b2 = v(166, 4); vb = v(170, 2)
    vsw = v(13); vrn = v(11); vgb = v(20, 2); tm = v(212, 12); b1f = v(236, 12)
    for r in range(2, 8): a(f"v_lshlrev_b32 {HBs[r >> 2][2*(r&3)]}, 16, {OF[r]}\nv_and_b32 {HBs[r >> 2][2*(r&3)+1]}, 0xffff0000, {OF[r]}")
    a(f"v_lshrrev_b32 {vb[0]}, 4, {lane}\nv_lshlrev_b32 {vb[0]}, 3, {vb[0]}\nv_lshrrev_b32 {vb[1]}, 5, {lane}\nv_lshlrev_b32 {vb[1]}, 3, {vb[1]}\ns_lshl_b32 {st0}, {sc0}, 5\ns_lshl_b32 {st1}, {shead}, 5")
    for i in range(3): a(f"buffer_load_dwordx2 {b1r[2*i:2*i+2]}, {vb[0]}, {srd['b1']}, {st0} offen offset:{i*128}")
    for e in range(2): a(f"buffer_load_dwordx2 {b2[2*e:2*e+2]}, {vb[1]}, {srd['b2']}, {st1} offen offset:{e*16}")
    setup = its(f"""v_and_b32 {vsw}, 56, {lane}
v_and_b32 {vsl}, 7, {lane}
v_mul_u32_u24 {vsl}, 1088, {vsl}
v_add_u32 {vsl}, {vsl}, {vsw}
s_lshl_b32 {st0}, {sw}, 6
s_add_u32 {st1}, {st0}, {SL}
v_add_u32 {vsl}, {st1}, {vsl}
s_add_u32 {st0}, {st0}, {RB}
v_add_u32 {vsw}, {st0}, {vsw}
v_mov_b32 {vgb[0]}, {f32(GB)}
v_mov_b32 {vgb[1]}, {f32(GB)}
v_and_b32 {vrn}, 15, {lane}
v_lshlrev_b32 {vrn}, 3, {vrn}
v_add_u32 {vrn}, {RB}, {vrn}""")
    k.pack(csm(KC, 16 if NS1 > 2 else 12), [(UD if NS1 == 2 else []) + take(W2L, W2N[0]), setup], False, vgap=2 if NS1 == 2 else 4)
    flag(0, ('h', 0)); a("s_barrier")
    k.stamp('ack')
    for r in range(4): a(f"v_lshlrev_b32 {tm[2*r]}, 16, {b2[r]}\nv_and_b32 {tm[2*r+1]}, 0xffff0000, {b2[r]}")
    for H in range(2):
        for e in range(0, 8, 2): a(f"v_pk_add_f32 {HBs[H][e:e+2]}, {HBs[H][e:e+2]}, {tm[e:e+2]}")
    for i in range(3):
        for h in range(2): a(f"v_lshlrev_b32 {b1f[i*4+2*h]}, 16, {b1r[2*i+h]}\nv_and_b32 {b1f[i*4+2*h+1]}, 0xffff0000, {b1r[2*i+h]}")
    a(fload(0)); fcheck(0)
    k.stamp('s2')
    def dma_h(tt):
        return (its(f"s_add_u32 m0, {sw12}, {tt*16384}\ns_add_u32 {ssoff}, {shs}, {tt*16384}")
                + [k.vm(f"buffer_load_dwordx4 {vl16}, {ws}, {ssoff} offen offset:{i*1024} sc1 lds", ('ht', tt)) for i in range(4)])
    svs = [v(200, 8), v(152, 8)]
    def stat_reads(H): return [f"ds_read_b64 {svs[H][2*q:2*q+2]}, {vsl} offset:{H*8704 + q*256}" for q in range(4)]
    SD = its(f"s_mul_i32 {st0}, {sw}, 4352")
    for q in range(4): SD += its(f"s_add_u32 m0, {st0}, {SL + q*64}") + [k.vm(f"buffer_load_dwordx4 {vl16}, {ws}, {sst} offen offset:{q*1024} sc1 lds", ('st', 0))]
    k.run(dma_h(0) + SD + dma_h(1))
    HL = dma_h(2) + dma_h(3)
    k.run(take(HL, NHL))
    acc3 = v(160, 24); hf = v(184, 16); pk = v(200, 12); rn = v(248, 8)
    def stat_math():
        L = []
        for H in range(2):
            s = svs[H]
            L.append([f"v_add_f32 {s[d_+e]}, {s[d_+e]}, {s[o_+e]}" for d_, o_ in ((0, 2), (4, 6), (0, 4)) for e in range(2)]
                     + [x for d in (DPP_X1, DPP_X2, DPP_HM) for x in (f"v_add_f32 {s[0]}, {s[0]}, {s[0]} {d}", f"v_add_f32 {s[1]}, {s[1]}, {s[1]} {d}")]
                     + f"""v_mul_f32 {s[0]}, {f32(1/512)}, {s[0]}
v_mul_f32 {s[1]}, {f32(1/512)}, {s[1]}
v_fma_f32 {s[1]}, -{s[0]}, {s[0]}, {s[1]}
v_max_f32 {s[1]}, 0, {s[1]}
v_add_f32 {s[2]}, {seps}, {s[1]}
v_rsq_f32 {s[2]}, {s[2]}
v_mul_f32 {s[3]}, {s[2]}, {s[2]}
v_fma_f32 {s[3]}, {s[3]}, {s[1]}, {seps}
v_rsq_f32 {s[3]}, {s[3]}
v_mul_f32 {s[2]}, {s[2]}, {s[3]}
v_mul_f32 {s[3]}, -{s[2]}, {s[0]}
ds_write_b64 {vsw}, {s[2:4]} offset:{H*256}""".split('\n'))
        return [z for xy in zip(*L) for z in xy]
    def epi1(tt):
        ac = acc3[(tt&1)*12:(tt&1)*12+12]; p = rn[tt*2:tt*2+2]
        for e in range(0, 12, 2): a(f"v_pk_fma_f32 {tm[e:e+2]}, {p}, {cs[e:e+2]}, {b1f[e:e+2]} op_sel:[1,0,0]")
        for e in range(0, 12, 2): a(f"v_pk_fma_f32 {ac[e:e+2]}, {p}, {ac[e:e+2]}, {tm[e:e+2]} op_sel_hi:[0,1,1]")
        for e in range(0, 12, 2): a(f"v_pk_mul_f32 {tm[e:e+2]}, {ac[e:e+2]}, {ac[e:e+2]}")
        for e in range(0, 12, 2): a(f"v_pk_fma_f32 {tm[e:e+2]}, {tm[e:e+2]}, {sgab}, {vgb}")
        for e in range(0, 12, 2): a(f"v_pk_mul_f32 {tm[e:e+2]}, {tm[e:e+2]}, {ac[e:e+2]}")
    def epi2(tt, packed=False):
        add = [f"v_pk_add_f32 {tm[e:e+2]}, {tm[e:e+2]}, 1.0 op_sel_hi:[1,0]" for e in range(0, 12, 2)] if packed else [f"v_add_f32 {tm[e]}, 1.0, {tm[e]}" for e in range(12)]
        return [f"v_exp_f32 {tm[e]}, {tm[e]}" for e in range(12)] + add + [f"v_rcp_f32 {tm[e]}, {tm[e]}" for e in range(12)]
    def epi3(tt):
        ac = acc3[(tt&1)*12:(tt&1)*12+12]
        for e in range(0, 12, 2): a(f"v_pk_mul_f32 {ac[e:e+2]}, {ac[e:e+2]}, {tm[e:e+2]}")
        for i in range(3):
            for h in range(2): a(f"v_cvt_pk_bf16_f32 {pk[i*4+(tt&1)*2+h]}, {ac[i*4+2*h]}, {ac[i*4+2*h+1]}")
        if tt & 1:
            for i in range(3):
                for h in range(2): a(f"v_permlane16_swap_b32 {pk[i*4+h]}, {pk[i*4+2+h]}")
            if tt == 3: a(f"s_add_u32 {shh[0]}, {shh[0]}, {88*1024}\ns_add_u32 {shh[1]}, {shh[1]}, {88*1024}")
            tok['hh', tt >> 1] = store("\n".join(f"buffer_store_dwordx4 {pk[i*4:i*4+4]}, {vl16}, {ws}, {shh[min(i, 1)]} offen offset:{i*1024}" for i in range(3)), LOCH & (2 << (tt >> 1)))
    def rd(n): return f"ds_read_b128 {hf[(n&3)*4:(n&3)*4+4]}, {vl16} offset:{n*1024}"
    def rnrd(tt): return f"ds_read_b64 {rn[tt*2:tt*2+2]}, {vrn} offset:{tt*128}"
    a.wait(tok['ht', 0]); a("s_barrier")
    for n in range(3): a(rd(n))
    k.stamp('t0')
    def bar(*keys, more=None):
        def f():
            k.stamp('x%s%s' % keys[0])
            for key in keys: a.wait(tok[key])
            k.stamp('y%s%s' % keys[0])
            a("s_barrier")
            k.stamp('z%s%s' % keys[0])
            if more: more()
        return It(f, cost=2, kind='salu')
    for tt in range(4):
        mf = []; rq = []
        for ks in range(16):
            n = tt*16 + ks
            for i in range(3):
                d = acc3[(tt&1)*12+i*4:(tt&1)*12+i*4+4]
                mf.append(f"v_mfma_f32_16x16x32_bf16 {d}, {w1[(ks*3+i)*4:(ks*3+i)*4+4]}, {hf[(n&3)*4:(n&3)*4+4]}, {d if ks else 0}")
            if tt == 0 and ks == SK:
                x = bar(('st', 0)); x.after = 3*ks - 2; rq.append(x)
                rq += [It(y, after=3*ks - 1) for y in stat_reads(0) + stat_reads(1)]
            if ks == 13 and tt in (1, 2):
                x = bar(('ht', tt+1)); x.after = 3*ks - 2; rq.append(x)
            if n + 3 < 64 and not (tt == 0 and ks >= 13): rq.append(It(rd(n + 3) + "\ns_waitcnt lgkmcnt(2)", cost=3 if tt in (1, 3) else 2, after=3*ks, by=3*ks + 6))
        vq = take(W2L, W2N[tt+1])
        if tt == 0: vq = HL + vq
        fq = []; gq = []
        if tt == 0 and NS1 == 2:
            gq = [It(y, by=36 + 3*(i // 6)) for i, y in enumerate(R12)]; mf += csm(12, 16)
        if tt == 0:
            fq = [It(x, after=3*SK + 4) for x in stat_math()]
            fq += [It(lambda: (a.wait(tok['ht', 1]), a("s_waitcnt lgkmcnt(0)\ns_barrier")), cost=3, kind='salu', after=46 if NS1 > 2 else 56)] + [rnrd(0), rd(16), rd(17), rd(18), rnrd(1), rnrd(2), rnrd(3)]
        if tt == 2:
            for x in vq: x.after = G2
        if tt == 3: vq = take(vq, 4) + [k.vm(fload(2), after=F5)] + vq
        k.pack(mf, [rq, gq, vq, fq, epi2(tt-1) if tt in (1, 3) else []], False, vgap=VG3)
        k.stamp('m%d' % tt)
        if tt == 3: break
        if tt == 1:
            epi3(0); k.run(take(W2L, 1)); epi1(1); k.run(take(W2L, 1)); k.run(epi2(1, True)); epi3(1)

        else:
            epi1(tt)
        if tt == 2: flag(2, ('hh', 0))
        k.stamp('e%d' % tt)
    HH = ag(0, 176); acc4 = v(160, 64); tm4 = v(224, 24); ob = v(248, 4)
    vo = v(12); sob = shb; so4 = srd['x'][3]; send4 = srd['x'][1]
    def ld_hh(H):
        o = []
        for n in range(22):
            if n % 4 == 0: o += its(f"s_add_u32 {so4}, {shv}, {H*88*1024 + n*1024}")
            o.append(k.vm(f"buffer_load_dwordx4 {HH[(H*22+n)*4:(H*22+n)*4+4]}, {vl16}, {ws}, {so4} offen offset:{(n % 4)*1024} sc1"))
        return o
    def p4_mf(H):
        o = []
        for n in range(22):
            for t in range(2):
                d = acc4[H*32+t*16:H*32+t*16+16]
                o.append(f"v_mfma_f32_32x32x16_bf16 {d}, {w2frag(n, t)}, {HH[(H*22+n)*4:(H*22+n)*4+4]}, {d if n else 0}")
        return o
    def p4_epi(H, packed):
        own = acc4[H*32:H*32+8]; o = []
        if packed:
            o += [f"v_pk_add_f32 {own[e:e+2]}, {own[e:e+2]}, {HBs[H][e:e+2]}" for e in range(0, 8, 2)]
            o += [f"v_pk_add_f32 {own[e:e+2]}, {own[e:e+2]}, {tm4[r*8+e:r*8+e+2]}" for r in range(3) for e in range(0, 8, 2)]
        else:
            o += [f"v_add_f32 {own[e]}, {own[e]}, {HBs[H][e]}" for e in range(8)]
            o += [f"v_add_f32 {own[e]}, {own[e]}, {tm4[r*8+e]}" for r in range(3) for e in range(8)]
        o += [f"v_cvt_pk_bf16_f32 {ob[r]}, {own[2*r]}, {own[2*r+1]}" for r in range(4)]
        o += [f"v_permlane32_swap_b32 {ob[h]}, {ob[2+h]}" for h in range(2)]
        if H: o.append(f"s_add_u32 {sob}, {sob}, 32768")
        o.append(f"buffer_store_dwordx4 {ob}, {vo}, {srd['out']}, {sob} offen {OUTP}")
        return o
    LA = ld_hh(0); LB = ld_hh(1)
    class Rec:
        def __init__(s): s.l = []
        def __call__(s, t): s.l += [x for x in t.split('\n') if x.strip()]
    real = a; a = Rec(); epi3(2); epi1(3); tail = a.l + epi2(3, True); a = real
    fcheck(2)
    step = len(tail) // NLA
    for i, x in enumerate(tail):
        if i % step == 0 and i // step < NLA: k.run(take(LA, 1))
        a(x)
    epi3(3)
    k.stamp('p3e')
    a(f"""v_and_b32 {vo}, 31, {lane}
v_lshlrev_b32 {vo}, 10, {vo}
v_lshrrev_b32 {v(13)}, 5, {lane}
v_lshl_add_u32 {vo}, {v(13)}, 4, {vo}
s_lshl_b32 {sob}, {srb}, 16
s_lshl_b32 {st0}, {shead}, 5
s_add_u32 {sob}, {sob}, {st0}""")
    if FAKEOUT: a(f"v_lshrrev_b32 {t0}, 3, {lane}\nv_lshlrev_b32 {vo}, 10, {t0}\nv_and_b32 {t0}, 7, {lane}\nv_lshl_add_u32 {vo}, {t0}, 4, {vo}\ns_lshl_b32 {sob}, {srb}, 16\ns_lshl_b32 {st0}, {sj}, 7\ns_add_u32 {sob}, {sob}, {st0}\ns_lshl_b32 {st0}, {sw}, 13\ns_add_u32 {sob}, {sob}, {st0}")
    nleft = len([x for x in W2L if x.kind == 'vmem']); assert nleft <= 8, nleft; print('W2 left', nleft, file=sys.stderr)
    mfa = p4_mf(0)
    assert F4c <= 2*NLA
    k.run(mfa[:F4])
    k.pack(mfa[F4:F4b], [LA + W2L], True)
    flag(3, ('hh', 1))
    k.run(mfa[F4b:F4c])
    a(fload(3)); fcheck(3)
    k.stamp('s3b')
    k.pack(mfa[F4c:], [take(LB, (44 - F4c) // 2)], True, reserve=lambda i: 1, vgap=2)
    k.stamp('p4a')
    for x in red_w(acc4[0:32], 0):
        a(x); k.run(take(LB, 1))
    a("s_waitcnt lgkmcnt(0)\ns_barrier")
    mfb = p4_mf(1); rwb = red_w(acc4[32:64], 32768)
    mfb = mfb[:44-2*TL] + mfb[45-2*TL::2] + mfb[44-2*TL::2]
    k.pack(mfb[:44-TL+2], [LB, red_r(tm4, 0), [It(x, after=8) for x in p4_epi(0, False)]], True, reserve=lambda i: 1, vgap=2)
    for i, m in enumerate(mfb[44-TL+2:]):
        a(m); k.run(rwb[2+i:3+i] if i < 4 else [])
    k.stamp('p4b')
    k.run(rwb[2+TL-2:] + rwb[:2])
    a("s_waitcnt lgkmcnt(0)\ns_barrier")
    k.run(red_r(tm4, 32768))
    k.run(p4_epi(1, True))
    if STAMPS:
        a("s_waitcnt vmcnt(0)"); STAMPS.append('end'); k.stamp('end')
        t = f"s_memrealtime {rt[2:4]}\ns_waitcnt lgkmcnt(0)\nv_mov_b32 {t0}, {sw}\nv_lshlrev_b32 {t0}, 28, {t0}\ns_lshl_b32 {st0}, s2, 6\ns_add_u32 {st0}, {st0}, {WS_DBG}\n"
        for i in range(1, len(k.stamped)):
            t += f"s_sub_u32 {st1}, {k.str_[2*i]}, {k.str_[0]}\nv_mov_b32 {t1}, {st1}\nbuffer_store_dword {t1}, {t0}, {ws}, {st0} offen offset:{4*i}\n"
        t += f"v_mov_b32 {t1}, {rt[0]}\nbuffer_store_dword {t1}, {t0}, {ws}, {st0} offen offset:56\n"
        t += f"v_mov_b32 {t1}, {rt[2]}\nbuffer_store_dword {t1}, {t0}, {ws}, {st0} offen offset:60\n"
        a.hidden(t)
        print('stamps:', k.stamped[1:], file=sys.stderr)
    a("L_end:\ns_endpgm")
    return a.finish(), S.peak

def place_hops(body):
    import subprocess, re
    lines = body.split('\n'); m = lines.index('L_main:')
    tail = [l for l in lines[m+1:] if l.strip()]
    txt = '.amdgcn_target "amdgcn-amd-amdhsa--gfx950"\n.text\nL_hop3:\nL_hop4:\nL_hop5:\n' + '\n'.join(tail) + '\n'
    open('_h.s', 'w').write(txt)
    subprocess.run(['clang', '-x', 'assembler', '-target', 'amdgcn-amd-amdhsa', '-mcpu=gfx950', '-c', '_h.s', '-o', '_h.o'], check=True)
    dis = subprocess.run(['llvm-objdump', '-d', '--mcpu=gfx950', '_h.o'], capture_output=True, text=True).stdout
    addr = [int(x, 16) for x in re.findall(r'// ([0-9A-F]{12}):', dis)]
    ins = [i for i, l in enumerate(tail) if not l.endswith(':')]
    assert len(addr) == len(ins)
    out = []; nh = 0; pos = dict(zip(ins, addr)); hops = []
    for i, l in enumerate(tail):
        if i in pos and pos[i] + 4*nh >= 4096*nh:
            hops.append(len(out)); out.append(None); nh += 1
        out.append(l)
    assert 5 <= nh <= 6, nh
    for h, at in enumerate(hops): out[at] = f"L_hop{h}:\n    s_cbranch_execz L_back{h // 3}"
    if nh == 5: out.insert(hops[4], "L_hop5:")
    return '\n'.join(lines[:m+1] + out) + '\n'

def assemble():
    hdr = open('cdna_kernels/' + NAME + '.s.ref').read().split('; Override')[0]
    body, sp = kernel()
    print('sgpr', sp, 'lines', body.count('\n'), 'nops', body.count('s_nop'), file=sys.stderr)
    n = NAME + '_kernel'
    if HOP: body = place_hops(body)
    return (hdr + "; @launch grid=(256,1,1) block=(256,1,1) lds=163840\n" + '.amdgcn_target "amdgcn-amd-amdhsa--gfx950"\n.text\n'
            + f".globl {n}\n.p2align 8\n.type {n},@function\n{n}:\n{body}" + '.section .rodata,"a"\n.p2align 6\n' + descriptor(n, 512, 256))

if __name__ == '__main__':
    for x in sys.argv[3:]: exec(x)
    if len(sys.argv) > 2 and sys.argv[2] != '-': STAMPS = sys.argv[2].split(',')
    open(sys.argv[1], 'w').write(assemble())
```

```python
from asmlib import *
import struct, sys
def f32(x): return '0x%08x' % struct.unpack('<I', struct.pack('<f', x))[0]
NAME = 'sequential_preLN__linear_attn_block__mixer_channel_mlp__prompt'
WS_PQ = 0
WS_W2 = WS_PQ + (2 << 20)
WS_KV = WS_W2 + 8 * 88 * 2048
WS_CN = WS_KV + 65536
WS_H  = WS_CN + 32768
WS_ST = WS_H + (2 << 20)
WS_HH = WS_ST + 32 * 16384
WS_FL = WS_HH + 32 * 2 * 88 * 1024
WS_END = WS_FL + 32 * 4096
WS_DBG = WS_END
OOB = 0x7ff00000
LOG2E = 1.4426950408889634; LN2 = 0.6931471805599453
GA = -2 * 0.7978845608028654 * 0.044715 * LOG2E
GB = -2 * 0.7978845608028654 * LOG2E
KA = dict(x=0, wqkv=8, wo=16, w1=32, b1=40, w2=48, b2=56, out=64, dbg=72, ws=80)
SZ = dict(x=2048*512*2, wqkv=512*1536*2, wo=512*512*2, w1=512*1376*2, b1=1376*2, w2=1376*512*2, b2=512*2,
          out=2048*512*2, dbg=256, ws=WS_END + 16384)
DPP_X1 = 'quad_perm:[1,0,3,2] row_mask:0xf bank_mask:0xf'
DPP_X2 = 'quad_perm:[2,3,0,1] row_mask:0xf bank_mask:0xf'
DPP_HM = 'row_half_mirror row_mask:0xf bank_mask:0xf'
SPIN = 0x40000
STAMPS = None
D1 = 2
D2 = 1
AH = 10
VG1 = 4
FA = 6
F3 = 40
F4 = 20; F4b = 26; F4c = 32; TL = 5
EARLY = 1
UBA = 1
PACE = 1
MAP = 1
CP = 0
R3 = 1; QX = 0; RW = 1
BK1 = 0; BK2 = 0
TLB = 0
W2Q = 1; W2R = 4
LOCH = 0
EARLYX = 0
HOP = 1
EXCL = 1
LAT = 1
XT = 0
NB = (3, 6, 6, 0, 0, 4); NQ = 2; AT0 = 3; PRE1 = 2
RTS = 0
DX = 1; RT = 6; QL = 0; QD = 10
NHL = 8; SK = 5; FAKEOUT = 0
HA = 1; FH = 12
W2P = 8
G2 = 26; F5 = 26; NLA = 16; OUTP = ''
FB1 = 48
NOW2 = 0; NOW1 = 0
red_w_last = None
NU_ARR = 8
PRE = 2
NS1 = 3
W2N = (2, 7, 11, 5, 9)
W2E = 2
VG3 = 4
HW = 4
T1 = ()
T2 = 0
LFLAG = 1

def v(b, n=1): return R('v', b, n)
def ag(b, n=1): return R('a', b, n)

class It:
    def __init__(self, x, cost=None, kind=None, after=0, by=None):
        self.x = x; self.after = after; self.by = by
        self.dw = 2 if isinstance(x, str) and 'b128' in x.split()[0] else 1
        if kind is None:
            mn = x.split()[0]
            kind = ('trans' if mn.startswith(TRANS) else 'valu' if mn.startswith('v_') else 'ds' if mn.startswith('ds_')
                    else 'vmem' if mn.startswith(('buffer', 'global')) else 'salu')
        self.kind = kind
        self.cost = cost if cost is not None else {'trans': 2, 'valu': 1, 'ds': 1, 'vmem': 3, 'salu': 1}.get(kind, 1)
def its(text, after=0): return [It(l.strip(), after=after) for l in text.split('\n') if l.strip()]

class K:
    def __init__(self):
        self.a = Asm(); self.S = Regs('s', 4, 102); self.nlab = 0
        self.stamped = []; self.tok = {}
    def emit(self, x):
        if isinstance(x, It): x = x.x
        if callable(x): return x()
        return self.a(x)
    def run(self, items):
        for x in items: self.emit(x)
    def vm(self, text, key=None, after=0):
        def f():
            t = self.a(text)
            if key is not None: self.tok[key] = t
        return It(f, kind='vmem', after=after)
    def pack(self, mf, queues, big, reserve=None, vgap=0, excl=False):
        qs = [[x if isinstance(x, It) else It(x) for x in q] for q in queues]
        cap, vcap, dcap = (7, 6, 4) if big else (3, 2, 2)
        lastv = -99
        for i, m in enumerate(mf):
            for q in qs:
                late = [n for n, x in enumerate(q) if x.by is not None and x.by <= i]
                if late:
                    assert all(x.after < i for x in q[:late[-1] + 1])
                    self.run(q[:late[-1] + 1]); del q[:late[-1] + 1]
            self.emit(m)
            s = cap - (reserve(i) if reserve else 0); vs = vcap; d = dcap
            if excl:
                hit = [q for q in qs if q and q[0].kind == 'vmem' and q[0].after <= i and i - lastv >= vgap]
                nds = sum(x.kind == 'ds' for q in qs for x in q)
                if hit and nds < len(mf) - i - 2:
                    self.emit(hit[0].pop(0)); lastv = i; continue
            for q in qs:
                while q:
                    x = q[0]
                    if x.after > i or x.cost > s: break
                    if x.kind in ('valu', 'trans') and x.cost > vs: break
                    if x.kind == 'ds' and (x.dw > d or (excl and d < dcap)): break
                    if x.kind == 'vmem' and excl: break
                    if x.kind == 'vmem' and i - lastv < vgap: break
                    q.pop(0); self.emit(x); s -= x.cost
                    if x.kind in ('valu', 'trans'): vs -= x.cost
                    if x.kind == 'trans' and not big: s = 0
                    if x.kind == 'ds': d -= x.dw
                    if x.kind == 'vmem': lastv = i
        left = sum(len(q) for q in qs)
        for q in qs: self.run(q)
        return left
    def stamp(self, name):
        if STAMPS and name in STAMPS:
            n = len(self.stamped); self.stamped.append(name)
            self.a.hidden(f"{'s_memrealtime' if RTS else 's_memtime'} {self.str_[2*n:2*n+2]}")
    def check(self, cmp_, mask, reload, st1, back=0):
        a = self.a; self.nlab += 1; n = self.nlab
        a(cmp_)
        a(f"s_cmp_eq_u32 vcc_lo, {mask}\ns_cbranch_scc1 L_ok{n}")
        a.hidden(f"""s_mov_b32 {st1}, 0
L_spin{n}:
{'s_sleep %d' % back if back else ''}
{reload}
s_add_u32 {st1}, {st1}, 1
s_waitcnt vmcnt(0)
{cmp_}
s_cmp_ge_u32 {st1}, {SPIN}
s_cbranch_scc1 L_ok{n}
s_nop 1
s_cmp_eq_u32 vcc_lo, {mask}
s_cbranch_scc0 L_spin{n}
L_ok{n}:""")

def kernel():
    k = K(); a = k.a; S = k.S; tok = k.tok
    a("s_cmp_ge_u32 s2, 256\ns_cbranch_scc1 L_end")
    if STAMPS:
        k.str_ = S.alloc(2*len(STAMPS) + 4, 4); rt = S.alloc(4, 4)
        a.hidden(f"s_memrealtime {rt[0:2]}")
        STAMPS.insert(0, 'start')
    k.stamp('start')
    srd = {}
    for n in ['x', 'wqkv', 'ws', 'dbg', 'wo', 'w1', 'w2', 'b1', 'b2', 'out']: srd[n] = S.alloc(4)
    for n in ['x', 'wqkv']: a(f"s_load_dwordx2 {srd[n][0:2]}, s[0:1], {KA[n]}")
    for n in ['x', 'wqkv']: a(f"s_mov_b32 {srd[n][2]}, {SZ[n]}\ns_mov_b32 {srd[n][3]}, 0x00020000")
    ws = srd['ws']
    st0, st1, ssoff, sw, sj, srb, shead, sj1, srb1, shead1 = [S.alloc() for _ in range(10)]
    sxb, swb, sw10, sw11, sw12, srot, sc_x, sc_w, sw6k = [S.alloc() for _ in range(9)]
    lane, vl16, t0, t1, t2, t3 = v(1), v(2), v(4), v(5), v(6), v(7)
    vxd = v(8, 2); vwd = v(10, 2)
    a(f"""v_and_b32 {lane}, 63, v0
v_lshrrev_b32 {t0}, 6, v0
v_readfirstlane_b32 {sw}, {t0}
s_bfe_u32 {sj1}, s2, {0x10002 if MAP else 0x10000}
s_lshl_b32 {sj1}, {sj1}, 2
s_bfe_u32 {st0}, s2, 0x20003
s_add_u32 {sj1}, {sj1}, {st0}
s_bfe_u32 {srb1}, s2, {0x20000 if MAP else 0x20001}
s_lshl_b32 {srb1}, {srb1}, 3
s_lshr_b32 {st0}, s2, 5
s_add_u32 {srb1}, {srb1}, {st0}
v_lshrrev_b32 {t0}, 3, {lane}
v_and_b32 {t1}, 7, {lane}
v_xor_b32 {t2}, {t0}, {t1}
v_lshlrev_b32 {t2}, 4, {t2}
v_lshl_add_u32 {vxd[0]}, {t0}, 10, {t2}
v_add_u32 {vxd[1]}, 7168, {vxd[0]}
v_bfe_u32 {t2}, {lane}, 4, 1
s_and_b32 {st0}, {sw}, 1
s_lshl_b32 {st0}, {st0}, 1
v_or_b32 {t2}, {st0}, {t2}
v_lshrrev_b32 {t3}, 1, {t1}
v_xor_b32 {t2}, {t2}, {t3}
v_lshlrev_b32 {t2}, 5, {t2}
v_and_b32 {t3}, 1, {lane}
v_lshl_add_u32 {t2}, {t3}, 4, {t2}
v_mul_u32_u24 {vwd[0]}, 3072, {t0}
v_add_u32 {vwd[0]}, {vwd[0]}, {t2}
v_add_u32 {vwd[1]}, 98304, {vwd[0]}
s_lshl_b32 {sxb}, {srb1}, 16
s_lshl_b32 {st0}, {sw}, 14
s_add_u32 {sxb}, {sxb}, {st0}
s_mul_i32 {swb}, {sw}, {8*3072}
s_lshl_b32 {st0}, {sj1}, 7
s_add_u32 {swb}, {swb}, {st0}
s_lshl_b32 {sw10}, {sw}, 10
s_lshl_b32 {sw11}, {sw}, 11
s_lshl_b32 {sw12}, {sw}, 12
s_mul_i32 {sw6k}, {sw}, 6144
s_add_u32 {srot}, {srb1}, {sj1}
s_and_b32 {srot}, {srot}, {D1 - 1}
s_mul_i32 {srot}, {srot}, {8 // D1}""")
    if DX == 1: a(f"s_bfe_u32 {st0}, s2, {0x20000 if MAP else 0x20001}\ns_add_u32 {srot}, {srot}, {st0}\ns_bfe_u32 {st0}, s2, {0x10002 if MAP else 0x10000}\ns_lshl_b32 {st0}, {st0}, 1\ns_add_u32 {srot}, {srot}, {st0}")
    if DX == 2: a(f"s_bfe_u32 {st0}, s2, 0x10001\ns_add_u32 {srot}, {srot}, {st0}")
    if DX == 3: a(f"s_bfe_u32 {st0}, s2, 0x20001\ns_lshl_b32 {st0}, {st0}, 1\ns_add_u32 {srot}, {srot}, {st0}\ns_and_b32 {st0}, s2, 1\ns_add_u32 {srot}, {srot}, {st0}")
    if R3: a(f"s_cmp_eq_u32 {sj1}, 3\ns_cselect_b32 {srot}, {srb1}, {srot}")
    sqd = S.alloc(); ssq = S.alloc()
    a(f"s_xor_b32 {sqd}, {sj1}, {QX}\ns_sub_u32 {sqd}, {sqd}, {sj1}\ns_lshl_b32 {sqd}, {sqd}, 7")
    WB = 65536; PB = WB + 3 * 24576; XR = PB + 8192
    def X(c):
        return (its(f"s_add_u32 {sc_x}, {srot}, {c}\ns_and_b32 {sc_x}, {sc_x}, 7\ns_lshl_b32 {sc_x}, {sc_x}, 7\ns_add_u32 {sc_x}, {sc_x}, {sxb}\ns_add_u32 m0, {sw11}, {c*8192}")
                + [k.vm(f"buffer_load_dwordx4 {vxd[o]}, {srd['x']}, {sc_x} offen offset:{o*1024} lds", ('x', c)) for o in range(2)])
    def wrot(c, add): return f"s_add_u32 {sc_w}, {srot}, {c}\ns_and_b32 {sc_w}, {sc_w}, 7\ns_mul_i32 {sc_w}, {sc_w}, {64*3072}\ns_add_u32 {sc_w}, {sc_w}, {swb}\n" + (f"s_add_u32 {sc_w}, {sc_w}, {add}\n" if add else "")
    def W(c):
        o = its(wrot(c, 0) + f"s_add_u32 {ssq}, {sc_w}, {sqd}")
        for h in range(2):
            o += its(f"s_add_u32 m0, {sw6k}, {WB + (c % 3)*24576 + h*3072}")
            o += [k.vm(f"buffer_load_dwordx4 {vwd[h]}, {srd['wqkv']}, {sc_w if p else ssq} offen offset:{p*1024} lds", ('w', c)) for p in range(3)]
        return o
    def w_lds(ks, p): return ((ks // 2) % 3) * 24576 + (ks & 1) * 3072 + p * 1024
    def take(lst, nv):
        o = []
        while lst and nv:
            x = lst.pop(0); o.append(x)
            if x.kind == 'vmem': nv -= 1
        return o
    def hops(r):
        a.hidden(f"s_mov_b64 exec, 0\n" + "".join(f"s_cmp_eq_u32 {sw}, {w}\ns_cbranch_scc1 L_hop{3*r + w}\n" for w in range(3)) + f"L_back{r}:\ns_mov_b64 exec, -1")
    a("s_waitcnt lgkmcnt(0)"); k.stamp('karg')
    k.run(X(0) + W(0))
    if XT:
        a(f"v_lshrrev_b32 {t0}, 4, {lane}\nv_lshlrev_b32 {t0}, 24, {t0}\nv_lshl_add_u32 {t0}, {lane}, 7, {t0}\ns_lshl_b32 {st0}, s2, 13\ns_add_u32 {st0}, {st0}, {sw11}")
        a(f"buffer_load_dword v0, {t0}, {srd['x']}, {st0} offen").wr = set()
    if XT > 1:
        a(f"v_max_u32 {t0}, 11, {lane}\nv_subrev_u32 {t0}, 11, {t0}\nv_lshlrev_b32 {t0}, 24, {t0}\nv_lshl_add_u32 {t0}, {lane}, 7, {t0}\ns_lshl_b32 {st0}, s2, 2\ns_add_u32 {st0}, {st0}, {sw}\ns_mul_i32 {st0}, {st0}, 1536")
        a(f"buffer_load_dword v0, {t0}, {srd['wqkv']}, {st0} offen").wr = set()
    for n in srd:
        if n not in ('x', 'wqkv'): a(f"s_load_dwordx2 {srd[n][0:2]}, s[0:1], {KA[n]}")
    W1_ = W(1)
    k.run(X(1) + (take(W1_, PRE1)))
    for n in srd:
        if n not in ('x', 'wqkv'): a(f"s_mov_b32 {srd[n][2]}, {SZ[n]}\ns_mov_b32 {srd[n][3]}, 0x00020000")
    skvb, sflb, spsrc, sxr, sdst, sones, seps = [S.alloc() for _ in range(7)]
    vz = v(44, 4); ones = v(40, 4); sxcc = S.alloc()
    a(f"s_getreg_b32 {sxcc}, hwreg(HW_REG_XCC_ID)\ns_and_b32 {sxcc}, {sxcc}, 15\ns_add_u32 {sxcc}, {sxcc}, 1")
    a(f"""s_bfe_u32 {sj}, s2, 0x30003
s_and_b32 {srb}, s2, 7
s_lshl_b32 {srb}, {srb}, 2
s_lshr_b32 {st0}, s2, 6
s_add_u32 {srb}, {srb}, {st0}
s_lshl_b32 {shead}, {sj}, 2
s_add_u32 {shead}, {shead}, {sw}
s_lshl_b32 {shead1}, {sj1}, 2
s_add_u32 {shead1}, {shead1}, {sw}
s_lshl_b32 {skvb}, {shead1}, 11
s_add_u32 {skvb}, {skvb}, {WS_KV}
s_lshl_b32 {sflb}, {srb}, 12
s_add_u32 {sflb}, {sflb}, {WS_FL}
v_lshlrev_b32 {vl16}, 4, {lane}""")
    for r in range(4): a(f"v_mov_b32 {vz[r]}, 0")
    a("s_waitcnt lgkmcnt(0)")
    szr = S.alloc()
    a(f"s_lshr_b32 {szr}, s2, 3\ns_and_b32 {st0}, s2, 7\ns_cselect_b32 {szr}, 8, {szr}" if EARLYX else f"s_mov_b32 {szr}, s2")
    a(f"s_cmp_ge_u32 {szr}, 8\ns_cbranch_scc1 L_nozero")
    a.hidden(f"""s_lshl_b32 {st0}, {szr}, 2
s_add_u32 {st0}, {st0}, {sw}
s_lshl_b32 {st0}, {st0}, 11
s_add_u32 {st0}, {st0}, {WS_KV}
buffer_store_dwordx4 {vz}, {vl16}, {ws}, {st0} offen sc1
buffer_store_dwordx4 {vz}, {vl16}, {ws}, {st0} offen offset:1024 sc1
s_sub_u32 {st0}, {st0}, {WS_KV}
s_lshr_b32 {st0}, {st0}, 1
s_add_u32 {st0}, {st0}, {WS_CN}
buffer_store_dwordx4 {vz}, {vl16}, {ws}, {st0} offen sc1
L_nozero:""")
    a(f"s_cmp_lg_u32 {sw}, 1\ns_cbranch_scc1 L_nofl")
    a.hidden(f"""s_lshl_b32 {st0}, {sj}, 7
s_add_u32 {st0}, {st0}, {sflb}
v_lshrrev_b32 {t0}, 2, {lane}
v_lshlrev_b32 {t0}, 26, {t0}
v_lshl_add_u32 {t0}, {lane}, 10, {t0}
v_mov_b32 {t1}, {sxcc}
buffer_store_dwordx4 {vz}, {t0}, {ws}, {st0} offen sc1
buffer_store_dword {t1}, {t0}, {ws}, {st0} offen offset:16 sc1
L_nofl:""")
    k.stamp('issued')
    if HOP:
        hops(0)
    vxa = v(12, 2); vsa = v(14, 2); vwa = v(16, 2); vxr = v(18, 2); vroot = v(20); vrootA = v(21); vp = v(178, 2); vw1d = v(3)
    pa = v(32, 2); va = v(34, 6)
    SB = PB + 16384
    KS = SB + 2048
    a(f"""v_lshrrev_b32 {t0}, 4, {lane}
v_and_b32 {t1}, 7, {lane}
v_xor_b32 {t2}, {t0}, {t1}
v_lshlrev_b32 {t2}, 4, {t2}
v_lshl_add_u32 {t2}, {t1}, 7, {t2}
v_bfe_u32 {t3}, {lane}, 3, 1
v_lshl_add_u32 {vxa[0]}, {t3}, 10, {t2}
v_xor_b32 {vxa[1]}, 64, {vxa[0]}
v_add_u32 {vsa[0]}, {sw11}, {vxa[0]}
v_add_u32 {vsa[1]}, {sw11}, {vxa[1]}
v_and_b32 {t2}, 1, {t0}
v_lshl_or_b32 {t2}, {t2}, 1, {t3}
v_xor_b32 {t2}, {sw}, {t2}
v_lshlrev_b32 {t2}, 5, {t2}
v_and_b32 {t3}, 3, {lane}
v_lshl_add_u32 {t2}, {t3}, 3, {t2}
v_bfe_u32 {t3}, {lane}, 2, 2
v_lshl_add_u32 {t2}, {t3}, 7, {t2}
v_mul_u32_u24 {t3}, 6144, {t0}
v_add_u32 {t2}, {t2}, {t3}
v_add_u32 {vwa[0]}, {WB}, {t2}
s_mov_b32 {sones}, 0x3f803f80
v_mov_b32 {ones[0]}, {sones}
v_mov_b32 {ones[1]}, {sones}
v_mov_b32 {ones[2]}, {sones}
v_mov_b32 {ones[3]}, {sones}""")
    later = its(f"""s_lshl_b32 {st0}, {sw}, 1
v_xor_b32 {t2}, {st0}, {t1}
v_lshlrev_b32 {t2}, 4, {t2}
v_lshl_add_u32 {t2}, {t1}, 7, {t2}
v_bfe_u32 {t3}, {lane}, 3, 2
v_lshl_add_u32 {t2}, {t3}, 10, {t2}
v_lshrrev_b32 {t3}, 5, {lane}
v_lshl_add_u32 {t2}, {t3}, 3, {t2}
v_add_u32 {vxr[0]}, {XR}, {t2}
v_xor_b32 {vxr[1]}, 16, {vxr[0]}
s_mov_b32 {seps}, {f32(1e-5)}
v_lshlrev_b32 {vrootA}, 5, {lane}
s_mul_i32 {st0}, {sw}, 1536
s_add_u32 {st0}, {st0}, {KS}
v_add_u32 {va[0]}, {st0}, {vl16}
v_lshl_add_u32 {va[1]}, {t0}, 4, {st0}
v_lshlrev_b32 {va[3]}, 2, {lane}
v_add_u32 {va[2]}, {st0}, {va[3]}
v_and_b32 {t1}, 15, {lane}
v_lshl_add_u32 {va[4]}, {t1}, 2, {st0}
v_bfe_u32 {t2}, {lane}, 2, 1
v_lshlrev_b32 {t2}, 10, {t2}
v_bfe_u32 {t1}, {lane}, 3, 1
v_lshl_add_u32 {t2}, {t1}, 9, {t2}
v_and_b32 {t1}, 3, {lane}
v_lshl_add_u32 {t2}, {t1}, 2, {t2}
v_add_u32 {t2}, 256, {t2}
v_lshrrev_b32 {t1}, 4, {lane}
v_lshl_add_u32 {va[5]}, {t1}, 28, {t2}""")
    su = S.alloc()
    if EARLYX:
        later += [It(f"""s_lshr_b32 {st1}, s2, 3
s_and_b32 {st0}, s2, 7
s_lshl_b32 {su}, {st1}, 2
s_add_u32 {su}, {su}, {st0}
s_cmp_lt_u32 {st0}, 4
s_cselect_b32 {su}, {su}, 255
s_add_u32 {ssoff}, {st1}, 128
s_cmp_eq_u32 {st0}, 7
s_cselect_b32 {su}, {ssoff}, {su}
s_add_u32 {ssoff}, {st1}, 160
s_cmp_eq_u32 {st0}, 6
s_cselect_b32 {su}, {ssoff}, {su}""", cost=3)]
    else: later += its(f"s_mov_b32 {su}, s2")
    later += its(f"""s_lshr_b32 {st1}, {su}, 3
s_and_b32 {st0}, {su}, 7
s_lshl_b32 {spsrc}, {st1}, 16
s_lshl_b32 {sdst}, {st0}, 7
s_add_u32 {spsrc}, {spsrc}, {sdst}
s_lshl_b32 {sdst}, {sw}, 14
s_add_u32 {spsrc}, {spsrc}, {sdst}
s_mul_i32 {sdst}, {st0}, {88*2048}
s_lshl_b32 {st1}, {st1}, 11
s_add_u32 {sdst}, {sdst}, {st1}
s_mul_i32 {st1}, {sw}, {22*2048}
s_add_u32 {sdst}, {sdst}, {st1}
s_add_u32 {sdst}, {sdst}, {WS_W2}
""") + [It(f"s_cmp_lt_u32 {su}, 176\ns_cselect_b32 {sdst}, {sdst}, {OOB}\ns_cselect_b32 {spsrc}, {spsrc}, {OOB}", cost=2)] + its(f"""
v_lshlrev_b32 {t0}, 10, {t3}
v_bfe_u32 {t1}, {lane}, 2, 2
v_lshl_add_u32 {t0}, {t1}, 7, {t0}
v_bfe_u32 {t1}, {lane}, 3, 1
v_lshlrev_b32 {t1}, 1, {t1}
v_bfe_u32 {t2}, {lane}, 4, 1
v_or_b32 {t1}, {t1}, {t2}
v_lshl_add_u32 {t0}, {t1}, 5, {t0}
v_and_b32 {t1}, 3, {lane}
v_lshl_add_u32 {t0}, {t1}, 3, {t0}
s_add_u32 {st1}, {sw11}, {PB}
v_add_u32 {pa[0]}, {st1}, {t0}
v_xor_b32 {pa[1]}, 64, {pa[0]}
v_lshrrev_b32 {t0}, 3, {lane}
v_lshlrev_b32 {t2}, 1, {t2}
v_bfe_u32 {t1}, {lane}, 1, 2
v_xor_b32 {t1}, {t1}, {t2}
v_lshlrev_b32 {t1}, 5, {t1}
v_and_b32 {t2}, 1, {lane}
v_lshl_add_u32 {t1}, {t2}, 4, {t1}
v_lshl_add_u32 {vp[0]}, {t0}, 10, {t1}
v_add_u32 {vp[1]}, 7168, {vp[0]}
s_lshr_b32 {st0}, {sw}, 1
s_lshl_b32 {st0}, {st0}, 5
v_xor_b32 {t1}, {st0}, {t1}
v_mul_u32_u24 {t0}, 2752, {t0}
v_add_u32 {vw1d}, {t0}, {t1}
s_lshl_b32 {sxr}, {srb}, 16
s_lshl_b32 {st0}, {sw}, 14
s_add_u32 {sxr}, {sxr}, {st0}
s_lshl_b32 {st0}, {sj}, 7
s_add_u32 {sxr}, {sxr}, {st0}""")
    def pd():
        a(f"s_cmp_ge_u32 {su}, 176\ns_cbranch_scc1 L_nopd")
        a.hidden(f"s_add_u32 m0, {sw11}, {PB}\ns_nop 0\n" + "".join(f"buffer_load_dwordx4 {vp[i]}, {srd['w2']}, {spsrc} offen offset:{i*1024} lds\n" for i in range(2)) + "L_nopd:")
    PD = [It(pd, kind='vmem')]
    XD = its(f"s_add_u32 m0, {sw11}, {XR}") + [k.vm(f"buffer_load_dwordx4 {vxd[i]}, {srd['x']}, {sxr} offen offset:{i*1024} lds", 'xr') for i in range(2)]
    def slot(ks): return ag((((ks // 2) - 2) % 6) * 40, 40)
    def xfrag(ks, tt): b = ((ks & 1)*4 + tt)*4; return slot(ks)[b:b+4]
    wf = v(48, 32)
    def wfrag(ks, p):
        if p == 0: return slot(ks)[32 + (ks & 1)*4:36 + (ks & 1)*4]
        b = ((ks & 3)*2 + p - 1)*4; return wf[b:b+4]
    def tr(dst, off): return [f"ds_read_b64_tr_b16 {dst[0:2]}, {vwa[0]} offset:{off}", f"ds_read_b64_tr_b16 {dst[2:4]}, {vwa[0]} offset:{off+512}"]
    def reads(c):
        o = []
        for ks in (2*c, 2*c+1):
            for p in (1, 2, 0): o += tr(wfrag(ks, p), w_lds(ks, p))
            for tt in range(4): o.append(f"ds_read_b128 {xfrag(ks, tt)}, {vxa[ks&1]} offset:{c*8192 + tt*2048}")
        return o
    sf = v(184, 16); acck = v(96, 16); accv = v(112, 16); accq = v(128, 16); csk = v(144, 4); csv = v(148, 4); csq = v(152, 4)
    rsum = v(156, 4); gram = v(160, 4); pf = v(164, 8); vsr = v(172, 4)
    nmv = v(184, 16); rlv = v(200, 16); rv = v(216, 16); qs = v(232, 8); tmp = v(240, 16)
    xres = v(24, 8)
    smA = S.alloc(2); smC = S.alloc(2)
    vt11 = v(176); vt4 = v(177); vt8 = v(182); NT1, NT0 = (22, 8) if EARLYX else (11, 4)
    later = its(f"""v_lshlrev_b32 {vt4}, 7, {lane}
v_max_u32 {vt11}, {NT1 - 1}, {lane}
v_subrev_u32 {vt11}, {NT1 - 1}, {vt11}
v_lshl_add_u32 {vt11}, {vt11}, 24, {vt4}
v_lshrrev_b32 {vt8}, {3 if EARLYX else 2}, {lane}
v_lshl_add_u32 {vt8}, {vt8}, 24, {vt4}
v_lshrrev_b32 {vz[3]}, 2, {lane}
v_lshl_add_u32 {vt4}, {vz[3]}, 24, {vt4}""") + later
    vth = v(180); vtf = v(181)
    if LOCH:
        later += its(f"""s_lshl_b32 {st0}, {sw}, 14
s_lshl_b32 {st1}, {sj}, 11
s_add_u32 {st0}, {st0}, {st1}
v_lshl_add_u32 {vth}, {lane}, 7, {st0}
s_lshr_b32 {st0}, {sw}, 1
s_lshl_b32 {st0}, {st0}, 13
s_lshl_b32 {st1}, {sj}, 10
s_add_u32 {st0}, {st0}, {st1}
s_and_b32 {st1}, {sw}, 1
s_lshl_b32 {st1}, {st1}, 9
s_add_u32 {st0}, {st0}, {st1}
s_mul_i32 {st1}, {srb}, {65536 - 16384}
s_sub_u32 {st0}, {st0}, {st1}
s_add_u32 {st0}, {st0}, {WS_ST - WS_H - 16*128}
v_lshl_add_u32 {t0}, {lane}, 7, {st0}""") + [It(f"v_cmp_gt_u32 vcc, 16, {lane}\ns_nop 1\nv_cndmask_b32 {vth}, {t0}, {vth}, vcc\nv_cmp_gt_u32 vcc, 20, {lane}\nv_mov_b32 {t0}, {OOB}\ns_nop 0\nv_cndmask_b32 {vth}, {t0}, {vth}, vcc", cost=2, kind='salu')]
        later += its(f"""s_mul_i32 {st0}, {sw}, {22*1024}
s_mul_i32 {st1}, {sj}, 3072
s_add_u32 {st0}, {st0}, {st1}
v_max_u32 {t0}, 23, {lane}
v_subrev_u32 {t0}, 23, {t0}
v_lshlrev_b32 {t0}, 24, {t0}
v_lshl_add_u32 {t0}, {lane}, 7, {t0}
v_add_u32 {vtf}, {st0}, {t0}""")
    def touch(srd_, vaddr, pre):
        def f(): a(f"buffer_load_dword v0, {vaddr}, {srd_}, {ssoff} offen").wr = set()
        return [It(pre, cost=2), It(f, kind='vmem')]
    later += its(f"""s_mov_b32 {smA[0]}, 0xaaaaaaaa
s_mov_b32 {smA[1]}, 0xaaaaaaaa
s_mov_b32 {smC[0]}, 0xcccccccc
s_mov_b32 {smC[1]}, 0xcccccccc
v_and_b32 {t0}, 15, {lane}
v_lshlrev_b32 {vsr[3]}, 3, {t0}
v_lshlrev_b32 {t0}, 2, {t0}
s_lshl_b32 {st0}, {sw}, 6
v_add_u32 {vsr[0]}, {st0}, {t0}
v_lshlrev_b32 {vsr[1]}, 1, {vsr[0]}
v_lshrrev_b32 {vsr[2]}, 4, {lane}
v_lshlrev_b32 {vsr[2]}, 4, {vsr[2]}
v_add_u32 {vsr[0]}, {SB}, {vsr[0]}
v_add_u32 {vsr[1]}, {SB}, {vsr[1]}
v_add_u32 {vsr[2]}, {SB}, {vsr[2]}
v_add_u32 {vsr[3]}, {SB}, {vsr[3]}""")
    if LAT:
        h_ = len(later) // 2; k.run(later[:h_] + take(W1_, 2) + later[h_:]); later = []
    k.run(W1_)
    if HOP: a("s_branch L_main\n.p2align 12\nL_main:")
    a.wait(tok['w', 0]); a("s_barrier"); k.stamp('first')
    for r in reads(0): a(r)
    k.run(X(2) + W(2))
    swo = spsrc; sw14 = sxr; sc0 = sj1; sw1b = sxb; sinv = srd['wqkv'][2]; sw1o = srd['wqkv'][3]
    NEXT = its(f"""s_lshl_b32 {swo}, {sw}, 17
s_lshl_b32 {st0}, {sj}, 7
s_add_u32 {swo}, {swo}, {st0}
s_lshl_b32 {sw14}, {sw}, 14
s_mul_i32 {sc0}, {sj}, 12
s_add_u32 {sc0}, {sc0}, {sw}
s_mul_i32 {sw1b}, {sw}, {8*2752}
s_mul_i32 {st0}, {sj}, 384
s_add_u32 {sw1b}, {sw1b}, {st0}""") + [It(f"s_cmp_lt_u32 {sj}, 7\ns_cselect_b32 {sinv}, 0, {OOB}", cost=2),
        It(f"s_and_b32 {sqd}, {srb}, 3\ns_lshl_b32 {sqd}, {sqd}, 1\ns_cmp_eq_u32 {sj}, {3 if RW else 99}\ns_cselect_b32 {sqd}, {sqd}, 0", cost=3)]
    WOD = []
    for g2 in range(8):
        WOD += its(f"s_add_u32 {ssq}, {sqd}, {g2}\ns_and_b32 {ssq}, {ssq}, 7\ns_lshl_b32 {sc_x}, {ssq}, 14\ns_add_u32 {sc_x}, {sc_x}, {swo}\ns_lshl_b32 {ssq}, {ssq}, 11\ns_add_u32 m0, {ssq}, {sw14}")
        WOD += [k.vm(f"buffer_load_dwordx4 {vp[i]}, {srd['wo']}, {sc_x} offen offset:{i*1024} lds", 'wo') for i in range(2)]
    UPOS = [WB + p*12288 for p in (4, 5, 0, 1, 2, 3, 6, 7)]
    def U(ks):
        o = its(f"s_add_u32 {sc_w}, {sw1b}, {ks*32*2752}\ns_add_u32 {sw1o}, {sc_w}, {sinv}")
        for s in range(3):
            o += its(f"s_add_u32 m0, {sw10}, {UPOS[ks & 7] + s*4096 - s*128}")
            o.append(k.vm(f"buffer_load_dwordx4 {vw1d}, {srd['w1']}, {sw1o if s else sc_w} offen offset:{s*128} lds", ('u', ks)))
        return o
    BULK = U(0) + U(1) + U(2) + U(3) + WOD + U(4) + U(5)
    assert NB[0] <= 6 and NB[0] + NB[1] <= 12
    QM = []
    stats_at = {0: (0, 1), 1: (2,), 2: (3,), 3: (4, 5), 4: (6,), 5: (7,)}
    rootld = f"buffer_load_dword {vroot}, {vrootA}, {srd['dbg']}, 0 offen sc1"
    for c in range(8):
        need_ = ([('w', c+1), ('x', c+1)] if c < 7 else []) + [('x', cc) for cc in stats_at.get(c, ())] + (['xr'] if c == 7 else [])
        k.stamp('j%d' % c)
        for key in need_: a.wait(tok[key])
        k.stamp('k%d' % c)
        a("s_waitcnt lgkmcnt(0)\ns_barrier")
        k.stamp('i%d' % c)
        if c == 1:
            a(f"s_cmp_ge_u32 {szr}, 8\ns_cbranch_scc1 L_noroot\ns_cmp_lg_u32 {sw}, 0\ns_cbranch_scc1 L_noroot")
            a.hidden(f"""s_lshl_b32 {ssoff}, {szr}, 5
v_lshlrev_b32 {vz[0]}, 24, {lane}
v_mov_b32 {vz[1]}, 1
buffer_store_dword {vz[1]}, {vz[0]}, {srd['dbg']}, {ssoff} offen sc1
L_noroot:""")
        mf = []
        for ks in (2*c, 2*c+1):
            for tt in range(4):
                for p, acc in ((1, acck), (2, accv)):
                    d = acc[tt*4:tt*4+4]
                    mf.append(f"v_mfma_f32_16x16x32_bf16 {d}, {xfrag(ks, tt)}, {wfrag(ks, p)}, {d if ks else 0}")
            for p, acc in ((1, csk), (2, csv)):
                mf.append(f"v_mfma_f32_16x16x32_bf16 {acc}, {ones}, {wfrag(ks, p)}, {acc if ks else 0}")
        for ks in (2*c, 2*c+1):
            dst = QM if c >= 8 - NQ else mf
            for tt in range(4):
                d = accq[tt*4:tt*4+4]
                dst.append(f"v_mfma_f32_16x16x32_bf16 {d}, {wfrag(ks, 0)}, {xfrag(ks, tt)}, {d if ks else 0}")
            dst.append(f"v_mfma_f32_16x16x32_bf16 {csq}, {wfrag(ks, 0)}, {ones}, {csq if ks else 0}")
        rd = []
        for i, cc in enumerate(stats_at.get(c, ())):
            for p in range(2):
                s_ = sf[(2*i+p)*4:(2*i+p)*4+4]; first = (cc == 0 and p == 0)
                rd.append(f"ds_read_b128 {s_}, {vsa[p]} offset:{cc*8192}")
                mf.append(f"v_mfma_f32_16x16x32_bf16 {rsum}, {s_}, {ones}, {0 if first else rsum}")
                mf.append(f"v_mfma_f32_16x16x32_bf16 {gram}, {s_}, {s_}, {0 if first else gram}")
        if c < 7: rd += reads(c+1)
        if c == 7:
            for tt in range(4):
                rd += [f"ds_read_b128 {nmv[tt*4:tt*4+4]}, {vsr[2]} offset:{tt*64}", f"ds_read_b128 {rlv[tt*4:tt*4+4]}, {vsr[2]} offset:{512 + tt*64}"]
            for tt in range(4):
                rd += [f"ds_read_b128 {rv[tt*4:tt*4+4]}, {vsr[2]} offset:{256 + tt*64}", f"ds_read_b64 {qs[tt*2:tt*2+2]}, {vsr[3]} offset:{768 + tt*128}"]
        if c == 7:
            rd += [f"ds_read_b64 {xres[4*H+2*e:4*H+2*e+2]}, {vxr[e]} offset:{H*4096}" for H in range(2) for e in range(2)]
            for n in range(2): rd += [f"ds_read_b64_tr_b16 {pf[n*4:n*4+2]}, {pa[n]}", f"ds_read_b64_tr_b16 {pf[n*4+2:n*4+4]}, {pa[n]} offset:512"]
        dm = {0: W(3) + X(3), 1: W(4) + X(4) + X(5), 2: W(5) + X(6), 3: W(6) + X(7), 4: W(7) + PD + XD,
              5: [k.vm(rootld)] + NEXT, 6: [], 7: []}[c]
        if c == HW:
            def f5():
                a(f"s_cmp_lg_u32 {sw}, 0\ns_cbranch_scc1 L_nob")
                a.hidden(f"s_mul_i32 {ssoff}, {sj}, 384\nbuffer_load_dword v0, {vt4}, {srd['b1']}, {ssoff} offen\ns_lshl_b32 {ssoff}, {sj}, 7\nbuffer_load_dword v0, {vt4}, {srd['b2']}, {ssoff} offen\n"
                         + (f"v_lshlrev_b32 {vth}, 20, {lane}\nbuffer_load_dword v0, {vth}, {ws}, 0 offen\nbuffer_load_dword v0, {vth}, {srd['out']}, 0 offen\n" if TLB else "") + "L_nob:")
            def f6():
                if EARLYX: a("s_bitcmp1_b32 s2, 2\ns_cbranch_scc1 L_nohw")
                idx = f"s_lshr_b32 {ssoff}, s2, 3\ns_lshl_b32 {ssoff}, {ssoff}, 2\ns_and_b32 {st0}, s2, 3\ns_add_u32 {ssoff}, {ssoff}, {st0}\n" if EARLYX else f"s_mov_b32 {ssoff}, s2\n"
                a.hidden(idx + f"s_lshl_b32 {ssoff}, {ssoff}, 2\ns_add_u32 {st0}, {ssoff}, {sw}\ns_mul_i32 {ssoff}, {st0}, {NT1*128}\nbuffer_load_dword v0, {vt11}, {srd['w1']}, {ssoff} offen\n"
                         + f"s_mul_i32 {ssoff}, {st0}, {NT0*128}\nbuffer_load_dword v0, {vt8}, {srd['wo']}, {ssoff} offen\nL_nohw:")
            dm = dm + [It(f6, kind='vmem'), It(f5, kind='vmem')]
            if LOCH & 1: dm += touch(ws, vth, f"s_lshl_b32 {ssoff}, {srb}, 16\ns_add_u32 {ssoff}, {ssoff}, {WS_H}")
            for H in range(2):
                if LOCH & (2 << H): dm += touch(ws, vtf, f"s_mul_i32 {ssoff}, {srb}, {2*88*1024}\ns_add_u32 {ssoff}, {ssoff}, {WS_HH + H*88*1024}")
        if c >= 5: dm = dm + take(BULK, NB[c-5])
        for x in dm:
            if x.kind == 'vmem': x.cost = 2
        vq = []
        if c == 6:
            vq = its(f"""v_cndmask_b32 {rsum[0]}, {rsum[0]}, {rsum[1]}, {smA}
v_cndmask_b32 {rsum[2]}, {rsum[2]}, {rsum[3]}, {smA}
v_cndmask_b32 {gram[0]}, {gram[0]}, {gram[1]}, {smA}
v_cndmask_b32 {gram[2]}, {gram[2]}, {gram[3]}, {smA}
v_cndmask_b32 {rsum[0]}, {rsum[0]}, {rsum[2]}, {smC}
v_cndmask_b32 {gram[0]}, {gram[0]}, {gram[2]}, {smC}
v_mul_f32 {rsum[0]}, {f32(-1/512)}, {rsum[0]}
v_mul_f32 {gram[0]}, {f32(1/512)}, {gram[0]}
v_fma_f32 {gram[0]}, -{rsum[0]}, {rsum[0]}, {gram[0]}
v_max_f32 {gram[0]}, 0, {gram[0]}
v_add_f32 {gram[0]}, {seps}, {gram[0]}
v_rsq_f32 {gram[0]}, {gram[0]}
v_mul_f32 {rsum[1]}, {f32(LOG2E)}, {gram[0]}""")
            vq.append(It(f"""s_mov_b32 exec_lo, 0x00f0000f
s_mov_b32 exec_hi, 0xf0000f00
ds_write_b32 {vsr[0]}, {rsum[0]} offset:0
ds_write_b32 {vsr[0]}, {gram[0]} offset:{256}
ds_write_b32 {vsr[0]}, {rsum[1]} offset:{512}
ds_write_b64 {vsr[1]}, {rsum[0:2]} offset:{768}
s_mov_b64 exec, -1""", cost=1, kind='salu'))
        if c < 4:
            n = len(later) if c == 3 else 40
            vq = later[:n]; later = later[n:]
        k.pack(mf, [rd, dm, vq] if c < 4 else [rd, vq, dm], False, vgap=VG1 if len([x for x in dm if x.kind == 'vmem'])*VG1 <= len(mf) else 3, excl=EXCL)
    k.stamp('pass1')
    sdel = smA; sln2 = smC
    a(f"s_mov_b32 {sdel[0]}, {f32(1e-6/LN2)}\ns_mov_b32 {sdel[1]}, {f32(1e-6/LN2)}\ns_mov_b32 {sln2[0]}, {f32(LN2)}\ns_mov_b32 {sln2[1]}, {f32(LN2)}")
    def phi_tail(acc, n):
        return ([f"v_exp_f32 {tmp[r]}, {acc[r]} clamp" for r in range(n)] + [f"v_max_f32 {acc[r]}, {sdel[0]}, {acc[r]}" for r in range(n)]
                + [f"v_pk_fma_f32 {acc[r:r+2]}, {acc[r:r+2]}, {sln2}, {tmp[r:r+2]}" for r in range(0, n, 2)])
    def weave(ops, nv):
        step = len(ops) // max(nv, 1)
        for i, x in enumerate(ops):
            if nv and i % step == step // 2 and i // step < nv: k.run(take(BULK, 1))
            a(x)
    pkf = v(48, 8); vf = v(56, 8)
    weave([f"v_pk_fma_f32 {acck[r:r+2]}, {nmv[r:r+2]}, {csk[0:2]}, {acck[r:r+2]}" for r in range(0, 16, 2)]
          + [f"v_pk_fma_f32 {acck[r:r+2]}, {acck[r:r+2]}, {rlv[r:r+2]}, {sdel}" for r in range(0, 16, 2)] + phi_tail(acck, 16)
          + [f"v_cvt_pk_bf16_f32 {pkf[r]}, {acck[2*r]}, {acck[2*r+1]}" for r in range(8)]
          + [f"v_pk_fma_f32 {accv[r:r+2]}, {nmv[r:r+2]}, {csv[0:2]}, {accv[r:r+2]}" for r in range(0, 16, 2)]
          + [f"v_pk_mul_f32 {accv[r:r+2]}, {accv[r:r+2]}, {rv[r:r+2]}" for r in range(0, 16, 2)]
          + [f"v_cvt_pk_bf16_f32 {vf[r]}, {accv[2*r]}, {accv[2*r+1]}" for r in range(8)], NB[3])
    dkv = v(64, 4); dz = v(68, 4); bn = v(72, 5)
    for h in range(2):
        a(f"v_mfma_f32_16x16x32_bf16 {dkv}, {pkf[h*4:h*4+4]}, {vf[h*4:h*4+4]}, {dkv if h else 0}")
        a(f"v_mfma_f32_16x16x32_bf16 {dz}, {pkf[h*4:h*4+4]}, {ones}, {dz if h else 0}")
    qops = []
    for tt in range(4): qops += [f"v_pk_fma_f32 {accq[tt*4+r:tt*4+r+2]}, {qs[tt*2:tt*2+2]}, {csq[r:r+2]}, {accq[tt*4+r:tt*4+r+2]} op_sel_hi:[0,1,1]" for r in (0, 2)]
    for tt in range(4): qops += [f"v_pk_fma_f32 {accq[tt*4+r:tt*4+r+2]}, {accq[tt*4+r:tt*4+r+2]}, {qs[tt*2:tt*2+2]}, {sdel} op_sel:[0,1,0]" for r in (0, 2)]
    qops += phi_tail(accq, 16)
    k.check(f"v_cmp_ne_u32 vcc, 0, {vroot}", 0xff, rootld, st1)
    a(f"ds_write_b128 {va[0]}, {dkv}\nds_write_b128 {va[1]}, {dz} offset:1024")
    for g in range(4): a(f"ds_read_b32 {bn[g]}, {va[2]} offset:{g*256}")
    a(f"ds_read_b32 {bn[4]}, {va[4]} offset:1024")
    at = [k.vm(f"buffer_atomic_add_f32 {bn[gg]}, {va[3]}, {ws}, {skvb} offen offset:{(gg&1)*1024 + (gg>>1)*512}", after=AT0) for gg in range(4)]
    at.append(k.vm(f"buffer_atomic_add_f32 {bn[4]}, {va[5]}, {ws}, {skvb} offen"))
    k.pack(QM, [at + take(BULK, NB[4])], False, vgap=4)
    weave(qops, NB[5])
    k.stamp('atom')
    a(f"s_lshl_b32 {st0}, {srb1}, 16\ns_xor_b32 {st1}, {shead1}, {4*QX}\ns_lshl_b32 {st1}, {st1}, 10\ns_add_u32 {st0}, {st0}, {st1}\ns_add_u32 {st0}, {st0}, {WS_PQ}\ns_add_u32 {st1}, {st0}, 32768")
    for t32 in range(2):
        d = v(80, 8)[t32*4:t32*4+4]
        for s in range(2):
            for h in range(2):
                a(f"v_cvt_pk_bf16_f32 {d[2*s+h]}, {accq[(2*t32+s)*4+2*h]}, {accq[(2*t32+s)*4+2*h+1]}")
        for h in range(2): a(f"v_permlane16_swap_b32 {d[h]}, {d[2+h]}")
        if t32 == 1:
            a(f"s_cmp_ge_u32 {su}, 176\ns_cbranch_scc1 L_nops")
            a.hidden("".join(f"buffer_store_dwordx4 {pf[n*4:n*4+4]}, {vl16}, {ws}, {sdst} offen offset:{n*1024} sc1\n" for n in range(2)) + "L_nops:")
        tok['pq'] = a(f"buffer_store_dwordx4 {d}, {vl16}, {ws}, {(st0, st1)[t32]} offen sc1")
    k.stamp('pqst')
    a("s_barrier")
    UL = BULK + U(6) + U(7)
    k.run(take(UL, NU_ARR // 2))
    vw1r = v(8, 2); vwr = v(12, 2); vcA = v(14); vc = v(15); vrw = v(16, 3); vrr = v(19); vh = v(20); vst = v(21); vone = v(22); vlz = v(23)
    vfA = v(10); vkv = v(11); vfl = v(4, 4)
    skv = srd['wqkv'][0]; spq = srd['wqkv'][1]; shb = srd['x'][0]; sstb = srd['x'][1]; se6 = sdst; scn = sw6k
    a(f"""v_bfe_u32 {t0}, {lane}, 4, 1
v_bfe_u32 {t1}, {lane}, 3, 1
v_lshl_or_b32 {t1}, {t1}, 1, {t0}
v_xor_b32 {t1}, {sw}, {t1}
v_lshlrev_b32 {t1}, 5, {t1}
v_and_b32 {t2}, 3, {lane}
v_lshl_add_u32 {t1}, {t2}, 3, {t1}
v_bfe_u32 {t2}, {lane}, 2, 2
v_lshl_add_u32 {t1}, {t2}, 7, {t1}
v_lshrrev_b32 {t3}, 5, {lane}
v_lshl_add_u32 {t1}, {t3}, 9, {t1}
v_add_u32 {vwr[0]}, {sw14}, {t1}
v_xor_b32 {vwr[1]}, 64, {vwr[0]}
v_lshl_add_u32 {t1}, {t0}, 11, {t1}
v_add_u32 {vw1r[0]}, {WB}, {t1}
v_add_u32 {vw1r[1]}, {WB + 49152}, {t1}
v_mov_b32 {vone}, 1
v_lshlrev_b32 {vlz}, 24, {lane}
v_lshlrev_b32 {t1}, 8, {lane}
v_lshl_add_u32 {vcA}, {t3}, 30, {t1}
v_lshlrev_b32 {vh}, 14, {t0}
v_lshl_add_u32 {vh}, {t3}, 9, {vh}
v_and_b32 {t1}, 15, {lane}
v_lshl_add_u32 {vh}, {t1}, 4, {vh}
v_and_b32 {t1}, 31, {lane}
v_lshlrev_b32 {t1}, 3, {t1}
v_lshl_add_u32 {vst}, {t3}, 13, {t1}
v_lshrrev_b32 {t0}, 3, {lane}
v_lshlrev_b32 {t0}, 26, {t0}
v_lshl_add_u32 {vfA}, {lane}, 7, {t0}
v_and_b32 {t0}, 31, {lane}
v_min_u32 {t0}, 16, {t0}
v_lshlrev_b32 {t0}, 4, {t0}
v_lshl_add_u32 {vkv}, {t3}, 9, {t0}""")
    k.run(take(UL, NU_ARR - NU_ARR // 2))
    for r in (1, 2, 3):
        a(f"s_xor_b32 {st0}, {sw}, {r}\ns_lshl_b32 {st0}, {st0}, 13\ns_add_u32 {st0}, {st0}, {r*2048}\nv_add_u32 {vrw[r-1]}, {st0}, {vl16}")
    a(f"""s_lshl_b32 {st0}, {sw}, 13
v_add_u32 {vrr}, {st0}, {vl16}
s_add_u32 {skv}, {sw14}, {WS_KV}
s_lshl_b32 {spq}, {srb}, 16
s_add_u32 {spq}, {spq}, {st0}
s_add_u32 {spq}, {spq}, {WS_PQ}
s_lshl_b32 {shb}, {srb}, 16
s_lshr_b32 {st0}, {shead}, 1
s_lshl_b32 {st0}, {st0}, 10
s_add_u32 {shb}, {shb}, {st0}
s_and_b32 {st0}, {sw}, 1
s_lshl_b32 {st0}, {st0}, 8
s_add_u32 {shb}, {shb}, {st0}
s_add_u32 {shb}, {shb}, {WS_H}
s_lshl_b32 {sstb}, {srb}, 14
s_lshl_b32 {st0}, {shead}, 8
s_add_u32 {sstb}, {sstb}, {st0}
s_add_u32 {sstb}, {sstb}, {WS_ST}
s_mov_b32 {se6}, {f32(1e-6)}
s_and_b32 {st0}, {srb1}, 3
s_lshl_b32 {st1}, {shead1}, 2
s_add_u32 {st0}, {st0}, {st1}
s_lshl_b32 {st0}, {st0}, 8
s_add_u32 {st0}, {st0}, {WS_CN}
s_lshl_b32 {scn}, {sw}, 13
s_add_u32 {scn}, {scn}, {WS_CN}""")
    a.wait(tok['pq'])
    a(f"buffer_atomic_add {vone}, {vlz}, {ws}, {st0} offen")
    k.stamp('arrive')
    WO = v(48, 64); KZ = v(112, 32); OF = v(144, 8); csa = v(40, 4)
    w1 = ag(0, 192)
    wor = []
    for hh in range(8):
        for t in range(2):
            d = WO[(hh*2+t)*4:(hh*2+t)*4+4]
            wor += [f"ds_read_b64_tr_b16 {d[0:2]}, {vwr[t]} offset:{hh*2048}", f"ds_read_b64_tr_b16 {d[2:4]}, {vwr[t]} offset:{hh*2048+1024}"]
    k.run(UL)
    sw2 = swo; send = sc_x; shh = [skvb, shead1]; so2 = swb; srot3 = srb1; sgab = smA; shv = srd['x'][2]
    RB = 65536; SL = RB + 4096
    a(f"""s_mul_i32 {st0}, {srb}, {2*88*1024}
s_mul_i32 {st1}, {sw}, {22*1024}
s_add_u32 {st0}, {st0}, {st1}
s_add_u32 {shv}, {st0}, {WS_HH}
s_mul_i32 {st1}, {sj}, 3072
s_add_u32 {shh[0]}, {shv}, {st1}
s_add_u32 {shh[1]}, {shh[0]}, {sinv}
s_mov_b32 {sgab[0]}, {f32(GA)}
s_mov_b32 {sgab[1]}, {f32(GA)}
s_mul_i32 {sw2}, {shead}, {22*2048}
s_add_u32 {sw2}, {sw2}, {WS_W2 if not NOW2 else OOB}
""")
    if HOP: hops(1)
    a.wait(tok['wo']); k.run(wor)
    def rd_w1(k0, k1):
        o = []
        for ks in range(k0, k1):
            for s in range(3):
                d = w1[(ks*3+s)*4:(ks*3+s)*4+4]; off = UPOS[ks & 7] - WB + s*4096
                b = vw1r[0] if off < 49152 else vw1r[1]; off %= 49152
                o += [f"ds_read_b64_tr_b16 {d[0:2]}, {b} offset:{off}", f"ds_read_b64_tr_b16 {d[2:4]}, {b} offset:{off + 1024}"]
        return o
    cload = f"buffer_load_dword {vc}, {vcA}, {ws}, {scn} offen sc1"
    if NS1 == 2:
        a(cload)
        a.wait(tok['u', 3]); a("s_waitcnt lgkmcnt(0)\ns_barrier")
    cst = [v(44, 4), v(152, 4), v(156, 4)]; cs = v(224, 12)
    KC = 4 if NS1 == 2 else 8
    def csm(k0, k1):
        o = []
        for ks in range(k0, k1):
            for s in range(3):
                d = cst[s] if ks < KC else cs[s*4:s*4+4]
                o.append(f"v_mfma_f32_16x16x32_bf16 {d}, {w1[(ks*3+s)*4:(ks*3+s)*4+4]}, {csa}, {0 if ks == 0 else cst[s] if ks <= KC else d}")
        return o
    UB = U(8) + U(9) + U(10) + U(11); UC = U(12) + U(13) + U(14) + U(15); R47 = rd_w1(4, 8); R8 = rd_w1(8, 12); R12 = rd_w1(12, 16)
    if NS1 == 2: k.run(rd_w1(0, 4) + csm(0, 4))
    else:
        a.wait(tok['u', 1]); a("s_barrier"); k.run(rd_w1(0, 2))
        UU = UB + (UC if NS1 == 4 else [])
        for p in range(1, 2*NS1 - 3):
            if p < 4: a.wait(tok['u', 2*p + 1])
            a("s_waitcnt lgkmcnt(0)\ns_barrier")
            rr = rd_w1(2*p, 2*p + 2) if p < 4 else []; cc = csm(2*p - 2, 2*p) if p < 3 else []
            for i in range(6): k.run(([cload] if 6*p + i == CP else []) + take(UU, 1) + rr[2*i:2*i+2] + cc[i:i+1])
        if NS1 == 3:
            a.wait(tok['u', 7]); a("s_barrier"); k.run(rd_w1(6, 8))
        assert not UU
        UB = []; R47 = []
        if NS1 == 4: UC = []
        if not CP: a(cload)
        k.run(csm(4, 8))
    k.stamp('w1a')
    k.check(f"v_cmp_eq_u32 vcc, 8, {vc}", -1, cload, st1, BK1)
    k.stamp('s1')
    PQ = ag(192, 64); ACC = v(160, 32); D = v(192, 32); KVR = v(224, 32)
    def ld(dst, sbase, off, vo_=vl16):
        o = []
        if off >= 4096: o = its(f"s_add_u32 {ssoff}, {sbase}, {off & ~4095}"); sbase = ssoff; off &= 4095
        return o + [k.vm(f"buffer_load_dwordx4 {dst}, {vo_}, {ws}, {sbase} offen offset:{off} sc1")]
    def kvr(hh): return KVR[(hh & 3)*8:(hh & 3)*8+8]
    def head_loads(hh): return ld(kvr(hh)[0:4], skv, hh*2048, vkv) + ld(kvr(hh)[4:8], skv, hh*2048 + 1024, vkv) + ld(PQ[hh*4:hh*4+4], spq, hh*1024)
    for hh in range(4): k.run(head_loads(hh))
    vxc = v(7)
    a.wait(tok['u', 4*NS1 - 1])
    a(f"s_waitcnt lgkmcnt(0)\ns_barrier\nv_lshrrev_b32 {t2}, 5, {lane}\nv_lshlrev_b32 {t2}, 30, {t2}\nv_lshl_add_u32 {t2}, {lane}, 7, {t2}")
    a(f"buffer_load_dword {vxc}, {t2}, {ws}, {sflb} offen offset:16 sc1")
    def store(text, near=False):
        if not near: return a("\n".join(l + " sc1" for l in text.split('\n')))
        k.nlab += 1; n = k.nlab
        a(f"s_cmp_eq_u32 {sxcc}, 0\ns_cbranch_scc1 L_far{n}")
        t = a(text)
        a.hidden(f"s_branch L_st{n}\nL_far{n}:\n" + "\n".join(l + " sc1" for l in text.split('\n')) + f"\nL_st{n}:")
        return t
    ACCS = [ACC, KVR]
    def p2_units(side):
        def cvt_kv(hh): return [f"v_cvt_pk_bf16_f32 {KZ[hh*4+r]}, {kvr(hh)[2*r]}, {kvr(hh)[2*r+1]}" for r in range(4)]
        def om(n): return f"v_mfma_f32_32x32x16_bf16 {D[(n&1)*16:(n&1)*16+16]}, {KZ[(n&7)*4:(n&7)*4+4]}, {PQ[n*4:n*4+4]}, 0"
        def pm(n, t):
            d = ACCS[n >> 3][t*16:t*16+16]
            return f"v_mfma_f32_32x32x16_bf16 {d}, {WO[((n&7)*2+t)*4:((n&7)*2+t)*4+4]}, {OF[(n&1)*4:(n&1)*4+4]}, {d if n & 7 else 0}"
        k.run(cvt_kv(0)); a(om(0)); k.run(cvt_kv(1))
        for n in range(16):
            d = D[(n&1)*16:(n&1)*16+16]; o = OF[(n&1)*4:(n&1)*4+4]
            ex = list(side(n)); per = -(-len(ex) // 3)
            cv = cvt_kv(n+2) if n + 2 < 8 else []
            if n + 1 < 16: a(om(n+1))
            k.run(ex[:per])
            a(f"v_add_f32 {d[8]}, {se6}, {d[8]}\nv_rcp_f32 {d[8]}, {d[8]}")
            k.run(cv[:2])
            if n > 0: a(pm(n-1, 0))
            k.run(ex[per:2*per])
            for r in range(5): a(f"v_mul_f32 {d[r]}, {d[r]}, {d[8]}")
            if n > 0: a(pm(n-1, 1))
            k.run(ex[2*per:])
            for r in range(5, 8): a(f"v_mul_f32 {d[r]}, {d[r]}, {d[8]}")
            for r in range(4): a(f"v_cvt_pk_bf16_f32 {o[r]}, {d[2*r]}, {d[2*r+1]}")
            k.run(cv[2:])
            if n == 7: k.stamp('p2a')
        a(pm(15, 0)); a(pm(15, 1))
    def red_w(acc, base): return [f"ds_write_b128 {vrw[r-1]}, {acc[r*8+q*4:r*8+q*4+4]} offset:{base + q*1024}" for r in (1, 2, 3) for q in range(2)]
    def red_r(tm, base): return [f"ds_read_b128 {tm[(r-1)*8+q*4:(r-1)*8+q*4+4]}, {vrr} offset:{base + r*2048 + q*1024}" for r in (1, 2, 3) for q in range(2)]
    HBs = [v(32, 8), v(24, 8)]
    sfo = S.alloc()
    a(f"s_lshl_b32 {sfo}, {shead}, 5\ns_and_b32 {sfo}, {sfo}, 0x380\ns_lshl_b32 {st0}, {sw}, 2\ns_add_u32 {sfo}, {sfo}, {st0}\ns_add_u32 {sfo}, {sfo}, {sflb}")
    def flag(sync, key):
        k.nlab += 1; n = k.nlab
        a.wait(tok[key])
        a(f"s_cmp_eq_u32 {sxcc}, {0 if LFLAG else sxcc}\ns_cbranch_scc1 L_ff{n}")
        a(f"buffer_store_dword {vone}, {vlz}, {ws}, {sfo} offen offset:{sync*1024}")
        a.hidden(f"s_branch L_nf{n}\nL_ff{n}:\nbuffer_store_dword {vone}, {vlz}, {ws}, {sfo} offen offset:{sync*1024} sc1\nL_nf{n}:")
    def fload(sync): return f"buffer_load_dwordx4 {vfl}, {vfA}, {ws}, {sflb} offen offset:{sync*1024} sc1"
    def fcheck(sync): k.check(f"v_and_b32 {vfl[0]}, {vfl[0]}, {vfl[1]}\nv_and_b32 {vfl[2]}, {vfl[2]}, {vfl[3]}\nv_and_b32 {vfl[0]}, {vfl[0]}, {vfl[2]}\nv_cmp_ne_u32 vcc, 0, {vfl[0]}", 0xff, fload(sync), st1, BK2)
    pqB = [ld(PQ[(8+hh)*4:(8+hh)*4+4], spq, 32768 + hh*1024) for hh in range(8)]
    RA = R47 if NS1 == 2 else R8
    W2A = ag(192, 64); W2V = v(48, 112); vw2 = v(14, 2)
    def w2frag(n, t): i = n*2 + t; return W2V[i*4:i*4+4] if i < 28 else W2A[(i-28)*4:(i-28)*4+4]
    def w2list(ns):
        o = []
        for n in ns:
            if n % 2 == 0: o += its(f"s_add_u32 {so2}, {sw2}, {n*2048}")
            o += [k.vm(f"buffer_load_dwordx4 {w2frag(n, t)}, {vw2[t]}, {ws}, {so2} offen offset:{(n & 1)*2048} sc1") for t in range(2)]
        return o
    W2X = w2list(range(14, 14 + W2P // 2)); W2L = w2list([n for n in range(22) if not 14 <= n < 14 + W2P // 2])
    a(f"""s_and_b32 {st0}, {sw}, 1
s_lshl_b32 {st0}, {st0}, 8
s_lshr_b32 {st1}, {sw}, 1
s_lshl_b32 {st1}, {st1}, 10
s_add_u32 {st0}, {st0}, {st1}
v_xor_b32 {vw2[0]}, {st0}, {vl16}
v_xor_b32 {vw2[1]}, 1024, {vw2[0]}""")
    shs = srd['x'][3]; sst = su_ = S.alloc(); vsl = v(12)
    RWA = red_w(ACC, 0)
    def side(n):
        o = head_loads(n+4) if n < 4 else pqB[(n-4)*2] + pqB[(n-4)*2+1] if n < 8 else take(UC, 3) if UC else take(W2X, W2Q)
        if n < 8: o += RA[3*n:3*n+3]
        elif NS1 == 4: o += R12[3*(n-8):3*(n-8)+3]
        if n >= 10: o.append(RWA[n-10])
        if n == 13: o += its(f"""s_lshl_b32 {shs}, {srb}, 16
s_add_u32 {shs}, {shs}, {sw12}
s_add_u32 {shs}, {shs}, {WS_H}
s_lshl_b32 {sst}, {srb}, 14
s_add_u32 {sst}, {sst}, {sw12}
s_add_u32 {sst}, {sst}, {WS_ST}""")
        if n == 14: o.append(It(f"v_cmp_eq_u32 vcc, {sxcc}, {vxc}\ns_nop 1\ns_cmp_eq_u32 vcc_lo, -1\ns_cselect_b32 {sxcc}, 1, 0\ns_add_u32 {st1}, {shb}, 32768"))
        return o
    if NS1 == 2: UD = UC; UC = UB
    p2_units(side)
    k.stamp('p2b')
    TA = D[0:24]; TB = WO[0:24]; XU = WO[24:40]; stt = WO[40:44]
    ops = [x for r in range(8) for x in (f"v_lshlrev_b32 {XU[2*r]}, 16, {xres[r]}", f"v_and_b32 {XU[2*r+1]}, 0xffff0000, {xres[r]}")]
    ops += [f"v_pk_add_f32 {ACCS[H][e:e+2]}, {ACCS[H][e:e+2]}, {XU[8*H+e:8*H+e+2]}" for H in range(2) for e in range(0, 8, 2)] + [f"v_mov_b32 {stt[r]}, 0" for r in range(4)]
    k.run(ops[:8]); rw = red_w(KVR, 32768)
    for i in range(6): k.run([rw[i]] + ops[8+4*i:12+4*i] + (take(W2X, 1) if i < W2R else []))
    W2L = W2X + W2L
    a.wait(tok['u', 15 if NS1 > 2 else 11])
    a("s_waitcnt lgkmcnt(0)\ns_barrier")
    k.run(red_r(TA, 0) + red_r(TB, 32768))
    for H, tm_ in ((0, TA), (1, TB)):
        own = ACCS[H]; h4 = OF[H*4:H*4+4]
        for r in range(3):
            for e in range(0, 8, 2): a(f"v_pk_add_f32 {own[e:e+2]}, {own[e:e+2]}, {tm_[r*8+e:r*8+e+2]}")
        for r in range(4): a(f"v_cvt_pk_bf16_f32 {h4[r]}, {own[2*r]}, {own[2*r+1]}")
        store(f"buffer_store_dwordx4 {h4}, {vh}, {ws}, {(shb, st1)[H]} offen", LOCH & 1)
    for r in range(4):
        for H in range(2): a(f"v_dot2_f32_bf16 {stt[2*H]}, {OF[H*4+r]}, {sones}, {stt[2*H]}\nv_dot2_f32_bf16 {stt[2*H+1]}, {OF[H*4+r]}, {OF[H*4+r]}, {stt[2*H+1]}")
    for r in range(2): a(f"v_lshlrev_b32 {HBs[0][2*r]}, 16, {OF[r]}\nv_and_b32 {HBs[0][2*r+1]}, 0xffff0000, {OF[r]}")
    a(f"v_permlane32_swap_b32 {stt[0]}, {stt[2]}\nv_permlane32_swap_b32 {stt[1]}, {stt[3]}\nv_pk_add_f32 {stt[0:2]}, {stt[0:2]}, {stt[2:4]}")
    tok['h', 0] = store(f"buffer_store_dwordx2 {stt[0:2]}, {vst}, {ws}, {sstb} offen", LOCH & 1)
    k.stamp('pubb')
    if NS1 == 3: k.run(R12)
    if NS1 == 2: k.run(R8)
    b1r = v(160, 6); b2 = v(166, 4); vb = v(170, 2)
    vsw = v(13); vrn = v(11); vgb = v(20, 2); tm = v(212, 12); b1f = v(236, 12)
    for r in range(2, 8): a(f"v_lshlrev_b32 {HBs[r >> 2][2*(r&3)]}, 16, {OF[r]}\nv_and_b32 {HBs[r >> 2][2*(r&3)+1]}, 0xffff0000, {OF[r]}")
    a(f"v_lshrrev_b32 {vb[0]}, 4, {lane}\nv_lshlrev_b32 {vb[0]}, 3, {vb[0]}\nv_lshrrev_b32 {vb[1]}, 5, {lane}\nv_lshlrev_b32 {vb[1]}, 3, {vb[1]}\ns_lshl_b32 {st0}, {sc0}, 5\ns_lshl_b32 {st1}, {shead}, 5")
    for i in range(3): a(f"buffer_load_dwordx2 {b1r[2*i:2*i+2]}, {vb[0]}, {srd['b1']}, {st0} offen offset:{i*128}")
    for e in range(2): a(f"buffer_load_dwordx2 {b2[2*e:2*e+2]}, {vb[1]}, {srd['b2']}, {st1} offen offset:{e*16}")
    setup = its(f"""v_and_b32 {vsw}, 56, {lane}
v_and_b32 {vsl}, 7, {lane}
v_mul_u32_u24 {vsl}, 1088, {vsl}
v_add_u32 {vsl}, {vsl}, {vsw}
s_lshl_b32 {st0}, {sw}, 6
s_add_u32 {st1}, {st0}, {SL}
v_add_u32 {vsl}, {st1}, {vsl}
s_add_u32 {st0}, {st0}, {RB}
v_add_u32 {vsw}, {st0}, {vsw}
v_mov_b32 {vgb[0]}, {f32(GB)}
v_mov_b32 {vgb[1]}, {f32(GB)}
v_and_b32 {vrn}, 15, {lane}
v_lshlrev_b32 {vrn}, 3, {vrn}
v_add_u32 {vrn}, {RB}, {vrn}""")
    k.pack(csm(KC, 16 if NS1 > 2 else 12), [(UD if NS1 == 2 else []) + take(W2L, W2N[0]), setup], False, vgap=2 if NS1 == 2 else 4)
    flag(0, ('h', 0)); a("s_barrier")
    k.stamp('ack')
    for r in range(4): a(f"v_lshlrev_b32 {tm[2*r]}, 16, {b2[r]}\nv_and_b32 {tm[2*r+1]}, 0xffff0000, {b2[r]}")
    for H in range(2):
        for e in range(0, 8, 2): a(f"v_pk_add_f32 {HBs[H][e:e+2]}, {HBs[H][e:e+2]}, {tm[e:e+2]}")
    for i in range(3):
        for h in range(2): a(f"v_lshlrev_b32 {b1f[i*4+2*h]}, 16, {b1r[2*i+h]}\nv_and_b32 {b1f[i*4+2*h+1]}, 0xffff0000, {b1r[2*i+h]}")
    a(fload(0)); fcheck(0)
    k.stamp('s2')
    def dma_h(tt):
        return (its(f"s_add_u32 m0, {sw12}, {tt*16384}\ns_add_u32 {ssoff}, {shs}, {tt*16384}")
                + [k.vm(f"buffer_load_dwordx4 {vl16}, {ws}, {ssoff} offen offset:{i*1024} sc1 lds", ('ht', tt)) for i in range(4)])
    svs = [v(200, 8), v(152, 8)]
    def stat_reads(H): return [f"ds_read_b64 {svs[H][2*q:2*q+2]}, {vsl} offset:{H*8704 + q*256}" for q in range(4)]
    SD = its(f"s_mul_i32 {st0}, {sw}, 4352")
    for q in range(4): SD += its(f"s_add_u32 m0, {st0}, {SL + q*64}") + [k.vm(f"buffer_load_dwordx4 {vl16}, {ws}, {sst} offen offset:{q*1024} sc1 lds", ('st', 0))]
    k.run(dma_h(0) + SD + dma_h(1))
    HL = dma_h(2) + dma_h(3)
    k.run(take(HL, NHL))
    acc3 = v(160, 24); hf = v(184, 16); pk = v(200, 12); rn = v(248, 8)
    def stat_math():
        L = []
        for H in range(2):
            s = svs[H]
            L.append([f"v_add_f32 {s[d_+e]}, {s[d_+e]}, {s[o_+e]}" for d_, o_ in ((0, 2), (4, 6), (0, 4)) for e in range(2)]
                     + [x for d in (DPP_X1, DPP_X2, DPP_HM) for x in (f"v_add_f32 {s[0]}, {s[0]}, {s[0]} {d}", f"v_add_f32 {s[1]}, {s[1]}, {s[1]} {d}")]
                     + f"""v_mul_f32 {s[0]}, {f32(1/512)}, {s[0]}
v_mul_f32 {s[1]}, {f32(1/512)}, {s[1]}
v_fma_f32 {s[1]}, -{s[0]}, {s[0]}, {s[1]}
v_max_f32 {s[1]}, 0, {s[1]}
v_add_f32 {s[2]}, {seps}, {s[1]}
v_rsq_f32 {s[2]}, {s[2]}
v_mul_f32 {s[3]}, {s[2]}, {s[2]}
v_fma_f32 {s[3]}, {s[3]}, {s[1]}, {seps}
v_rsq_f32 {s[3]}, {s[3]}
v_mul_f32 {s[2]}, {s[2]}, {s[3]}
v_mul_f32 {s[3]}, -{s[2]}, {s[0]}
ds_write_b64 {vsw}, {s[2:4]} offset:{H*256}""".split('\n'))
        return [z for xy in zip(*L) for z in xy]
    def epi1(tt):
        ac = acc3[(tt&1)*12:(tt&1)*12+12]; p = rn[tt*2:tt*2+2]
        for e in range(0, 12, 2): a(f"v_pk_fma_f32 {tm[e:e+2]}, {p}, {cs[e:e+2]}, {b1f[e:e+2]} op_sel:[1,0,0]")
        for e in range(0, 12, 2): a(f"v_pk_fma_f32 {ac[e:e+2]}, {p}, {ac[e:e+2]}, {tm[e:e+2]} op_sel_hi:[0,1,1]")
        for e in range(0, 12, 2): a(f"v_pk_mul_f32 {tm[e:e+2]}, {ac[e:e+2]}, {ac[e:e+2]}")
        for e in range(0, 12, 2): a(f"v_pk_fma_f32 {tm[e:e+2]}, {tm[e:e+2]}, {sgab}, {vgb}")
        for e in range(0, 12, 2): a(f"v_pk_mul_f32 {tm[e:e+2]}, {tm[e:e+2]}, {ac[e:e+2]}")
    def epi2(tt, packed=False):
        add = [f"v_pk_add_f32 {tm[e:e+2]}, {tm[e:e+2]}, 1.0 op_sel_hi:[1,0]" for e in range(0, 12, 2)] if packed else [f"v_add_f32 {tm[e]}, 1.0, {tm[e]}" for e in range(12)]
        return [f"v_exp_f32 {tm[e]}, {tm[e]}" for e in range(12)] + add + [f"v_rcp_f32 {tm[e]}, {tm[e]}" for e in range(12)]
    def epi3(tt):
        ac = acc3[(tt&1)*12:(tt&1)*12+12]
        for e in range(0, 12, 2): a(f"v_pk_mul_f32 {ac[e:e+2]}, {ac[e:e+2]}, {tm[e:e+2]}")
        for i in range(3):
            for h in range(2): a(f"v_cvt_pk_bf16_f32 {pk[i*4+(tt&1)*2+h]}, {ac[i*4+2*h]}, {ac[i*4+2*h+1]}")
        if tt & 1:
            for i in range(3):
                for h in range(2): a(f"v_permlane16_swap_b32 {pk[i*4+h]}, {pk[i*4+2+h]}")
            if tt == 3: a(f"s_add_u32 {shh[0]}, {shh[0]}, {88*1024}\ns_add_u32 {shh[1]}, {shh[1]}, {88*1024}")
            tok['hh', tt >> 1] = store("\n".join(f"buffer_store_dwordx4 {pk[i*4:i*4+4]}, {vl16}, {ws}, {shh[min(i, 1)]} offen offset:{i*1024}" for i in range(3)), LOCH & (2 << (tt >> 1)))
    def rd(n): return f"ds_read_b128 {hf[(n&3)*4:(n&3)*4+4]}, {vl16} offset:{n*1024}"
    def rnrd(tt): return f"ds_read_b64 {rn[tt*2:tt*2+2]}, {vrn} offset:{tt*128}"
    a.wait(tok['ht', 0]); a("s_barrier")
    for n in range(3): a(rd(n))
    k.stamp('t0')
    def bar(*keys, more=None):
        def f():
            k.stamp('x%s%s' % keys[0])
            for key in keys: a.wait(tok[key])
            k.stamp('y%s%s' % keys[0])
            a("s_barrier")
            k.stamp('z%s%s' % keys[0])
            if more: more()
        return It(f, cost=2, kind='salu')
    for tt in range(4):
        mf = []; rq = []
        for ks in range(16):
            n = tt*16 + ks
            for i in range(3):
                d = acc3[(tt&1)*12+i*4:(tt&1)*12+i*4+4]
                mf.append(f"v_mfma_f32_16x16x32_bf16 {d}, {w1[(ks*3+i)*4:(ks*3+i)*4+4]}, {hf[(n&3)*4:(n&3)*4+4]}, {d if ks else 0}")
            if tt == 0 and ks == SK:
                x = bar(('st', 0)); x.after = 3*ks - 2; rq.append(x)
                rq += [It(y, after=3*ks - 1) for y in stat_reads(0) + stat_reads(1)]
            if ks == 13 and tt in (1, 2):
                x = bar(('ht', tt+1)); x.after = 3*ks - 2; rq.append(x)
            if n + 3 < 64 and not (tt == 0 and ks >= 13): rq.append(It(rd(n + 3) + "\ns_waitcnt lgkmcnt(2)", cost=3 if tt in (1, 3) else 2, after=3*ks, by=3*ks + 6))
        vq = take(W2L, W2N[tt+1])
        if tt == 0: vq = HL + vq
        fq = []; gq = []
        if tt == 0 and NS1 == 2:
            gq = [It(y, by=36 + 3*(i // 6)) for i, y in enumerate(R12)]; mf += csm(12, 16)
        if tt == 0:
            fq = [It(x, after=3*SK + 4) for x in stat_math()]
            fq += [It(lambda: (a.wait(tok['ht', 1]), a("s_waitcnt lgkmcnt(0)\ns_barrier")), cost=3, kind='salu', after=46 if NS1 > 2 else 56)] + [rnrd(0), rd(16), rd(17), rd(18), rnrd(1), rnrd(2), rnrd(3)]
        if tt == 2:
            for x in vq: x.after = G2
        if tt == 3: vq = take(vq, 4) + [k.vm(fload(2), after=F5)] + vq
        k.pack(mf, [rq, gq, vq, fq, epi2(tt-1) if tt in (1, 3) else []], False, vgap=VG3)
        k.stamp('m%d' % tt)
        if tt == 3: break
        if tt == 1:
            epi3(0); k.run(take(W2L, 1)); epi1(1); k.run(take(W2L, 1)); k.run(epi2(1, True)); epi3(1)

        else:
            epi1(tt)
        if tt == 2: flag(2, ('hh', 0))
        k.stamp('e%d' % tt)
    HH = ag(0, 176); acc4 = v(160, 64); tm4 = v(224, 24); ob = v(248, 4)
    vo = v(12); sob = shb; so4 = srd['x'][3]; send4 = srd['x'][1]
    def ld_hh(H):
        o = []
        for n in range(22):
            if n % 4 == 0: o += its(f"s_add_u32 {so4}, {shv}, {H*88*1024 + n*1024}")
            o.append(k.vm(f"buffer_load_dwordx4 {HH[(H*22+n)*4:(H*22+n)*4+4]}, {vl16}, {ws}, {so4} offen offset:{(n % 4)*1024} sc1"))
        return o
    def p4_mf(H):
        o = []
        for n in range(22):
            for t in range(2):
                d = acc4[H*32+t*16:H*32+t*16+16]
                o.append(f"v_mfma_f32_32x32x16_bf16 {d}, {w2frag(n, t)}, {HH[(H*22+n)*4:(H*22+n)*4+4]}, {d if n else 0}")
        return o
    def p4_epi(H, packed):
        own = acc4[H*32:H*32+8]; o = []
        if packed:
            o += [f"v_pk_add_f32 {own[e:e+2]}, {own[e:e+2]}, {HBs[H][e:e+2]}" for e in range(0, 8, 2)]
            o += [f"v_pk_add_f32 {own[e:e+2]}, {own[e:e+2]}, {tm4[r*8+e:r*8+e+2]}" for r in range(3) for e in range(0, 8, 2)]
        else:
            o += [f"v_add_f32 {own[e]}, {own[e]}, {HBs[H][e]}" for e in range(8)]
            o += [f"v_add_f32 {own[e]}, {own[e]}, {tm4[r*8+e]}" for r in range(3) for e in range(8)]
        o += [f"v_cvt_pk_bf16_f32 {ob[r]}, {own[2*r]}, {own[2*r+1]}" for r in range(4)]
        o += [f"v_permlane32_swap_b32 {ob[h]}, {ob[2+h]}" for h in range(2)]
        if H: o.append(f"s_add_u32 {sob}, {sob}, 32768")
        o.append(f"buffer_store_dwordx4 {ob}, {vo}, {srd['out']}, {sob} offen {OUTP}")
        return o
    LA = ld_hh(0); LB = ld_hh(1)
    class Rec:
        def __init__(s): s.l = []
        def __call__(s, t): s.l += [x for x in t.split('\n') if x.strip()]
    real = a; a = Rec(); epi3(2); epi1(3); tail = a.l + epi2(3, True); a = real
    fcheck(2)
    step = len(tail) // NLA
    for i, x in enumerate(tail):
        if i % step == 0 and i // step < NLA: k.run(take(LA, 1))
        a(x)
    epi3(3)
    k.stamp('p3e')
    a(f"""v_and_b32 {vo}, 31, {lane}
v_lshlrev_b32 {vo}, 10, {vo}
v_lshrrev_b32 {v(13)}, 5, {lane}
v_lshl_add_u32 {vo}, {v(13)}, 4, {vo}
s_lshl_b32 {sob}, {srb}, 16
s_lshl_b32 {st0}, {shead}, 5
s_add_u32 {sob}, {sob}, {st0}""")
    if FAKEOUT: a(f"v_lshrrev_b32 {t0}, 3, {lane}\nv_lshlrev_b32 {vo}, 10, {t0}\nv_and_b32 {t0}, 7, {lane}\nv_lshl_add_u32 {vo}, {t0}, 4, {vo}\ns_lshl_b32 {sob}, {srb}, 16\ns_lshl_b32 {st0}, {sj}, 7\ns_add_u32 {sob}, {sob}, {st0}\ns_lshl_b32 {st0}, {sw}, 13\ns_add_u32 {sob}, {sob}, {st0}")
    nleft = len([x for x in W2L if x.kind == 'vmem']); assert nleft <= 8, nleft; print('W2 left', nleft, file=sys.stderr)
    mfa = p4_mf(0)
    assert F4c <= 2*NLA
    k.run(mfa[:F4])
    k.pack(mfa[F4:F4b], [LA + W2L], True)
    flag(3, ('hh', 1))
    k.run(mfa[F4b:F4c])
    a(fload(3)); fcheck(3)
    k.stamp('s3b')
    k.pack(mfa[F4c:], [take(LB, (44 - F4c) // 2)], True, reserve=lambda i: 1, vgap=2)
    k.stamp('p4a')
    for x in red_w(acc4[0:32], 0):
        a(x); k.run(take(LB, 1))
    a("s_waitcnt lgkmcnt(0)\ns_barrier")
    mfb = p4_mf(1); rwb = red_w(acc4[32:64], 32768)
    mfb = mfb[:44-2*TL] + mfb[45-2*TL::2] + mfb[44-2*TL::2]
    k.pack(mfb[:44-TL+2], [LB, red_r(tm4, 0), [It(x, after=8) for x in p4_epi(0, False)]], True, reserve=lambda i: 1, vgap=2)
    for i, m in enumerate(mfb[44-TL+2:]):
        a(m); k.run(rwb[2+i:3+i] if i < 4 else [])
    k.stamp('p4b')
    k.run(rwb[2+TL-2:] + rwb[:2])
    a("s_waitcnt lgkmcnt(0)\ns_barrier")
    k.run(red_r(tm4, 32768))
    k.run(p4_epi(1, True))
    if STAMPS:
        a("s_waitcnt vmcnt(0)"); STAMPS.append('end'); k.stamp('end')
        t = f"s_memrealtime {rt[2:4]}\ns_waitcnt lgkmcnt(0)\nv_mov_b32 {t0}, {sw}\nv_lshlrev_b32 {t0}, 28, {t0}\ns_lshl_b32 {st0}, s2, 6\ns_add_u32 {st0}, {st0}, {WS_DBG}\n"
        for i in range(1, len(k.stamped)):
            t += f"s_sub_u32 {st1}, {k.str_[2*i]}, {k.str_[0]}\nv_mov_b32 {t1}, {st1}\nbuffer_store_dword {t1}, {t0}, {ws}, {st0} offen offset:{4*i}\n"
        t += f"v_mov_b32 {t1}, {rt[0]}\nbuffer_store_dword {t1}, {t0}, {ws}, {st0} offen offset:56\n"
        t += f"v_mov_b32 {t1}, {rt[2]}\nbuffer_store_dword {t1}, {t0}, {ws}, {st0} offen offset:60\n"
        a.hidden(t)
        print('stamps:', k.stamped[1:], file=sys.stderr)
    a("L_end:\ns_endpgm")
    return a.finish(), S.peak

def place_hops(body):
    import subprocess, re
    lines = body.split('\n'); m = lines.index('L_main:')
    tail = [l for l in lines[m+1:] if l.strip()]
    txt = '.amdgcn_target "amdgcn-amd-amdhsa--gfx950"\n.text\nL_hop3:\nL_hop4:\nL_hop5:\n' + '\n'.join(tail) + '\n'
    open('_h.s', 'w').write(txt)
    subprocess.run(['clang', '-x', 'assembler', '-target', 'amdgcn-amd-amdhsa', '-mcpu=gfx950', '-c', '_h.s', '-o', '_h.o'], check=True)
    dis = subprocess.run(['llvm-objdump', '-d', '--mcpu=gfx950', '_h.o'], capture_output=True, text=True).stdout
    addr = [int(x, 16) for x in re.findall(r'// ([0-9A-F]{12}):', dis)]
    ins = [i for i, l in enumerate(tail) if not l.endswith(':')]
    assert len(addr) == len(ins)
    out = []; nh = 0; pos = dict(zip(ins, addr)); hops = []
    for i, l in enumerate(tail):
        if i in pos and pos[i] + 4*nh >= 4096*nh:
            hops.append(len(out)); out.append(None); nh += 1
        out.append(l)
    assert 5 <= nh <= 6, nh
    for h, at in enumerate(hops): out[at] = f"L_hop{h}:\n    s_cbranch_execz L_back{h // 3}"
    if nh == 5: out.insert(hops[4], "L_hop5:")
    return '\n'.join(lines[:m+1] + out) + '\n'

def assemble():
    hdr = open('cdna_kernels/' + NAME + '.s.ref').read().split('; Override')[0]
    body, sp = kernel()
    print('sgpr', sp, 'lines', body.count('\n'), 'nops', body.count('s_nop'), file=sys.stderr)
    n = NAME + '_kernel'
    if HOP: body = place_hops(body)
    return (hdr + "; @launch grid=(256,1,1) block=(256,1,1) lds=163840\n" + '.amdgcn_target "amdgcn-amd-amdhsa--gfx950"\n.text\n'
            + f".globl {n}\n.p2align 8\n.type {n},@function\n{n}:\n{body}" + '.section .rodata,"a"\n.p2align 6\n' + descriptor(n, 512, 256))

if __name__ == '__main__':
    for x in sys.argv[3:]: exec(x)
    if len(sys.argv) > 2 and sys.argv[2] != '-': STAMPS = sys.argv[2].split(',')
    open(sys.argv[1], 'w').write(assemble())
```
